```python
import torch

def _softmax(x, axis=-1):
    return torch.softmax(x, dim=axis)
def _gelu(x):
    return torch.nn.functional.gelu(x, approximate="tanh")
def _silu(x):
    return torch.nn.functional.silu(x)
def _sigmoid(x):
    return torch.sigmoid(x)
def _layernorm(x, axis=-1, eps=1e-5):
    m = x.mean(dim=axis, keepdim=True)
    v = x.var(dim=axis, keepdim=True, unbiased=False)
    return (x - m) / torch.sqrt(v + eps)
def _scatter_add(tgt, idx, src, axis=0):
    return tgt.clone().index_add_(axis, idx, src)
def _segment_sum(src, seg, n):
    out = torch.zeros((n,) + src.shape[1:], dtype=src.dtype)
    return out.index_add_(0, seg, src)
def _pad(x, pw):
    flat = tuple(v for pair in reversed(pw) for v in pair)
    return torch.nn.functional.pad(x, flat)

kernel_name = 'interleave_layers__sliding_block__sliding_local_dilated__prompt'

def setup_inputs():

    _w = (lambda a: (lambda t: t.to(torch.bfloat16) if t.is_floating_point() else t)(torch.as_tensor(a)))
    def _A_setup():
        B, S, D = 1, 2048, 1024
        return {
            "x": _w((lambda *s: torch.randn(*s, dtype=torch.bfloat16) * 0.05)(B, S, D)),
            "wqkv": _w((lambda *s: torch.randn(*s, dtype=torch.bfloat16) * 0.05)(D, 3 * D)),
            "wo": _w((lambda *s: torch.randn(*s, dtype=torch.bfloat16) * 0.05)(D, D)),
        }
    _A_in = _A_setup()

    def _B_setup():
        B, S, D = 1, 2048, 1024
        return {
            "x": _w((lambda *s: torch.randn(*s, dtype=torch.bfloat16) * 0.05)(B, S, D)),
            "wqkv": _w((lambda *s: torch.randn(*s, dtype=torch.bfloat16) * 0.05)(D, 3 * D)),
            "wo": _w((lambda *s: torch.randn(*s, dtype=torch.bfloat16) * 0.05)(D, D)),
        }
    _B_in = _B_setup()

    return {
        "A_x": _A_in["x"],
        "A_wqkv": _A_in["wqkv"],
        "A_wo": _A_in["wo"],
        "B_x": _B_in["x"],
        "B_wqkv": _B_in["wqkv"],
        "B_wo": _B_in["wo"],
    }

def reference(A_x, A_wqkv, A_wo, B_x, B_wqkv, B_wo):
    def _A_ref(x, wqkv, wo):
        B, S, D = x.shape
        H = 32; Dh = D // H; W = 256
        qkv = (lambda x, *d: x.permute(*d))((x @ wqkv).reshape(B, S, 3, H, Dh), 2, 0, 3, 1, 4)
        q, k, v = qkv[0], qkv[1], qkv[2]
        scores = torch.einsum("bhqd,bhkd->bhqk", q, k) * (Dh ** -0.5)
        idx = torch.arange(S)
        mask = (idx[:, None] - idx[None, :] >= 0) & (idx[:, None] - idx[None, :] < W)
        scores = torch.where(mask[None, None], scores, -1e9)
        p = _softmax(scores, axis=-1)
        o = torch.einsum("bhqk,bhkd->bhqd", p, v)
        return (lambda x, *d: x.permute(*d))(o, 0, 2, 1, 3).reshape(B, S, D) @ wo

    def _B_ref(x, wqkv, wo):
        B, S, D = x.shape
        H = 32; Dh = D // H
        W, dil = 8, 2
        qkv = (lambda x, *d: x.permute(*d))((x @ wqkv).reshape(B, S, 3, H, Dh), 2, 0, 3, 1, 4)
        q, k, v = qkv[0], qkv[1], qkv[2]
        scale = Dh ** -0.5
        pos = torch.arange(S)
        off = torch.arange(W) * dil
        idx = pos[:, None] - off[None, :]
        mask = idx >= 0
        idx_c = torch.where(mask, idx, 0).reshape(-1)
        kg = k[:, :, idx_c, :].reshape(B, H, S, W, Dh)
        vg = v[:, :, idx_c, :].reshape(B, H, S, W, Dh)
        logits = torch.einsum("bhsd,bhswd->bhsw", q, kg) * scale
        logits = torch.where(mask[None, None, :, :], logits, -1e9)
        attn = _softmax(logits, axis=-1)
        o = torch.einsum("bhsw,bhswd->bhsd", attn, vg)
        return (lambda x, *d: x.permute(*d))(o, 0, 2, 1, 3).reshape(B, S, D) @ wo

    x = A_x
    x = x + _A_ref(_layernorm(x, axis=-1), A_wqkv, A_wo)
    x = x + _B_ref(_layernorm(x, axis=-1), B_wqkv, B_wo)
    x = x + _A_ref(_layernorm(x, axis=-1), A_wqkv, A_wo)
    x = x + _B_ref(_layernorm(x, axis=-1), B_wqkv, B_wo)
    return x
```

```python
import sys
import os; HERE=os.path.dirname(os.path.abspath(__file__)); sys.path.insert(0, HERE+"/../tools")
from asmlib import *
import hazard
def vr(r, n): return f"v[{r}:{r+n-1}]"
def gen(body, nw, reps=40, fix=True):
    a = Asm()
    a("s_cmp_ge_u32 s2, 256"); a("s_cbranch_scc1 L_end")
    a("s_load_dwordx2 s[6:7], s[0:1], 64")
    a("v_lshrrev_b32 v1, 6, v0"); a("s_nop 0"); a("v_readfirstlane_b32 s3, v1")
    a("v_and_b32 v2, 63, v0"); a("v_lshlrev_b32 v2, 4, v2")
    a("s_waitcnt lgkmcnt(0)")
    srd(a, 16, 6, 1 << 20, off=72 << 20)
    for r in range(4, 256): a(f"v_mov_b32 v{r}, 0")
    for k in range(8): a(f"ds_write_b128 v2, v[4:7] offset:{k*1024}")
    a("s_waitcnt lgkmcnt(0)")
    a("s_barrier")
    a("s_memtime s[60:61]"); a("s_waitcnt lgkmcnt(0)")
    a("s_mov_b32 s30, 0")
    a(".p2align 6")
    a.label("L_loop")
    for x in body: a(x)
    a("s_add_u32 s30, s30, 1"); a(f"s_cmp_lt_u32 s30, {reps}"); a("s_cbranch_scc1 L_loop")
    a("s_waitcnt lgkmcnt(0)")
    a("s_memtime s[64:65]"); a("s_waitcnt lgkmcnt(0)"); a("s_sub_u32 s64, s64, s60"); a("v_mov_b32 v3, s64")
    a("s_lshl_b32 s36, s2, 6"); a("s_lshl_b32 s37, s3, 2"); a("s_add_u32 s36, s36, s37"); a("v_mov_b32 v9, s36")
    a("s_mov_b64 exec, 1")
    a("buffer_store_dword v3, v9, s[16:19], 0 offen")
    a.label("L_end")
    a("s_endpgm")
    t, n = hazard.fix(a.text()) if fix else (a.text(), 0)
    return kernel_file([f"; @launch grid=(256,1,1) block=({64*nw},1,1) lds=163840"], [(KNAME, t, 256, 96, 256)]), n
def emit(V):
    import glob
    for f in glob.glob(HERE + "/seq_*"): os.remove(f)
    L = []
    for nm, (body, div) in V.items():
        for nw in (4, 8):
            t, n = gen(body, nw); fn = f"seq_{nm}_{div}_{nw}.s"; open(HERE + "/" + fn, "w").write(t); L.append(fn)
            r = os.system(f"clang -x assembler -target amdgcn-amd-amdhsa -mcpu=gfx950 -c {HERE}/{fn} -o x.o"); assert r == 0
        print(nm, "nops", n)
    os.system(f"cd {HERE} && tar cf seq.tar " + " ".join(L))
```

```python
KNAME = "interleave_layers__sliding_block__sliding_local_dilated__prompt_kernel"

class Asm:
    def __init__(self):
        self.lines = []
        self.nlab = 0
    def __call__(self, s="", *a):
        for ln in s.split("\n"):
            self.lines.append(ln if ln.endswith(":") else "    " + ln.strip())
    def label(self, name): self.lines.append(name + ":")
    def newlabel(self, p="L"):
        self.nlab += 1
        return f"{p}_{self.nlab}"
    def c(self, s): self.lines.append("    ; " + s)
    def text(self): return "\n".join(self.lines) + "\n"

def srd(a, d, base, nbytes, off=0):
    if off:
        a(f"s_add_u32 s{d}, s{base}, {off}")
        a(f"s_addc_u32 s{d+1}, s{base+1}, 0")
    else:
        a(f"s_mov_b32 s{d}, s{base}")
        a(f"s_mov_b32 s{d+1}, s{base+1}")
    a(f"s_mov_b32 s{d+2}, {nbytes}")
    a(f"s_mov_b32 s{d+3}, 0x00020000")

def kernel_file(header_lines, kernels):
    out = []
    out += header_lines
    out.append('.amdgcn_target "amdgcn-amd-amdhsa--gfx950"')
    out.append(".text")
    for name, body, v, s, acc in kernels:
        out.append(f".globl {name}")
        out.append(".p2align 8")
        out.append(f".type {name},@function")
        out.append(f"{name}:")
        out.append(body)
    out.append('.section .rodata,"a"')
    for name, body, v, s, acc in kernels:
        out.append(".p2align 6")
        out.append(f".amdhsa_kernel {name}")
        out.append(f"  .amdhsa_next_free_vgpr {v}")
        out.append(f"  .amdhsa_next_free_sgpr {s}")
        out.append(f"  .amdhsa_accum_offset {acc}")
        out.append("  .amdhsa_group_segment_fixed_size 0")
        out.append("  .amdhsa_kernarg_size 72")
        out.append("  .amdhsa_user_sgpr_count 2")
        out.append("  .amdhsa_user_sgpr_kernarg_segment_ptr 1")
        out.append("  .amdhsa_system_sgpr_workgroup_id_x 1")
        out.append(".end_amdhsa_kernel")
    return "\n".join(out) + "\n"
```

```python
import re

def regs(op):
    op = op.strip()
    op = op.lstrip("-")
    m = re.fullmatch(r"abs\((.*)\)", op) or re.fullmatch(r"\|(.*)\|", op)
    if m: op = m.group(1)
    m = re.fullmatch(r"([vsa])(\d+)", op)
    if m: return {(m.group(1), int(m.group(2)))}
    m = re.fullmatch(r"([vsa])\[(\d+):(\d+)\]", op)
    if m: return {(m.group(1), i) for i in range(int(m.group(2)), int(m.group(3)) + 1)}
    if op in ("vcc", "vcc_lo", "vcc_hi"): return {("vcc", 0)}
    if op in ("exec", "exec_lo", "exec_hi"): return {("exec", 0)}
    if op == "m0": return {("m0", 0)}
    return set()

TRANS = ("v_exp_", "v_log_", "v_rcp_", "v_rsq_", "v_sqrt_", "v_sin_", "v_cos_")

class I:
    def __init__(self, text):
        self.text = text
        t = text.split(";")[0].strip()
        self.label = t[:-1] if t.endswith(":") else None
        self.op = ""; self.d = set(); self.u = set(); self.ops = []
        if self.label or not t or t.startswith("."): return
        p = t.split(None, 1)
        self.op = p[0]
        rest = p[1] if len(p) > 1 else ""
        ops = [x.strip() for x in re.split(r",(?![^\[]*\])", rest)] if rest else []
        if ops:
            last = ops[-1].split()
            self.mods = " ".join(last[1:]); ops[-1] = last[0]
        else: self.mods = ""
        self.ops = ops
        o = self.op
        R = [regs(x) for x in ops]
        self.valu = o.startswith("v_") and not o.startswith("v_mfma")
        self.mfma = o.startswith("v_mfma")
        self.ds = o.startswith("ds_"); self.vmem = o.startswith("buffer_") or o.startswith("global_")
        self.salu = o.startswith("s_")
        if self.mfma:
            self.d = R[0]; self.A = R[1]; self.B = R[2]; self.C = R[3]; self.u = R[1] | R[2] | R[3]
            self.passes = 8 if "32x32" in o else 4
        elif self.valu:
            if o.startswith("v_cmp"):
                self.d = set(R[0]); self.u = set().union(*R[1:])
                if o.startswith("v_cmpx"): self.d |= {("exec", 0)}
            elif o.startswith("v_permlane") and "swap" in o:
                self.d = R[0] | R[1]; self.u = R[0] | R[1]
            elif "_co_" in o or o.startswith("v_div_scale") or o.startswith("v_mad_u64"):
                self.d = R[0] | R[1]; self.u = set().union(*R[2:])
            else:
                self.d = set(R[0]) if R else set(); self.u = set().union(*R[1:]) if len(R) > 1 else set()
                if o.startswith(("v_fmac", "v_dot2c", "v_writelane", "v_pk_fmac")) or "PRESERVE" in self.mods: self.u |= R[0]
        elif self.ds:
            if o.startswith(("ds_read", "ds_bpermute", "ds_permute", "ds_swizzle")): self.d = R[0]; self.u = set().union(*R[1:])
            else: self.u = set().union(*R)
        elif self.vmem:
            if o in ("buffer_wbl2", "buffer_inv"): pass
            elif "lds" in self.mods.split(): self.u = set().union(*R) | {("m0", 0)}; self.dma = True
            elif "load" in o: self.d = R[0]; self.u = set().union(*R[1:])
            else:
                self.u = set().union(*R); self.data = R[0] if o.startswith("buffer") else R[1]
                if "atomic" in o and "sc0" in self.mods.split(): self.d = R[0]
        elif self.salu:
            if o.startswith(("s_cmp", "s_bitcmp", "s_cbranch", "s_branch", "s_waitcnt", "s_barrier", "s_nop", "s_sleep", "s_setprio", "s_endpgm")):
                self.u = set().union(*R) if R else set()
            else:
                self.d = set(R[0]) if R else set(); self.u = set().union(*R[1:]) if len(R) > 1 else set()
                if "saveexec" in o: self.d |= {("exec", 0)}
    def states(self):
        if self.label or not self.op: return 0
        if self.op == "s_nop": return int(self.ops[0], 0) + 1
        return 1

def need(p, c):
    n = 0
    if not p.op or not c.op: return 0
    V = lambda s: {r for r in s if r[0] in "va" and r[0] != "vcc"}
    S = lambda s: {r for r in s if r[0] in ("s", "vcc")}
    if p.valu:
        pv, ps = V(p.d), S(p.d)
        if c.mfma and pv & c.u: n = max(n, 2)
        if c.valu and c.op.startswith("v_permlane") and pv & c.u: n = max(n, 2)
        if c.valu and ("dpp" in c.op or "row_" in c.mods or "quad_perm" in c.mods) and pv & c.u: n = max(n, 2)
        if c.valu and c.op.startswith(("v_readlane", "v_readfirstlane")) and pv & c.u: n = max(n, 1)
        if p.op.startswith(TRANS) and (c.valu or c.mfma) and pv & c.u: n = max(n, 1)
        if p.op.startswith("v_dot") and (c.valu or c.vmem or c.ds or c.mfma) and pv & (c.u | c.d):
            same = c.op == p.op and not (pv & (regs(c.ops[1]) | regs(c.ops[2])))
            if not same: n = max(n, 3)
        if ps:
            if c.vmem and ps & c.u: n = max(n, 5)
            if (c.valu or c.mfma) and (ps & c.u or (("vcc", 0) in ps and c.op.startswith(("v_cndmask", "v_addc", "v_subb")))): n = max(n, 4 if c.op.startswith(("v_readlane", "v_writelane")) else 2)
            if c.salu and (ps & c.u or (("vcc", 0) in ps and "vcc" in c.op)): n = max(n, 1)
        if ("exec", 0) in p.d and (c.valu or c.mfma): n = max(n, 5)
        if "dst_sel" in p.mods and (c.valu or c.vmem or c.ds) and pv & (c.u | c.d): n = max(n, 1)
        if "op_sel" in p.mods and not p.op.startswith("v_pk_") and c.valu and pv & (c.u | c.d): n = max(n, 1)
    if p.mfma:
        big, mid, war = (12, 10, 7) if p.passes == 8 else (8, 6, 3)
        if c.mfma:
            if p.d & (c.A | c.B): n = max(n, big)
            if p.d & c.C and not (p.d == c.C and p.passes == c.passes): n = max(n, mid)
            if p.d & c.d and not (p.d == c.d and p.passes == c.passes): n = max(n, big)
        elif c.valu or c.vmem or c.ds:
            if p.d & (c.u | c.d): n = max(n, big)
            if c.valu and p.C & c.d: n = max(n, war)
    if p.vmem and hasattr(p, "data") and ("x3" in p.op or "x4" in p.op) and V(p.data) & c.d: n = max(n, 2)
    if p.salu and ("m0", 0) in p.d and hasattr(c, "dma"): n = max(n, 1)
    if p.salu and ("m0", 0) in p.d and c.valu and ("m0", 0) in c.u: n = max(n, 1)
    return n

def fix(text, verbose=False):
    lines = text.split("\n")
    total = 0
    while True:
        ins = [I(l) for l in lines]
        lab = {x.label: i for i, x in enumerate(ins) if x.label}
        br = {}
        for i, x in enumerate(ins):
            if x.op.startswith(("s_cbranch", "s_branch")): br.setdefault(lab[x.ops[0]], []).append(i)
        add = {}
        for i, c in enumerate(ins):
            if not c.op: continue
            worst = 0
            stack = [(i, 0)]; seen = {}
            while stack:
                k, dist = stack.pop()
                preds = []
                if k > 0 and not (ins[k-1].op in ("s_branch", "s_endpgm")): preds.append(k - 1)
                if ins[k].label: preds += br.get(k, [])
                for q in preds:
                    p = ins[q]
                    if p.op:
                        n = need(p, c)
                        if n > dist: worst = max(worst, n - dist)
                    d2 = dist + p.states()
                    if d2 < 12 and seen.get(q, 99) > d2:
                        seen[q] = d2; stack.append((q, d2))
            if worst: add[i] = worst
        if not add: break
        out = []; last = -100
        for i, l in enumerate(lines):
            if i in add and i - last > 12:
                out.append(f"    s_nop {add[i]-1}"); total += 1; last = i
                if verbose: print("nop", add[i], "before", l.strip())
            out.append(l)
        lines = out
    return "\n".join(lines), total
```

```python
from gen_seq import *
V = {}
def rep(f, n=64): return [x for i in range(n) for x in f(i)]
r = lambda i: 16 + (i % 32) * 2
V["exp"] = (rep(lambda i: [f"v_exp_f32 v{r(i)}, v{r(i)+1}"]), 64)
V["add"] = (rep(lambda i: [f"v_add_f32 v{r(i)}, v{r(i)+1}, v90"]), 64)
V["cvt"] = (rep(lambda i: [f"v_cvt_pk_bf16_f32 v{r(i)}, v{r(i)+1}, v90"]), 64)
V["pkmul"] = (rep(lambda i: [f"v_pk_mul_f32 {vr(r(i),2)}, v[90:91], v[92:93]"]), 64)
V["pkfma"] = (rep(lambda i: [f"v_pk_fma_f32 {vr(r(i),2)}, v[90:91], v[92:93], v[94:95]"]), 64)
V["fma"] = (rep(lambda i: [f"v_fma_f32 v{r(i)}, v90, v92, v94"]), 64)
V["epi_dep"] = (rep(lambda i: [f"v_pk_mul_f32 {vr(100+2*(i%4),2)}, v[90:91], v[92:93]", f"v_pk_fma_f32 {vr(100+2*(i%4),2)}, {vr(r(i),2)}, v[92:93], {vr(100+2*(i%4),2)}", f"v_cvt_pk_bf16_f32 v{r(i)}, v{100+2*(i%4)}, v{101+2*(i%4)}"], 32), 32)
V["epi_pipe"] = (rep(lambda i: [f"v_pk_mul_f32 {vr(100+2*((i+2)%4),2)}, v[90:91], v[92:93]", f"v_pk_fma_f32 {vr(100+2*((i+1)%4),2)}, {vr(r(i),2)}, v[92:93], {vr(100+2*((i+1)%4),2)}", f"v_cvt_pk_bf16_f32 v{r(i+8)}, v{100+2*(i%4)}, v{101+2*(i%4)}"], 32), 32)
V["dot2"] = (rep(lambda i: [f"v_dot2_f32_bf16 v{r(i)}, v90, v92, v{r(i)}"]), 64)
V["perm16"] = (rep(lambda i: [f"v_permlane16_swap_b32 v{r(i)}, v{r(i)+1}"]), 64)
V["mov"] = (rep(lambda i: [f"v_mov_b32 v{r(i)}, 0"]), 64)
V["mov64"] = (rep(lambda i: [f"v_mov_b64 {vr(r(i),2)}, 0"]), 64)
V["salu"] = (rep(lambda i: [f"s_add_u32 s{40+i%8}, s50, 5"]), 64)
Q, OA, LS, SEL = 24, 228, 244, 224
Sx = lambda k: 32 + 16 * (k & 1); Px = lambda k: 64 + 8 * (k & 1); Kx = lambda k: 80 + 8 * (k & 1); Vx = lambda k: 96 + 8 * (k & 1)
def body32(k, PVAT=(7, 10, 13, 16), SAT2=3, rs=True, lds=True):
    valu = []
    for p in range(8):
        valu += [f"v_exp_f32 v{Sx(k)+2*p}, v{Sx(k)+2*p}", f"v_exp_f32 v{Sx(k)+2*p+1}, v{Sx(k)+2*p+1}"]
        if p: valu.append(f"v_cvt_pk_bf16_f32 v{Px(k)+p-1}, v{Sx(k)+2*p-2}, v{Sx(k)+2*p-1}")
    valu.append(f"v_cvt_pk_bf16_f32 v{Px(k)+7}, v{Sx(k)+14}, v{Sx(k)+15}")
    rd = lambda d, o: [f"ds_read_b128 {vr(d,4)}, v2 offset:{o}", f"ds_read_b128 {vr(d+4,4)}, v2 offset:{o+1024}"] if lds else []
    S2 = [f"v_mfma_f32_32x32x16_bf16 {vr(Sx(k+1),16)}, {vr(Kx(k+1),4)}, {vr(Q,4)}, 0", f"v_mfma_f32_32x32x16_bf16 {vr(Sx(k+1),16)}, {vr(Kx(k+1)+4,4)}, {vr(Q+4,4)}, {vr(Sx(k+1),16)}"]
    P = [f"v_mfma_f32_32x32x16_bf16 {vr(OA,16)}, {vr(Vx(k-1),4)}, {vr(Px(k-1),4)}, {vr(OA,16)}", f"v_mfma_f32_16x16x32_bf16 {vr(LS,4)}, {vr(SEL,4)}, {vr(Px(k-1),4)}, {vr(LS,4)}",
         f"v_mfma_f32_32x32x16_bf16 {vr(OA,16)}, {vr(Vx(k-1)+4,4)}, {vr(Px(k-1)+4,4)}, {vr(OA,16)}", f"v_mfma_f32_16x16x32_bf16 {vr(LS,4)}, {vr(SEL,4)}, {vr(Px(k-1)+4,4)}, {vr(LS,4)}"]
    ins = {0: [S2[0]]}; ins.setdefault(SAT2, []).append(S2[1]); ins.setdefault(5, []).extend(rd(Kx(k+2), 0))
    for n, x in zip(PVAT, P):
        if rs or "32x32" in x: ins.setdefault(n, []).append(x)
    ins.setdefault(19, []).extend(rd(Vx(k+1), 2048))
    L = ["s_waitcnt lgkmcnt(2)"]
    for n, x in enumerate(valu): L += ins.get(n, []) + [x]
    return L
V["att32"] = (body32(0) + body32(1), 2)
V["att32nors"] = (body32(0, rs=False) + body32(1, rs=False), 2)
V["att32nolds"] = (body32(0, lds=False) + body32(1, lds=False), 2)
V["att32b"] = (body32(0, (8, 13, 16, 21), 4) + body32(1, (8, 13, 16, 21), 4), 2)
def body16(k, at, rs=True):
    valu = []
    for p in range(8):
        valu += [f"v_exp_f32 v{Sx(k)+2*p}, v{Sx(k)+2*p}", f"v_exp_f32 v{Sx(k)+2*p+1}, v{Sx(k)+2*p+1}"]
        if p: valu.append(f"v_cvt_pk_bf16_f32 v{Px(k)+p-1}, v{Sx(k)+2*p-2}, v{Sx(k)+2*p-1}")
    valu.append(f"v_cvt_pk_bf16_f32 v{Px(k)+7}, v{Sx(k)+14}, v{Sx(k)+15}")
    rd = lambda d, o: [f"ds_read_b128 {vr(d,4)}, v2 offset:{o}", f"ds_read_b128 {vr(d+4,4)}, v2 offset:{o+1024}"]
    M = [f"v_mfma_f32_16x16x32_bf16 {vr(Sx(k+1)+8*q+4*h,4)}, {vr(Kx(k+1)+4*h,4)}, {vr(Q+4*q,4)}, 0" for h in range(2) for q in range(2)]
    M += [f"v_mfma_f32_16x16x32_bf16 {vr(OA+8*q+4*h,4)}, {vr(Vx(k-1)+4*h,4)}, {vr(Px(k-1)+4*q,4)}, {vr(OA+8*q+4*h,4)}" for h in range(2) for q in range(2)]
    if rs: M += [f"v_mfma_f32_16x16x32_bf16 {vr(LS+4*q,4)}, {vr(SEL,4)}, {vr(Px(k-1)+4*q,4)}, {vr(LS+4*q,4)}" for q in range(2)]
    ins = {}
    for n, x in zip(at, M): ins.setdefault(n, []).append(x)
    ins.setdefault(at[3] + 1, []).extend(rd(Kx(k+2), 0)); ins.setdefault(at[7] + 1, []).extend(rd(Vx(k+1), 2048))
    L = ["s_waitcnt lgkmcnt(2)"]
    for n, x in enumerate(valu): L += ins.get(n, []) + [x]
    return L
at = [0, 2, 4, 7, 9, 12, 14, 16, 19, 21]
V["att16"] = (body16(0, at) + body16(1, at), 2)
V["att16nors"] = (body16(0, at, False) + body16(1, at, False), 2)
at = [0, 1, 2, 3, 5, 6, 8, 9, 11, 12]
V["att16c"] = (body16(0, at) + body16(1, at), 2)
emit(V)
```

```python
import sys, os, struct, math
HERE = os.path.dirname(os.path.abspath(__file__)); sys.path.insert(0, HERE + "/../tools")
from asmlib import *
import hazard

MB = 1 << 20
ST, CSP, FL, RGN, XF, STAMP = 0, 256 * 1024, 640 * 1024, 2 * MB, 18 * MB, 70 * MB
XFL, OFL, CSFL, NONCE, KVFL, SFL = FL, FL + 32768, FL + 98304, FL + 114688, FL + 131072, FL + 262144
OF, KVA = 256 * 1024, 512 * 1024
WS_SIZE = 72 * MB
XB = [48 * 1024, 64 * 1024, 80 * 1024]
WB = [136 * 1024, 0, 24 * 1024]
TAB = 128 * 1024
QOFF = 24 * 1024
OWN_A, OWN_B, RB1, RB2 = 32 * 1024, 128 * 1024, 64 * 1024, 128 * 1024
BIG = 0xF149F2CA
QSCALE = struct.unpack("<I", struct.pack("<f", 32 ** -0.5 * math.log2(math.e)))[0]
WSTEP = 64 * 6144
SPIN = 1 << 18
RT = 0; TRACE = 0; PH = None; SKIP = []; G2ST = 0; FORCE_EXACT = 0; DBGT = 0
G2L = 2; G2D = 12; HOT = 1; HOTD = 4; WTOUCH = 0; WTL = 48; W2AT = 'T'; APRIO = 1; QPOST = 6
BW1 = list(range(0, 6)) + list(range(8, 16)); BW2 = []; BW3 = list(range(16, 24)); LATE0 = 28; G2OWN = 1; POLL2 = 0; E2Z = 1; RM0 = 0; SLABJ = 1; WOHOT = 10; HOTF = 1; HOTX = 0; HOTS = 0; SWARM = 0; SAT = 32; WPACE = 0; IDLE = 0; XOUT = 1;
WARM = [("wo", 0, 16), ("o", 0, 32)]; WBZ = 1
STF = ''; LDF = ' sc1'; PREW = 0; HOT0 = (0, 5); DIAG = 0; WT0 = 0; PROG = 8; POSTD = 4; SLB = 24; DOTSUM = 0; BARM = 1; PVAT = (7, 10, 13, 16); SAT2 = 3; WOBW = 0;
S2AT = 0;  CODEPF = 12; HALOY = 0; NONL = 0; WBE = 0; FSC = ''; FJW = 15; FJO = 15

sW, sWO, sWS, sIO, sXS = 4, 8, 12, 16, 88
sWID, sRB, sJ, sL, sFAST, sN0, sN1 = 3, 20, 21, 22, 23, 24, 25
sT = list(range(26, 48))
pX, pWA, pWOA, pWB, pWOB, pOUT, pDBG, pWS = 48, 50, 52, 56, 58, 60, 62, 64
sT0 = 66
sLK, sKSH = 72, 73
sCNT, sSLOT, sXO, sWOF, sMX, sMW = 74, 75, 76, 77, 78, 79
sWQ, sWR = 95, 96
sROT, sRM = 98, 99
sXST = 71
sOWN, sWP, sWH, sXSH = 84, 85, 86, 87
vL16, vLANE, vTR, vCH, vWO, vSTAMP = 0, 1, 2, 3, 4, 6
vCS0, vCS1 = 20, 21
XRES = 8
vDUM = 255

def vr(r, n): return f"v[{r}:{r+n-1}]"
def sr(r, n=4): return f"s[{r}:{r+n-1}]"

class G(Asm):
    def __init__(self, stamps):
        super().__init__(); self.stamps = stamps; self.names = []
    def stamp(self, name):
        if PH and name == PH[0]:
            l = self.newlabel("Lph")
            self(f"s_cmp_lg_u32 s{sL}, {PH[1]}"); self(f"s_cbranch_scc1 {l}")
            self("s_memrealtime s[92:93]"); self("s_waitcnt lgkmcnt(0)"); self("s_sub_u32 s94, s92, s80"); self.label(l)
        if not self.stamps or SKIP == 'all' or name in SKIP: return
        self.names.append(name)
        self(f"s_sub_u32 s68, s82, s{80 if RT else sT0}")
        self("s_memrealtime s[82:83]" if RT else "s_memtime s[82:83]")
        self("s_mov_b32 s69, m0"); self("s_mov_b32 m0, s70"); self("s_add_u32 s70, s70, 1"); self(f"v_writelane_b32 v{vSTAMP}, s68, m0"); self("s_mov_b32 m0, s69")
    def wave_if(self, cond, imm):
        l = self.newlabel("Lw")
        self(f"s_cmp_{cond}_u32 s{sWID}, {imm}"); self(f"s_cbranch_scc0 {l}")
        return l
    def stores(self, L):
        if not WT0:
            for x in L: self(x)
            return
        l0, l1 = self.newlabel("Lwt"), self.newlabel("Lwt")
        self(f"s_cmp_eq_u32 s{sL}, 0"); self(f"s_cbranch_scc1 {l0}")
        for x in L: self(x)
        self(f"s_branch {l1}"); self.label(l0)
        for x in L: self(x + " sc1")
        self.label(l1)
    def post(self, vaddr, vt, cross, wt=None):
        self(f"v_mov_b32 v{vt}, s{sN0}"); self(f"v_mov_b32 v{vt+1}, s{sN1}")
        self("s_mov_b64 exec, 1")
        if cross:
            self(f"buffer_store_dwordx2 {vr(vt,2)}, v{vaddr}, {sr(sWS)}, 0 offen sc1")
        else:
            sl, dn, w0 = self.newlabel("Lslow"), self.newlabel("Lpd"), self.newlabel("Lw0")
            if wt is not None and WT0: self(f"s_cmp_eq_u32 s{sL}, {wt}"); self(f"s_cbranch_scc1 {w0}")
            self(f"s_cmp_eq_u32 s{sFAST}, 0"); self(f"s_cbranch_scc1 {sl}")
            self(f"buffer_store_dwordx2 {vr(vt,2)}, v{vaddr}, {sr(sWS)}, 0 offen")
            self(f"s_branch {dn}")
            self.label(sl)
            self("buffer_wbl2 sc1"); self("s_waitcnt vmcnt(0)")
            self.label(w0)
            self(f"buffer_store_dwordx2 {vr(vt,2)}, v{vaddr}, {sr(sWS)}, 0 offen sc1")
            self.label(dn)
        self("s_mov_b64 exec, -1")
    def flagbits(self, vt):
        self(f"v_xor_b32 v{vt+2}, s{sN0}, v{vt}"); self(f"v_xor_b32 v{vt+3}, s{sN1}, v{vt+1}")
        self(f"v_lshrrev_b32 v{vt+3}, 4, v{vt+3}"); self(f"v_or_b32 v{vt+2}, v{vt+2}, v{vt+3}")
        self(f"v_cmp_ne_u32 vcc, 0, v{vt+2}")
    def flagtest(self, vt, ok):
        self(f"v_xor_b32 v{vt+2}, s{sN0}, v{vt}"); self(f"v_xor_b32 v{vt+3}, s{sN1}, v{vt+1}")
        self(f"v_lshrrev_b32 v{vt+3}, 4, v{vt+3}"); self(f"v_or_b32 v{vt+2}, v{vt+2}, v{vt+3}")
        self(f"v_cmp_ne_u32 vcc, 0, v{vt+2}"); self(f"s_cbranch_vccz {ok}")
    def poll(self, vaddr, vt, acquire):
        lp, ok = self.newlabel("Lpoll"), self.newlabel("Lok")
        self(f"s_mov_b32 s{sT[0]}, 0")
        self.label(lp)
        self(f"buffer_load_dwordx2 {vr(vt,2)}, v{vaddr}, {sr(sWS)}, 0 offen sc1")
        self("s_waitcnt vmcnt(0)")
        self.flagtest(vt, ok)
        self(f"s_add_u32 s{sT[0]}, s{sT[0]}, 1"); self(f"s_cmp_lt_u32 s{sT[0]}, {SPIN}"); self(f"s_cbranch_scc1 {lp}")
        self.label(ok)
    def poll2(self, vaddr, va, vb):
        if not POLL2: return self.poll(vaddr, va, False)
        lp, ok = self.newlabel("Lpoll"), self.newlabel("Lok")
        ld = lambda v: self(f"buffer_load_dwordx2 {vr(v,2)}, v{vaddr}, {sr(sWS)}, 0 offen sc1")
        self(f"s_mov_b32 s{sT[0]}, 0")
        ld(va); self(f"s_sleep {POLL2}"); ld(vb)
        self.label(lp)
        self("s_waitcnt vmcnt(1)"); self.flagtest(va, ok); ld(va)
        self("s_waitcnt vmcnt(1)"); self.flagtest(vb, ok); ld(vb)
        self(f"s_add_u32 s{sT[0]}, s{sT[0]}, 1"); self(f"s_cmp_lt_u32 s{sT[0]}, {SPIN}"); self(f"s_cbranch_scc1 {lp}")
        self.label(ok)
    def acquire(self):
        dn = self.newlabel("Lacq")
        self(f"s_cmp_eq_u32 s{sFAST}, 0"); self(f"s_cbranch_scc0 {dn}")
        self("buffer_inv sc1"); self("s_waitcnt vmcnt(0)")
        self.label(dn)

def sel_const(a, d, t):
    a(f"v_lshrrev_b32 v{t}, 2, v{vLANE}"); a(f"v_lshrrev_b32 v{t+1}, 4, v{vLANE}"); a(f"v_xor_b32 v{t}, v{t}, v{t+1}"); a(f"v_bfe_i32 v{t}, v{t}, 0, 1")
    a(f"v_not_b32 v{t}, v{t}"); a(f"v_and_b32 v{d}, 0x3f803f80, v{t}")
    for i in range(1, 4): a(f"v_mov_b32 v{d+i}, v{d}")
def mfma32(a, d, A, B, C): a(f"v_mfma_f32_32x32x16_bf16 {vr(d,16)}, {vr(A,4)}, {vr(B,4)}, {C if isinstance(C,str) else vr(C,16)}")
def mfma16(a, d, A, B, C): a(f"v_mfma_f32_16x16x32_bf16 {vr(d,4)}, {vr(A,4)}, {vr(B,4)}, {C if isinstance(C,str) else vr(C,4)}")

def tile_flag(a, v, base, shift, layer_add, tile, mine):
    s = sT[1]
    a(f"s_add_u32 s{s}, s{sL}, {layer_add}"); a(f"s_lshl_b32 s{s}, s{s}, 4"); a(f"s_add_u32 s{s}, s{s}, s{sRB}"); a(f"s_lshl_b32 s{s}, s{s}, 2"); a(f"s_add_u32 s{s}, s{s}, s{tile}")
    a(f"s_lshl_b32 s{s}, s{s}, {shift}"); a(f"s_add_u32 s{s}, s{s}, {base}")
    if isinstance(mine, str): a(f"s_lshl_b32 s{s+1}, {mine}, 3"); a(f"s_add_u32 s{s}, s{s}, s{s+1}"); a(f"v_mov_b32 v{v}, s{s}")
    else: a(f"v_and_b32 v{v}, {mine}, v{vLANE}"); a(f"v_lshl_add_u32 v{v}, v{v}, 3, s{s}")

def x_frags(a):
    s = sT[1]; assert XOUT
    a(f"s_lshl_b32 s{s}, s{sRB}, 2"); a(f"s_add_u32 s{s}, s{s}, s{sWID}")
    a(f"s_lshl_b32 s{s}, s{s}, 16"); a(f"s_lshl_b32 s{sXST}, s{sJ}, 12"); a(f"s_add_u32 s{sXST}, s{sXST}, s{s}")
    return [f"buffer_store_dwordx4 {vr(XRES+4*f,4)}, v{vL16}, {sr(sIO)}, s{sXST} offen offset:{f*1024}{STF}" for f in range(4)]
def x_stats(a, T):
    s = sT[1]
    a(f"s_mov_b32 s{s+3}, 0x3f803f80")
    for i in range(16):
        o = 2 * (i & 1)
        a(f"v_dot2_f32_bf16 v{T+o}, v{XRES+i}, s{s+3}, {'0' if i < 2 else 'v%d' % (T+o)}"); a(f"v_dot2_f32_bf16 v{T+o+1}, v{XRES+i}, v{XRES+i}, {'0' if i < 2 else 'v%d' % (T+o+1)}")
    a(f"v_lshlrev_b32 v{T+4}, 3, v{vLANE}")
    a(f"v_pk_add_f32 {vr(T,2)}, {vr(T,2)}, {vr(T+2,2)}")
    a(f"v_mov_b32 v{T+2}, v{T}"); a(f"v_mov_b32 v{T+3}, v{T+1}")
    a(f"v_permlane32_swap_b32 v{T}, v{T+2}"); a(f"v_permlane32_swap_b32 v{T+1}, v{T+3}")
    a(f"v_pk_add_f32 {vr(T,2)}, {vr(T,2)}, {vr(T+2,2)}")
def stats_store(a, fl, T):
    s = sT[1]
    a(f"s_lshl_b32 s{s}, s{sRB}, 2"); a(f"s_add_u32 s{s}, s{s}, s{sWID}")
    a(f"s_lshl_b32 s{s+2}, s{s}, 12"); a(f"s_lshl_b32 s{s+4}, s{sJ}, 8"); a(f"s_add_u32 s{s+2}, s{s+2}, s{s+4}"); assert ST == 0
    a("s_mov_b32 exec_hi, 0")
    a(f"buffer_store_dwordx2 {vr(T,2)}, v{T+4}, {sr(sWS)}, s{s+2} offen{fl}")
    a("s_mov_b64 exec, -1")

def io_addr(a, v):
    s = sT[1]
    a(f"s_lshl_b32 s{s}, s{sRB}, 2"); a(f"s_add_u32 s{s}, s{s}, s{sWID}"); a(f"s_lshl_b32 s{s}, s{s}, 16"); a(f"s_lshl_b32 s{s+1}, s{sJ}, 7"); a(f"s_add_u32 s{s}, s{s}, s{s+1}")
    a(f"v_and_b32 v{v}, 31, v{vLANE}"); a(f"v_lshlrev_b32 v{v}, 11, v{v}"); a(f"v_lshrrev_b32 v{v+1}, 5, v{vLANE}"); a(f"v_lshlrev_b32 v{v+1}, 4, v{v+1}")
    a(f"v_add3_u32 v{v}, v{v}, v{v+1}, s{s}")
def half_swaps(a):
    for f in range(4):
        a(f"v_permlane32_swap_b32 v{XRES+4*f}, v{XRES+4*f+2}"); a(f"v_permlane32_swap_b32 v{XRES+4*f+1}, v{XRES+4*f+3}")
def next_layer(a):
    a(f"s_add_u32 s{sL}, s{sL}, 1"); a(f"s_mov_b32 s{sROT}, s{sJ}"); a(f"s_mov_b32 s{sRM}, 15")
    a(f"s_lshr_b32 s{sLK}, s{sL}, 1"); a(f"s_lshl_b32 s{sLK}, s{sLK}, 17"); a(f"s_add_u32 s{sLK}, s{sLK}, {RGN - 3*8192}")
    a(f"s_bitcmp1_b32 s{sL}, 0"); a(f"s_cselect_b32 s{sLK}, s{sLK}, {RGN + KVA}"); a(f"s_cselect_b32 s{sKSH}, 13, 15")
    a(f"s_bitcmp1_b32 s{sL}, 0"); a(f"s_cselect_b32 s{sWO}, s{pWOB}, s{pWOA}"); a(f"s_cselect_b32 s{sWO+1}, s{pWOB+1}, s{pWOA+1}")
    a(f"s_cselect_b32 s{sW}, s{pWB}, s{pWA}"); a(f"s_cselect_b32 s{sW+1}, s{pWB+1}, s{pWA+1}")
    a(f"s_and_b32 s{sT[1]}, s{sL}, 1"); a(f"s_lshl_b32 s{sT[1]}, s{sT[1]}, 1"); a(f"s_lshl_b32 s{sOWN}, {OWN_A}, s{sT[1]}"); assert OWN_B == 4 * OWN_A

LX, LW, vHOT = 8, 12, 18
def loader_setup_w(a):
    s = sT[1]
    a(f"s_sub_u32 s{s}, s{sWID}, 4")
    a(f"s_lshl_b32 s{sMX}, s{s}, 12"); a(f"s_mul_i32 s{sMW}, s{s}, 6144")
    a(f"v_lshrrev_b32 v{LW}, 3, v{vLANE}"); a(f"v_mul_u32_u24 v{LW}, 6144, v{LW}"); a(f"v_add_u32 v{LW}, v{LW}, v{vCH}")
    a(f"s_mul_i32 s{s+1}, s{s}, {16*6144}"); a(f"s_lshl_b32 s{s+2}, s{sJ}, 7")
    if FJW != 15: a(f"s_and_b32 s{s+2}, s{s+2}, {FJW << 7}")
    a(f"s_add_u32 s{s+1}, s{s+1}, s{s+2}"); a(f"v_add_u32 v{LW}, s{s+1}, v{LW}")
    for k in range(1, 6): a(f"v_add_u32 v{LW+k}, {(k//3)*8*6144 + (k%3)*1024}, v{LW}")
def loader_setup_x(a, first):
    s = sT[1]
    a(f"s_sub_u32 s{s}, s{sWID}, 4"); a(f"s_lshl_b32 s{s+1}, s{sRB}, 2"); a(f"s_add_u32 s{s}, s{s}, s{s+1}"); a(f"s_lshl_b32 s{s}, s{s}, 16")
    if first:
        a(f"s_mov_b32 s{sXSH}, 7")
        a(f"v_lshrrev_b32 v{LX+1}, 4, v{vLANE}"); a(f"v_and_b32 v{LX+2}, 7, v{vLANE}"); a(f"v_xor_b32 v{LX+1}, v{LX+1}, v{LX+2}"); a(f"v_lshlrev_b32 v{LX+1}, 4, v{LX+1}")
        a(f"v_lshrrev_b32 v{LX+2}, 3, v{vLANE}"); a(f"v_lshlrev_b32 v{LX+2}, 11, v{LX+2}"); a(f"v_add3_u32 v{LX}, v{LX+1}, v{LX+2}, s{s}")
        a(f"v_xor_b32 v{LX+1}, 64, v{LX}"); a(f"v_add_u32 v{LX+2}, {2*15360}, v{LX}"); a(f"v_add_u32 v{LX+3}, {3*15360}, v{LX+1}"); a(f"v_add_u32 v{LX+1}, 15360, v{LX+1}")
        a("s_waitcnt lgkmcnt(0)"); srd(a, sXS, pX, 4194304)
    else:
        if XOUT: srd(a, sXS, pOUT, 4194304)
        else: srd(a, sXS, pWS, WS_SIZE); a(f"s_add_u32 s{s}, s{s}, {XF}")
        a(f"s_mov_b32 s{sXSH}, 12")
        for k in range(4): a(f"v_add_u32 v{LX+k}, s{s}, v{vL16}")
def kstage(a, n):
    a(f"s_add_u32 s{sT[1]}, s{sROT}, {n}")
    a(f"s_and_b32 s{sT[1]}, s{sT[1]}, 15")
    a(f"s_lshl_b32 s{sXO}, s{sT[1]}, s{sXSH}"); a(f"s_mul_i32 s{sWOF}, s{sT[1]}, {WSTEP}")
def dma_w(a, n):
    for i in range(2):
        a(f"s_add_u32 m0, s{sMW}, {WB[n % 3] + i*3072}")
        for seg in range(3): a(f"buffer_load_dwordx4 v{LW+i*3+seg}, {sr(sW)}, s{sWOF} offen offset:{seg*1024} lds")
def dma_x(a, n):
    a(f"s_add_u32 m0, s{sMX}, {XB[n % 3]}")
    for k in range(4): a(f"buffer_load_dwordx4 v{LX+k}, {sr(sXS)}, s{sXO} offen offset:{k*1024}{LDF} lds")
def hot_line(a, v, q, base):
    s = sT[4]
    a(f"s_lshr_b32 s{s}, s{base}, 7"); a(f"s_sub_u32 s{s}, 3, s{s}"); a(f"s_and_b32 s{s}, s{s}, 7"); a(f"s_lshl_b32 s{s}, s{s}, 7")
    a(f"v_and_b32 v{v}, 1, v{q}"); a(f"v_lshlrev_b32 v{v}, 10, v{v}"); a(f"v_lshrrev_b32 v{q}, 1, v{q}"); a(f"v_lshlrev_b32 v{q}, 11, v{q}")
    a(f"v_add3_u32 v{v}, v{v}, v{q}, s{s}")
def hot_setup(a, t):
    s = sT[1]
    a(f"s_lshr_b32 s{s}, s2, 3"); a(f"s_mul_i32 s{s}, s{s}, 12"); a(f"s_sub_u32 s{s+1}, s{sWID}, 4"); a(f"s_mul_i32 s{s+1}, s{s+1}, 3"); a(f"s_add_u32 s{s}, s{s}, s{s+1}")
    a(f"v_mul_u32_u24 v{vHOT+1}, 21846, v{vLANE}"); a(f"v_lshrrev_b32 v{vHOT+1}, 16, v{vHOT+1}")
    a(f"v_mul_u32_u24 v{t}, 3, v{vHOT+1}"); a(f"v_sub_u32 v{t}, v{vLANE}, v{t}"); a(f"v_add_u32 v{t}, s{s}, v{t}")
    hot_line(a, vHOT, t, sW)
    a(f"v_bfe_u32 v{t}, v{vHOT}, 7, 4"); a(f"v_and_b32 v{t}, s{sRM}, v{t}"); a(f"v_add_u32 v{vHOT+1}, v{vHOT+1}, v{t}")
def hot_issue(a, first, count, t):
    s = sT[1]
    a(f"v_add_u32 v{t}, {first}, v{vHOT+1}"); a(f"v_and_b32 v{t}, 15, v{t}")
    a(f"s_mov_b32 s{s}, {WSTEP}"); a(f"v_mad_u32_u24 v{t}, v{t}, s{s}, v{vHOT}")
    a(f"s_mov_b64 exec, {(1 << (3 * count)) - 1}")
    a(f"buffer_load_dword v{vDUM}, v{t}, {sr(sW)}, 0 offen")
    a("s_mov_b64 exec, -1")
def hot_burst(a, t):
    if HOT: hot_setup(a, t); hot_issue(a, 0, HOTD + 1, t)
def hot_slab(t, sd, nw, v):
    s = sT[1]; per = 24 // nw; sh = {8: 3, 4: 2}[nw]
    t(f"s_lshr_b32 s{s}, s2, 3"); t(f"s_lshl_b32 s{s}, s{s}, {sh}"); t(f"s_and_b32 s{s+1}, s{sWID}, {nw-1}"); t(f"s_add_u32 s{s}, s{s}, s{s+1}")
    t(f"s_lshr_b32 s{s+1}, s{s}, {sh+3}"); t(f"s_and_b32 s{s}, s{s}, {8*nw-1}"); t(f"s_mul_i32 s{s}, s{s}, {per*2048}")
    t(f"s_lshr_b32 s{s+2}, s{sd}, 7"); t(f"s_sub_u32 s{s+2}, 3, s{s+2}"); t(f"s_and_b32 s{s+2}, s{s+2}, 7"); t(f"s_and_b32 s{s+3}, s{s+1}, 1"); t(f"s_lshl_b32 s{s+3}, s{s+3}, 3"); t(f"s_add_u32 s{s+2}, s{s+2}, s{s+3}")
    t(f"s_lshr_b32 s{s+1}, s{s+1}, 1"); t(f"s_and_b32 s{s+3}, s{sRB}, 14"); t(f"s_add_u32 s{s+1}, s{s+1}, s{s+3}")
    if SLABJ: t(f"s_add_u32 s{s+1}, s{s+1}, s{s+2}"); t(f"s_and_b32 s{s+1}, s{s+1}, 15")
    t(f"s_mul_i32 s{s+1}, s{s+1}, {WSTEP}"); t(f"s_add_u32 s{s}, s{s}, s{s+1}"); t(f"s_lshl_b32 s{s+2}, s{s+2}, 7"); t(f"s_add_u32 s{s}, s{s}, s{s+2}")
    t(f"v_lshlrev_b32 v{v}, 11, v{vLANE}")
    t(f"s_mov_b64 exec, {(1 << per) - 1}"); t(f"buffer_load_dword v{vDUM}, v{v}, {sr(sd)}, s{s} offen"); t("s_mov_b64 exec, -1")
def w_touch(a, t):
    if not WTOUCH: return
    s = sT[1]
    a(f"s_lshr_b32 s{s}, s2, 3"); a(f"s_lshl_b32 s{s}, s{s}, 2"); a(f"s_add_u32 s{s}, s{s}, s{sWID}"); a(f"s_sub_u32 s{s}, s{s}, 4"); a(f"s_mul_i32 s{s}, s{s}, {2*WTL*128}")
    a(f"s_and_b32 s{s+1}, s{sRB}, 14"); a(f"s_mul_i32 s{s+1}, s{s+1}, {WSTEP}"); a(f"s_add_u32 s{s}, s{s}, s{s+1}")
    a(f"v_lshlrev_b32 v{t}, 7, v{vLANE}"); a(f"v_add_u32 v{t}, s{s}, v{t}"); a(f"v_add_u32 v{t+1}, {WTL*128}, v{t}")
    for k in range(2): a(f"v_subrev_u32 v{t+2}, 6291456, v{t+k}"); a(f"v_min_u32 v{t+k}, v{t+k}, v{t+2}")
    a(f"s_mov_b32 exec_hi, {(1 << (WTL - 32)) - 1}")
    for k in range(2): a(f"buffer_load_dword v{vDUM}, v{t+k}, {sr(sW)}, 0 offen")
    a("s_mov_b64 exec, -1")

class VM:
    def __init__(self, a): self.a = a; self.q = []
    def add(self, tag, n=1): self.q += [tag] * n
    def wait(self, tag, extra=""):
        if tag not in self.q:
            if extra: self.a("s_waitcnt" + extra)
            return
        last = max(i for i, t in enumerate(self.q) if t == tag)
        n = len(self.q) - 1 - last
        assert n <= 63
        self.a(f"s_waitcnt vmcnt({n}){extra}")
        self.q = self.q[last + 1:]

S_, CF, CD, G_, TA = 24, 64, 96, 104, 56
def loader_pre(a):
    s = sT[1]
    a(f"s_lshl_b32 s{s}, s{sL}, 4"); a(f"s_add_u32 s{s}, s{s}, s{sJ}"); a(f"s_lshl_b32 s{s}, s{s}, 9"); a(f"s_add_u32 s{s}, s{s}, {CSFL}"); a(f"v_lshl_add_u32 v{TA+2}, v{vLANE}, 3, s{s}")
    a(f"v_lshlrev_b32 v{TA+4}, 2, v{vLANE}")
    a(f"s_sub_u32 s{s+4}, s{sWID}, 4"); tile_flag(a, TA + 5, SFL, 7, 0, s + 4, 15)
    a(f"v_subrev_u32 v{TA+6}, {SFL - XFL}, v{TA+5}")
    if SWARM:
        a(f"s_lshl_b32 s{s}, s{sRB}, 4"); a(f"s_add_u32 s{s}, s{s}, s{s+4}"); a(f"s_lshl_b32 s{s}, s{s}, 16"); a(f"s_lshl_b32 s{s+1}, s{sJ}, 12"); a(f"s_add_u32 s{s}, s{s}, s{s+1}")
        a(f"s_add_u32 s{s}, s{s}, {RGN + OF}"); a(f"s_add_u32 s44, s{pWS}, s{s}"); a(f"s_addc_u32 s45, s{pWS+1}, 0")
        a(f"s_lshl_b32 s{s}, s2, 2"); a(f"s_add_u32 s{s}, s{s}, s{s+4}"); a(f"s_lshl_b32 s{s}, s{s}, 11"); a(f"s_add_u32 s46, s{sWO}, s{s}"); a(f"s_addc_u32 s47, s{sWO+1}, 0")
    a(f"v_and_b32 v{TA}, 15, v{vLANE}"); a(f"v_lshlrev_b32 v{TA+1}, 4, v{TA}"); a(f"v_lshrrev_b32 v{TA+7}, 4, v{vLANE}"); a(f"v_lshl_add_u32 v{TA+1}, v{TA+7}, 10, v{TA+1}")
    a(f"s_lshl_b32 s{s}, s{s+4}, 7"); a(f"s_add_u32 s{s}, s{s}, {TAB}"); a(f"v_lshrrev_b32 v{TA+7}, 5, v{vLANE}"); a(f"v_lshl_add_u32 v{TA+7}, v{TA}, 1, v{TA+7}"); a(f"v_lshl_add_u32 v{TA+7}, v{TA+7}, 2, s{s}")
    a(f"s_mul_i32 s{s}, s{s+4}, 192"); a(f"s_add_u32 s{s}, s{s}, {TAB+1024}"); a(f"v_add_u32 v{TA+3}, s{s}, v{TA+4}")

def loader(a, cs):
    S, G = S_, G_
    s = sT[1]
    vm = VM(a)
    vm.add(("st", 1))
    items = [(46, i * 128, False) for i in range(16)] + [(44, i * 128, True) for i in range(32)]
    sw = [items[i:i + SWARM] for i in range(0, len(items), SWARM)] if SWARM else []
    assert len(sw) <= 13
    for n in range(17):
        if n:
            if n < 16: vm.wait(("st", n))
            else: a("s_waitcnt lgkmcnt(0)")
            a("s_barrier")
        if n == 16:
            if cs:
                a(f"v_mov_b32 v{vCS1}, v{vCS0}"); a(f"ds_read_b32 v{vCS0}, v{TA+3}")
            break
        if n <= 13:
            kstage(a, n + 2); dma_x(a, n + 2); vm.add(("st", n + 2), 4)
            if n: dma_w(a, n + 2); vm.add(("st", n + 2), 6)
        if cs and SWARM and n < len(sw):
            l = a.newlabel("Lsw")
            for pair, off, only0 in sw[n]:
                if only0 and l: a(f"s_cmp_lg_u32 s{sL}, 0"); a(f"s_cbranch_scc1 {l}"); lab, l = l, None
                a(f"s_load_dwordx2 s[98:99], s[{pair}:{pair+1}], {off + 60}")
            if l is None: a.label(lab)
        if HOT and n == WOHOT:
            a(f"s_lshr_b32 s{s}, s2, 3"); a(f"s_lshl_b32 s{s}, s{s}, 6"); a(f"s_sub_u32 s{s+1}, s{sWID}, 4"); a(f"s_lshl_b32 s{s+1}, s{s+1}, 4"); a(f"s_add_u32 s{s}, s{s}, s{s+1}")
            a(f"v_add_u32 v{S+20}, s{s}, v{vLANE}"); hot_line(a, S + 21, S + 20, sWO)
            a("s_mov_b64 exec, 0xffff"); a(f"buffer_load_dword v{vDUM}, v{S+21}, {sr(sWO)}, 0 offen"); a("s_mov_b64 exec, -1"); vm.add("hot")
        if HOT and n % 4 == 0 and n + HOTD + 1 <= 16:
            hot_issue(a, n + HOTD + 1, 4, S + 21); vm.add("hot")
        if n == 5:
            a(f"buffer_load_dwordx2 {vr(S,2)}, v{TA+5}, {sr(sWS)}, 0 offen sc1"); vm.add("XF")
        if n == 8:
            assert "XF" not in vm.q
            ok = a.newlabel("Lxok")
            if DIAG: a(f"s_mov_b32 s{sT[0]}, -1")
            a.flagtest(S, ok); a.poll(TA + 5, S, False); a.label(ok)
            if DIAG: a(f"s_add_u32 s{sT[0]}, s{sT[0]}, 1"); a(f"s_add_u32 m0, s{sL}, 4"); a(f"v_writelane_b32 v7, s{sT[0]}, m0")
            if cs:
                a(f"v_cmp_ne_u32 vcc, s{sN1}, v{S+1}"); a("s_cmp_eq_u64 vcc, 0"); a(f"s_cselect_b32 s{sFAST}, 1, 0")
                a(f"v_mov_b32 v{S+18}, s{sFAST}"); a(f"v_mov_b32 v{S+19}, {TAB+1792}"); a(f"ds_write_b32 v{S+19}, v{S+18}")
            a(f"s_sub_u32 s{s}, s{sWID}, 4"); a(f"s_lshl_b32 s{s+1}, s{sRB}, 2"); a(f"s_add_u32 s{s+1}, s{s}, s{s+1}"); a(f"s_lshl_b32 s{s+1}, s{s+1}, 12")
            for i in range(4): a(f"buffer_load_dwordx4 {vr(S+4*i,4)}, v{TA+1}, {sr(sWS)}, s{s+1} offen offset:{i*256} sc1")
            vm.add("stats", 4)
        if n == 12 and cs:
            a(f"buffer_load_dwordx2 {vr(S+16,2)}, v{TA+2}, {sr(sWS)}, 0 offen sc1"); vm.add("F")
        if n == 14:
            assert "stats" not in vm.q
            for i in range(4): a(f"v_pk_add_f32 {vr(S+2*i,2)}, {vr(S+2*i,2)}, {vr(S+8+2*i,2)}")
            for i in range(2): a(f"v_pk_add_f32 {vr(S+2*i,2)}, {vr(S+2*i,2)}, {vr(S+4+2*i,2)}")
            a(f"v_permlane32_swap_b32 v{S}, v{S+2}"); a(f"v_permlane32_swap_b32 v{S+1}, v{S+3}")
            a(f"v_pk_add_f32 {vr(S,2)}, {vr(S,2)}, {vr(S+2,2)}")
            a(f"v_mov_b32 v{S+2}, v{S}"); a(f"v_mov_b32 v{S+3}, v{S+1}")
            a(f"v_permlane16_swap_b32 v{S}, v{S+2}"); a(f"v_permlane16_swap_b32 v{S+1}, v{S+3}")
            a(f"v_pk_add_f32 {vr(S,2)}, {vr(S,2)}, {vr(S+2,2)}")
            a(f"v_mul_f32 v{S}, 0xba800000, v{S}"); a(f"v_mul_f32 v{S+1}, 0x3a800000, v{S+1}")
            a(f"v_fma_f32 v{S+1}, -v{S}, v{S}, v{S+1}"); a(f"v_max_f32 v{S+1}, 0, v{S+1}"); a(f"v_add_f32 v{S+1}, 0x3727c5ac, v{S+1}")
            a(f"v_rsq_f32 v{S+1}, v{S+1}"); a(f"v_mul_f32 v{S}, v{S}, v{S+1}")
            a(f"ds_write_b32 v{TA+7}, v{S+1}"); a(f"ds_write_b32 v{TA+7}, v{S} offset:512")
        if n == 13 and cs:
            vm.wait("F")
            ok = a.newlabel("Lcsok")
            if DIAG: a(f"s_mov_b32 s{sT[0]}, -1")
            a.flagtest(S + 16, ok); a.poll(TA + 2, S + 16, False); a.label(ok)
            if DIAG: a(f"s_add_u32 s{sT[0]}, s{sT[0]}, 1"); a(f"s_mov_b32 m0, s{sL}"); a(f"v_writelane_b32 v7, s{sT[0]}, m0")
            a(f"s_sub_u32 s{s}, s{sWID}, 4"); a(f"s_mul_i32 s{s}, s{s}, 192"); a(f"s_lshl_b32 s{s+1}, s{sL}, 4"); a(f"s_add_u32 s{s+1}, s{s+1}, s{sJ}"); a(f"s_mul_i32 s{s+1}, s{s+1}, {16*768}")
            a(f"s_add_u32 s{s}, s{s}, s{s+1}"); a(f"s_add_u32 s{s}, s{s}, {CSP}")
            a(f"v_lshrrev_b32 v{S+22}, 2, v{vLANE}"); a(f"v_mul_u32_u24 v{S+22}, 768, v{S+22}"); a(f"v_and_b32 v{S+23}, 3, v{vLANE}"); a(f"v_lshl_add_u32 v{S+22}, v{S+23}, 4, v{S+22}")
            for i in range(3): a(f"buffer_load_dwordx4 {vr(G+4*i,4)}, v{S+22}, {sr(sWS)}, s{s} offen offset:{i*64} sc1")
            vm.add("G", 3)
        if n == 15 and cs:
            vm.wait("G")
            for rot in (4, 8):
                for i in range(12): a(f"v_add_f32_dpp v{G+i}, v{G+i}, v{G+i} row_ror:{rot} row_mask:0xf bank_mask:0xf")
            for sw in ("16", "32"):
                for i in range(12): a(f"v_mov_b32 v{S+i}, v{G+i}")
                for i in range(12): a(f"v_permlane{sw}_swap_b32 v{G+i}, v{S+i}")
                for i in range(6): a(f"v_pk_add_f32 {vr(G+2*i,2)}, {vr(G+2*i,2)}, {vr(S+2*i,2)}")
            a(f"s_sub_u32 s{s}, s{sWID}, 4"); a(f"s_mul_i32 s{s}, s{s}, 192"); a(f"s_add_u32 s{s}, s{s}, {TAB+1024}"); a(f"v_and_b32 v{S}, 3, v{vLANE}"); a(f"v_lshl_add_u32 v{S}, v{S}, 4, s{s}")
            for i in range(3): a(f"ds_write_b128 v{S}, {vr(G+4*i,4)} offset:{i*64}")
        if n == 14 and not cs:
            for x in ["s_mov_b32 exec_hi, 0xffff", f"ds_write_b32 v{TA+3}, v{vCS1}", "s_mov_b64 exec, -1", f"v_mov_b32 v{vCS1}, v{vCS0}"]: a(x)

def wo_setup(a):
    s = sT[1]
    a(f"s_and_b32 s{s}, s{sWID}, 3"); a(f"s_lshl_b32 s{sWP}, s{s}, 10"); a(f"s_lshr_b32 s{sWH}, s{sWID}, 2")
    a(f"s_lshl_b32 s{sWQ}, s{sWH}, 12"); a(f"s_add_u32 s{sWQ}, s{sWQ}, s{sWP}")
    a(f"s_lshl_b32 s{sWR}, s{sJ}, {17 if G2OWN else 31}"); a(f"s_lshl_b32 s{sWR+1}, s{sWH}, 16"); a(f"s_add_u32 s{sWR+1}, s{sWR+1}, s{sWR}")
    a(f"s_lshl_b32 s{s}, s{s}, 14"); a(f"s_lshl_b32 s{s+1}, s{sJ}, 7")
    if FJO != 15: a(f"s_and_b32 s{s+1}, s{s+1}, {FJO << 7}")
    a(f"s_add_u32 s{s}, s{s}, s{s+1}")
    a(f"v_lshrrev_b32 v{vWO}, 3, v{vLANE}"); a(f"v_lshlrev_b32 v{vWO}, 11, v{vWO}"); a(f"v_add3_u32 v{vWO}, v{vWO}, v{vCH}, s{s}")
def wo_one(step, split=False):
    s = sT[10]
    return [f"s_add_u32 m0, s{sWQ if split else sWP}, {step*4096}", f"s_add_u32 s{s}, s{sWR+1 if split else sWR}, {step*65536}", f"s_and_b32 s{s}, s{s}, 0x1fffff",
            f"buffer_load_dwordx4 v{vWO}, {sr(sWO)}, s{s} offen lds"]
def wo_dma(a, steps):
    for st in steps:
        for x in wo_one(st): a(x)

ACC, FR = 24, 120
AX, AW, BX, BW = 236, 240, 242, 246
def acc(seg, tt): return ACC + (seg * 2 + tt) * 16
xfr = lambda p, tt: FR + p * 20 + tt * 4
wfr = lambda p, seg: FR + p * 20 + 8 + seg * 4
def c_reads(p, ks, segs):
    L = []
    def rx(tt): L.append(f"ds_read_b128 {vr(xfr(p,tt),4)}, v{AX+ks} offset:{tt*4096}")
    def rw(seg):
        for hf in range(2): L.append(f"ds_read_b64_tr_b16 {vr(wfr(p,seg)+2*hf,2)}, v{AW+hf} offset:{ks*6144 + seg*1024}")
    rx(0); rw(segs[0]); rx(1)
    for g in segs[1:]: rw(g)
    return L
def c_step(a, p, segs, nxt, bar=False, extra=(), place=None, init=False):
    order = [(g, tt) for g in segs for tt in range(2)]
    have = 2 + 2 * len(segs)
    need = [3, 4] + [4 + 2 * (1 + (m - 2) // 2) for m in range(2, len(order))]
    if place is None: place = [2] * len(order)
    issued = 0; extra = list(extra)
    bm = min(BARM, len(order) - 1) if bar and bar != "top" else 0
    if bar and bm:
        nr = -(-len(nxt) // (len(order) - bm)); place = [0] * bm + [nr] * (len(order) - bm)
        extra = [[] for _ in range(bm)] + [extra[0]] + [sum(extra[1:], [])] if extra else []
    for m, (seg, tt) in enumerate(order):
        if bar and m >= bm:
            if m == bm: a("s_waitcnt lgkmcnt(0)"); a("s_barrier")
        elif m == 0 or need[m] != need[m-1]: a(f"s_waitcnt lgkmcnt({min(15, have - need[m] + issued)})")
        X, W = vr(xfr(p,tt),4), vr(wfr(p,seg),4)
        A, B = (W, X) if seg < 2 else (X, W)
        a(f"v_mfma_f32_32x32x16_bf16 {vr(acc(seg,tt),16)}, {A}, {B}, {'0' if init else vr(acc(seg,tt),16)}")
        for x in (extra[m] if m < len(extra) else ()): a(x)
        k = place[m] if m + 1 < len(order) else len(nxt)
        for r in nxt[issued:issued + k]: a(r)
        issued = min(len(nxt), issued + k)
def rebase(n):
    xs, ws = (f"s{sSLOT}", f"s{sWOF}") if n is None else (XB[n % 3], WB[n % 3])
    ax = lambda k: f"v_add_u32 v{AX+k}, {xs}, v{BX+k}"
    aw = lambda k: f"v_add_u32 v{AW+k}, {ws}, v{BW+k}"
    return [[ax(0), aw(0), aw(1)], [], [], [ax(1)]], [[], [ax(2)], [], [ax(3)]]
def warm(a, what, lo, cnt, v):
    s = sT[1]
    if what in ("o", "x"):
        a(f"s_lshl_b32 s{s+1}, s{sRB}, {4 if what == 'o' else 2}"); a(f"s_add_u32 s{s}, s{sWID}, s{s+1}"); a(f"s_lshl_b32 s{s}, s{s}, 16")
        a(f"s_lshl_b32 s{s+1}, s{sJ}, 12"); a(f"s_add_u32 s{s}, s{s}, s{s+1}"); a(f"s_add_u32 s{s}, s{s}, {lo*128 + (RGN + OF if what == 'o' else 0)}")
        assert XOUT
    else:
        p, size, per = {"wo": (sWO, 2097152, 16), "woa": (pWOA, 2097152, 16), "wb": (pWB, 6291456, 48), "wob": (pWOB, 2097152, 16)}[what]
        srd(a, 40, p, size)
        a(f"s_lshl_b32 s{s}, s2, 2"); a(f"s_add_u32 s{s}, s{s}, s{sWID}"); a(f"s_mul_i32 s{s}, s{s}, {per*128}"); a(f"s_add_u32 s{s}, s{s}, {lo*128}")
    if what in ("o", "x") and PREW:
        for k in range(cnt // 8): a(f"buffer_store_dwordx4 {vr(XRES,4)}, v{vL16}, {sr({'o': sWS, 'x': sIO}[what])}, s{s} offen offset:{k*1024} sc1")
        return
    a(f"v_lshlrev_b32 v{v}, 7, v{vLANE}")
    a(f"s_mov_b32 exec_lo, {min(0xffffffff, (1 << cnt) - 1)}"); a(f"s_mov_b32 exec_hi, {(1 << max(0, cnt - 32)) - 1}")
    a(f"buffer_load_dword v{vDUM}, v{v}, {sr({'o': sWS, 'x': sIO}.get(what, 40))}, s{s} offen"); a("s_mov_b64 exec, -1")
SLAB = 96 * 1024
HS, HA, HW, HF, HD, HR = 170, 174, 176, 182, 184, 192
sH, sHO, sHS = 79, 38, 34
def slab_setup(a, base, w0):
    s = sT[1]; sw = sT[7]
    a(f"s_sub_u32 s{sw}, s{sWID}, {w0}")
    if SLABJ: a(f"s_add_u32 s{s}, s{sROT}, s{sRB}"); a(f"s_and_b32 s{s}, s{s}, 15"); a(f"s_mul_i32 s{sHO}, s{s}, {WSTEP}")
    else: a(f"s_mul_i32 s{sHO}, s{sRB}, {WSTEP}"); assert RM0 == 0
    a(f"v_lshrrev_b32 v{HW}, 3, v{vLANE}"); a(f"v_mul_u32_u24 v{HW}, 6144, v{HW}"); a(f"v_add_u32 v{HW}, v{HW}, v{vCH}")
    a(f"s_mul_i32 s{s+1}, s{sw}, {16*6144}"); a(f"s_lshl_b32 s{s+2}, s{sJ}, 7"); a(f"s_add_u32 s{s+1}, s{s+1}, s{s+2}"); a(f"v_add_u32 v{HW}, s{s+1}, v{HW}")
    for k in range(1, 6): a(f"v_add_u32 v{HW+k}, {(k//3)*8*6144 + (k%3)*1024}, v{HW}")
    sel_const(a, HS, HR)
    a(f"s_mov_b32 s{s}, s{sw}"); a(f"s_add_u32 s{s+1}, s{s}, 4"); a(f"s_cmp_lt_u32 s{s}, 2"); a(f"s_cselect_b32 s{s+1}, s{s+1}, s{s}")
    for c in range(2):
        a(f"s_and_b32 s{s+2}, s{s+c}, 1"); a(f"s_lshl_b32 s{s+2}, s{s+2}, 6"); a(f"v_xor_b32 v{HA+c}, s{s+2}, v{vTR}")
        a(f"s_lshr_b32 s{s+2}, s{s+c}, 1"); a(f"s_lshl_b32 s{s+2}, s{s+2}, 10"); a(f"s_add_u32 s{s+2}, s{s+2}, {base}"); a(f"v_add_u32 v{HA+c}, s{s+2}, v{HA+c}")
    a(f"s_lshl_b32 s{s+2}, s{sL}, 8"); a(f"s_lshl_b32 s{s+3}, s{sJ}, 4"); a(f"s_add_u32 s{s+2}, s{s+2}, s{s+3}"); a(f"s_add_u32 s{s+2}, s{s+2}, s{sRB}")
    a(f"s_lshl_b32 s{s+3}, s{s+2}, 2"); a(f"s_add_u32 s{s+3}, s{s+3}, s{sw}"); a(f"s_lshl_b32 s{s+3}, s{s+3}, 3"); a(f"s_add_u32 s{s+3}, s{s+3}, {CSFL}"); a(f"v_mov_b32 v{HF}, s{s+3}")
    a(f"s_mul_i32 s{s+2}, s{s+2}, 768"); a(f"s_add_u32 s{s+2}, s{s+2}, {CSP}")
    for c in range(2): a(f"s_lshl_b32 s{sHS+c}, s{s+c}, 7"); a(f"s_add_u32 s{sHS+c}, s{sHS+c}, s{s+2}")
    a(f"v_lshlrev_b32 v{HF+1}, 2, v{vLANE}")
def slab_dma(a, base, w0):
    s = sT[1]
    a(f"s_sub_u32 s{s}, s{sWID}, {w0}"); a(f"s_mul_i32 s{s}, s{s}, 6144")
    for i in range(2):
        a(f"s_add_u32 m0, s{s}, {base + i*3072}")
        for seg in range(3): a(f"buffer_load_dwordx4 v{HW+i*3+seg}, {sr(sW)}, s{sHO} offen offset:{seg*1024} lds")
def slab_sums(a):
    for ks in range(4):
        for c in range(2):
            for hf in range(2): a(f"ds_read_b64_tr_b16 {vr(HR+16*c+4*ks+2*hf,2)}, v{HA+c} offset:{(2*ks+hf)*3072}")
    for ks in range(4):
        a(f"s_waitcnt lgkmcnt({12 - 4*ks})")
        for c in range(2): mfma16(a, HD + 4 * c, HS, HR + 16 * c + 4 * ks, "0" if ks == 0 else HD + 4 * c)
    a("s_mov_b32 exec_hi, 0")
    for c in range(2): a(f"buffer_store_dword v{HD+4*c}, v{HF+1}, {sr(sWS)}, s{sHS+c} offen sc1")
    a("s_mov_b64 exec, -1")
def slab_hooks(a):
    s = sT[1]
    L = [a.newlabel("Lsl") for _ in range(4)]
    a(f"s_sub_u32 s{s}, s{sCNT}, s{sH}")
    a(f"s_cmp_lg_u32 s{s}, 0"); a(f"s_cbranch_scc1 {L[0]}")
    slab_dma(a, SLAB, 0); a("s_branch L_cloop")
    a.label(L[0]); a(f"s_cmp_lg_u32 s{s}, 2"); a(f"s_cbranch_scc1 {L[1]}")
    a("s_waitcnt vmcnt(0)"); a("s_branch L_cloop")
    a.label(L[1]); a(f"s_cmp_lg_u32 s{s}, 3"); a(f"s_cbranch_scc1 {L[2]}")
    slab_sums(a); a("s_branch L_cloop")
    a.label(L[2])
    a("s_waitcnt vmcnt(0)"); a.post(HF, HD, True)
    for w in ([] if SWARM else WARM): warm(a, *w, HD + 2)
    a(f"s_cmp_lg_u32 s{sWID}, 1"); a("s_cbranch_scc1 L_cloop")
    srd(a, 40, pDBG, 256)
    a("v_mov_b32 v160, 0"); a("v_mov_b32 v161, 1"); a("s_mov_b64 exec, 1"); a(f"buffer_atomic_add v161, v160, {sr(40)}, 0 offen"); a("s_mov_b64 exec, -1")
    a("s_branch L_cloop")
def c_setup(a, first, zero=True):
    s = sT[1]
    a(f"s_lshr_b32 s{s}, s{sWID}, 1"); a(f"s_lshl_b32 s{s}, s{s}, 13"); a(f"s_and_b32 s{s+1}, s{sWID}, 1"); a(f"s_lshl_b32 s{s+1}, s{s+1}, 6")
    a(f"v_xor_b32 v{BW}, s{s+1}, v{vTR}")
    if first:
        a(f"v_and_b32 v{BX}, 31, v{vLANE}"); a(f"v_bfe_u32 v{BX+1}, v{vLANE}, 1, 3"); a(f"v_lshrrev_b32 v{BX+2}, 5, v{vLANE}"); a(f"v_xor_b32 v{BX+1}, v{BX+1}, v{BX+2}")
        a(f"v_lshlrev_b32 v{BX}, 7, v{BX}"); a(f"v_lshlrev_b32 v{BX+1}, 4, v{BX+1}"); a(f"v_add3_u32 v{BX}, v{BX}, v{BX+1}, s{s}")
        a(f"v_mul_u32_u24 v{BX+2}, {3072 - 512}, v{BX+2}"); a(f"v_add_u32 v{BW}, v{BW}, v{BX+2}"); a(f"v_add_u32 v{BW+1}, 512, v{BW}")
        for k in range(1, 4): a(f"v_xor_b32 v{BX+k}, {32*k}, v{BX}")
    else:
        a(f"v_add_u32 v{BX}, s{s}, v{vL16}"); a(f"v_add_u32 v{BW+1}, 3072, v{BW}")
        for k in range(1, 4): a(f"v_add_u32 v{BX+k}, {1024*k}, v{BX}")
    T0, T1, T2, MD = 250, 251, 252, 253
    for x in [f"s_lshr_b32 s{s}, s{sWID}, 1", f"s_lshl_b32 s{s}, s{s}, 8", f"s_add_u32 s{s}, s{s}, {TAB}",
          f"v_and_b32 v{T0}, 31, v{vLANE}", f"v_lshrrev_b32 v{T1}, 5, v{vLANE}", f"v_lshlrev_b32 v{T1}, 4, v{T1}",
          f"s_and_b32 s{s+1}, s{sWID}, 1", f"s_lshl_b32 s{s+1}, s{s+1}, 7", f"s_add_u32 s{s+1}, s{s+1}, {TAB+1024}",
          f"v_lshl_add_u32 v{T2}, v{T0}, 2, s{s+1}", f"v_lshl_add_u32 v{T0}, v{T0}, 2, s{s}",
          f"v_add_u32 v{MI}, s{s+1}, v{T1}", f"v_add_u32 v{MI+1}, s{s}, v{T1}", f"v_mov_b32 v{MD}, {TAB+1792}"]: a(x)
    a(f"s_mov_b32 s{sMX}, 0")
    a(f"s_mov_b32 s{sCNT}, 0"); a(f"s_mov_b32 s{sSLOT}, {XB[0]}"); a(f"s_mov_b32 s{sWOF}, {WB[0]}")
    for k in range(4): a(f"v_add_u32 v{AX+k}, {XB[0]}, v{BX+k}")
    for k in range(2): a(f"v_add_u32 v{AW+k}, {WB[0]}, v{BW+k}")
    if zero:
        for r in range(ACC, ACC + 96): a(f"v_mov_b32 v{r}, 0")
def c_own_entry(a):
    x_stats(a, 160)
    a("s_waitcnt vmcnt(0)"); a.post(166, 168, False); a(f"v_add_u32 v166, {SFL - XFL}, v166")
    stats_store(a, "", 160)
    for r in range(ACC, ACC + 96): a(f"v_mov_b32 v{r}, 0")
    a("s_waitcnt vmcnt(0) lgkmcnt(0)"); a.post(166, 168, False)
    a("s_branch L_cgo")
def consumer(a):
    s = sT[1]
    ALL, KVs, Qs = (0, 1, 2), (1, 2), (0,)
    P6 = [2, 2, 2, 2, 0, 0]
    a("s_barrier")
    a.stamp("c_g1start")
    if a.stamps and TRACE: a("s_memrealtime s[92:93]" if RT else "s_memtime s[92:93]")
    for r in c_reads(0, 0, ALL): a(r)
    r1, r2 = rebase(None)
    a.label("L_cloop")
    nslot = [f"s_add_u32 s{sSLOT}, s{sSLOT}, 16384", f"s_cmp_gt_u32 s{sSLOT}, {XB[2]}", f"s_cselect_b32 s{sSLOT}, {XB[0]}, s{sSLOT}"]
    nw = [[f"s_add_u32 s{sWOF}, s{sWOF}, 24576", f"s_cmp_eq_u32 s{sWOF}, {WB[2] + 24576}", f"s_cselect_b32 s{sWOF}, {WB[0]}, s{sWOF}"],
          [f"s_cmp_eq_u32 s{sWOF}, {WB[0] + 24576}", f"s_cselect_b32 s{sWOF}, {WB[1]}, s{sWOF}"]]
    c_step(a, 0, ALL, c_reads(1, 1, ALL), place=P6, extra=r2 + [nslot])
    c_step(a, 1, ALL, c_reads(0, 2, ALL), place=P6, extra=[[], [], [], []] + nw); c_step(a, 0, ALL, c_reads(1, 3, ALL), place=P6)
    a(f"s_cmp_eq_u32 s{sCNT}, 12"); a("s_cbranch_scc1 L_ctail")
    c_step(a, 1, ALL, c_reads(0, 0, ALL), bar=True, place=P6, extra=r1)
    def trace(idx):
        if not (a.stamps and TRACE): return
        a(f"s_sub_u32 s68, s92, s{80 if RT else sT0}"); a("s_memrealtime s[92:93]" if RT else "s_memtime s[92:93]")
        a(f"s_lshl_b32 s69, s{sL}, 4"); a(f"s_add_u32 m0, s69, {idx}"); a("v_writelane_b32 v7, s68, m0")
    trace(f"s{sCNT}")
    a(f"s_add_u32 s{sCNT}, s{sCNT}, 1")
    a(f"s_bitcmp1_b32 s{sMX}, s{sCNT}"); a("s_cbranch_scc0 L_cloop")
    slab_hooks(a)
    a.label("L_ctail")
    CQ, CK, VA, QAB = 170, 186, 202, 160
    AB, CV, T0, T1, T2, MD, TM = 164, 168, 250, 251, 252, 253, 120
    r1, r2 = rebase(13)
    c_step(a, 1, ALL, c_reads(0, 0, KVs), bar=True, place=P6, extra=r1)
    trace(12)
    vtab = lambda tt: [f"ds_read_b128 {vr(VA+ab*16+4*g,4)}, v{MI+1} offset:{ab*512 + tt*128 + g*32}" for g in range(4) for ab in range(2)]
    tr = []
    for tt in range(2):
        tr.append(f"ds_read_b32 v{AB+2*tt}, v{T0} offset:{tt*128}"); tr.append(f"ds_read_b32 v{AB+2*tt+1}, v{T0} offset:{512+tt*128}")
    for g in range(4): tr.append(f"ds_read_b128 {vr(CK+4*g,4)}, v{MI} offset:{256+g*32}")
    tr.append(f"ds_read_b32 v{CV}, v{T2} offset:512"); tr.append(f"ds_read_b32 v{MD}, v{MD}")
    tr += vtab(1)
    for g in range(4): tr.append(f"ds_read_b128 {vr(CQ+4*g,4)}, v{MI} offset:{g*32}")
    for n in (13, 14, 15):
        c_step(a, 0, KVs, c_reads(1, 1, KVs), extra=r2); c_step(a, 1, KVs, c_reads(0, 2, KVs)); c_step(a, 0, KVs, c_reads(1, 3, KVs))
        r1, r2 = rebase(n + 1 if n < 15 else 13)
        if n < 15: c_step(a, 1, KVs, c_reads(0, 0, KVs), bar="top" if BARM > 1 else True, extra=r1)
        else: c_step(a, 1, KVs, tr, bar="top", place=[6, 6, 5, 5], extra=r1)
        trace(n)
    a.stamp("c_g1kv")
    a(f"s_lshr_b32 s{s}, s{sWID}, 1"); a(f"s_lshl_b32 s{s}, s{s}, 14"); a(f"s_and_b32 s{s+1}, s{sWID}, 1"); a(f"s_lshl_b32 s{s+1}, s{s+1}, 12"); a(f"s_add_u32 s{s}, s{s}, s{s+1}")
    a(f"s_add_u32 s{sSLOT}, s{s}, s{sOWN}")
    a(f"s_lshl_b32 s{s+1}, s{sJ}, s{sKSH}"); a(f"s_add_u32 s{s}, s{s}, s{s+1}"); a(f"s_lshl_b32 s{s+1}, s{sRB}, 20"); a(f"s_add_u32 s{s}, s{s}, s{s+1}")
    a(f"s_add_u32 s{s}, s{s}, s{sLK}"); a(f"s_add_u32 s{s+1}, s{s}, 8192")
    a(f"s_and_b32 s{s+2}, s{sL}, 1"); a(f"s_lshl_b32 s{s+2}, s{s+2}, 30"); a(f"v_add_u32 v{T0}, s{s+2}, v{vL16}")
    a(f"s_cmp_ge_u32 s{sWID}, 2"); a(f"s_cselect_b32 s{s+2}, 0, s{s+2}"); a(f"v_add_u32 v{T1}, s{s+2}, v{vL16}")
    for x in r2[1] + r2[3]: a(x)
    a("s_waitcnt lgkmcnt(0)")
    l = a.newlabel("Lmd"); a(f"s_cmp_ge_u32 s{sL}, 2"); a(f"s_cbranch_scc1 {l}"); a(f"v_readfirstlane_b32 s{sFAST}, v{MD}"); a.label(l)
    def qk(seg, tt, ab, cs):
        r = acc(seg, tt)
        for p in range(8):
            t = TM + 2 * (p % 4)
            a(f"v_pk_mul_f32 {vr(t,2)}, {vr(cs+2*p,2)}, {vr(ab,2)} op_sel:[0,1] op_sel_hi:[1,1]")
            a(f"v_pk_fma_f32 {vr(t,2)}, {vr(r+2*p,2)}, {vr(ab,2)}, {vr(t,2)} op_sel_hi:[1,0,1]")
            a(f"v_cvt_pk_bf16_f32 v{r+p}, v{t}, v{t+1}")
    def vv(tt):
        r = acc(2, tt)
        for p in range(8):
            t = TM + 2 * (p % 4)
            a(f"v_pk_mul_f32 {vr(t,2)}, {vr(VA+16+2*p,2)}, {vr(CV,2)} op_sel_hi:[1,0]")
            a(f"v_pk_fma_f32 {vr(t,2)}, {vr(r+2*p,2)}, {vr(VA+2*p,2)}, {vr(t,2)}")
            a(f"v_cvt_pk_bf16_f32 v{r+p}, v{t}, v{t+1}")
    def out(seg, tt):
        for f in range(2): a(f"buffer_store_dwordx4 {vr(acc(seg,tt)+4*f,4)}, v{T1 if tt else T0}, {sr(sWS)}, s{s+tt} offen offset:{(seg - 1) * 2048 + f * 1024} sc1")
    qk(1, 1, AB + 2, CK); out(1, 1)
    vv(1)
    for x in vtab(0): a(x)
    out(2, 1)
    qk(1, 0, AB, CK); out(1, 0)
    a("s_waitcnt lgkmcnt(0)")
    qb = lambda i: FR + 12 * ((i + 1) % 3)
    def qrd(i):
        b, ks = qb(i), i % 4
        return [f"ds_read_b128 {vr(b,4)}, v{AX+ks}", f"ds_read_b64_tr_b16 {vr(b+8,2)}, v{AW} offset:{ks*6144}", f"ds_read_b64_tr_b16 {vr(b+10,2)}, v{AW+1} offset:{ks*6144}",
                f"ds_read_b128 {vr(b+4,4)}, v{AX+ks} offset:4096"]
    for x in qrd(0) + qrd(1): a(x)
    vv(0); out(2, 0)
    a.stamp("c_g1epi")
    kv_flag(a, T2, 0, 0)
    a(f"s_mov_b32 s{s+2}, {QSCALE}")
    for k in range(4): a(f"v_mul_f32 v{QAB+k}, s{s+2}, v{AB+k}")
    a(f"v_add_u32 v{T0}, s{sSLOT}, v{vL16}")
    a(f"s_xor_b32 s{s+1}, s{sWID}, 2"); a(f"s_lshl_b32 s{s+1}, s{s+1}, 10"); a(f"s_add_u32 s{s+1}, s{s+1}, {QOFF}"); a(f"v_add_u32 v{T1}, s{s+1}, v{vL16}")
    for i in range(12):
        b = qb(i); R = qrd(i + 2) if i + 2 < 12 else []
        if i == QPOST: a("s_waitcnt vmcnt(0)"); a.post(T2, MI + 6, True); a.stamp("c_g1post")
        a(f"s_waitcnt lgkmcnt({4 if i < 11 else 0})")
        if i == 11: a("s_barrier")
        mfma32(a, acc(0, 0), b + 8, b, acc(0, 0))
        if (i + 2) % 4 == 0 and R:
            r1, r2 = rebase(13 + (i + 2) // 4)
            for x in r1[0]: a(x)
        for x in R[:2]: a(x)
        mfma32(a, acc(0, 1), b + 8, b + 4, acc(0, 1))
        for x in R[2:]: a(x)
        if (i + 2) % 4 == 0 and R:
            for x in r1[3] + r2[1] + r2[3]: a(x)
    TM = 140
    for seg in (1, 2):
        for tt in range(2):
            for f in range(2): a(f"ds_write_b128 v{T0}, {vr(acc(seg,tt)+4*f,4)} offset:{tt*8192 + (seg - 1) * 2048 + f * 1024}")
    a.stamp("c_g1end")
    qk(0, 1, QAB + 2, CQ)
    for f in range(2): a(f"ds_write_b128 v{T1}, {vr(acc(0,1)+4*f,4)} offset:{f*4096}")
    qk(0, 0, QAB, CQ)

Q, S0, KF, BD, BO, NM, SEL, OA, LS, MI = 24, 32, 176, 184, 200, 216, 224, 228, 244, 248
def att_common(a):
    s = sT[1]
    a(f"s_bfe_u32 s{s}, s{sWID}, 0x10001"); a(f"s_xor_b32 s{s}, s{s}, s{sWH}"); a(f"s_lshl_b32 s{s}, s{s}, 1"); a(f"s_add_u32 s{sCNT}, s{s}, s{sWH}")
    a(f"s_lshl_b32 s{s}, s{sCNT}, 13"); a(f"s_and_b32 s{s+1}, s{sWID}, 1"); a(f"s_lshl_b32 s{s+2}, s{s+1}, 12"); a(f"s_add_u32 s{sSLOT}, s{s}, s{s+2}")
    a(f"s_lshl_b32 s{s}, s{sRB}, 4"); a(f"s_add_u32 s{s}, s{s}, s{sCNT}"); a(f"s_lshl_b32 s{s}, s{s}, 16"); a(f"s_lshl_b32 s{s+2}, s{sJ}, 12"); a(f"s_add_u32 s{s}, s{s}, s{s+2}")
    a(f"s_lshl_b32 s{s+1}, s{s+1}, 11"); a(f"s_add_u32 s{s}, s{s}, s{s+1}"); a(f"s_add_u32 s{sXO}, s{s}, {RGN + OF}")
    sel_const(a, SEL, MI + 2)
    a(f"v_and_b32 v{MI+2}, 31, v{vLANE}"); a(f"v_lshrrev_b32 v{MI+3}, 5, v{vLANE}"); a(f"v_lshlrev_b32 v{MI+3}, 2, v{MI+3}"); a(f"v_sub_u32 v{MI+2}, v{MI+2}, v{MI+3}")
def kv_flag(a, v, back, lanes):
    s = sT[1]
    a(f"s_lshl_b32 s{s}, s{sJ}, 4"); a(f"s_add_u32 s{s}, s{s}, s{sRB}")
    if back: a(f"s_sub_u32 s{s}, s{s}, {back}")
    a(f"s_lshl_b32 s{s+4}, s{s}, 7"); a(f"s_lshl_b32 s{s+1}, s{sL}, 15"); a(f"s_add_u32 s{s+4}, s{s+4}, s{s+1}"); a(f"s_add_u32 s{s+4}, s{s+4}, {KVFL}")
    if lanes == "all4": a(f"v_and_b32 v{v}, 3, v{vLANE}"); a(f"v_lshl_add_u32 v{v}, v{v}, 3, s{s+4}")
    else:
        a(f"s_lshl_b32 s{s+1}, s{sWID}, 3"); a(f"s_add_u32 s{s+4}, s{s+4}, s{s+1}")
        if lanes: a(f"s_add_u32 s{s+4}, s{s+4}, {lanes*8}")
        a(f"v_mov_b32 v{v}, s{s+4}")
    a(f"s_and_b32 s{s}, s{s}, 15"); a(f"s_lshl_b32 s{s}, s{s}, 20"); a(f"s_lshl_b32 s{s+1}, s{sJ}, s{sKSH}"); a(f"s_add_u32 s{s}, s{s}, s{s+1}"); a(f"s_add_u32 s{s}, s{s}, s{sLK}")
def masks_A(a):
    s = sT[1]
    a(f"s_mov_b32 s{s}, 0xffff")
    for r in range(16):
        kk = 8 * (r >> 2) + (r & 3)
        a(f"v_subrev_u32 v{BO+r}, {kk}, v{MI+2}"); a(f"v_ashrrev_i32 v{BO+r}, 31, v{BO+r}")
    for r in range(16): a(f"v_and_b32 v{BD+r}, {BIG}, v{BO+r}"); a(f"v_xor_b32 v{BO+r}, {BIG}, v{BD+r}")
def masks_B(a):
    s = sT[1]
    a(f"s_mov_b32 s{s}, 0xffff")
    def bias(d, off):
        a(f"v_add_u32 v{d}, {off & 0xffffffff if off < -16 else off}, v{MI+2}"); a(f"v_and_b32 v{d}, 0xfffffff1, v{d}"); a(f"v_min_u32 v{d}, 1, v{d}")
        a(f"v_lshlrev_b32 v{d}, 31, v{d}"); a(f"v_ashrrev_i32 v{d}, 3, v{d}")
    for r in range(16):
        kk = 8 * (r >> 2) + (r & 3)
        bias(BD + r, -kk)
        if r >= 8: bias(BO + r, 32 - kk)
        else: a(f"v_mov_b32 v{BO+r}, {BIG}")
    for p in range(4, 8):
        a(f"v_ashrrev_i32 v{MI+4}, 31, v{BO+2*p}"); a(f"v_ashrrev_i32 v{MI+5}, 31, v{BO+2*p+1}")
        a(f"v_bfi_b32 v{NM+p}, s{s}, v{MI+4}, v{MI+5}"); a(f"v_not_b32 v{NM+p}, v{NM+p}")
def rowmax_finish(a, m, t):
    a(f"v_mov_b32 v{t}, v{m}"); a(f"v_permlane32_swap_b32 v{m}, v{t}"); a(f"v_max_f32 v{m}, v{m}, v{t}")
    a(f"v_sub_f32 v{m}, 0, v{m}")
def exp_tile(a, r, m, n=8):
    for p in range(n):
        a(f"v_pk_add_f32 {vr(r+2*p,2)}, {vr(r+2*p,2)}, {vr(m,2)} op_sel_hi:[1,0]")
    for p in range(n):
        a(f"v_exp_f32 v{r+2*p}, v{r+2*p}"); a(f"v_exp_f32 v{r+2*p+1}, v{r+2*p+1}")
        if p: a(f"v_cvt_pk_bf16_f32 v{r+p-1}, v{r+2*p-2}, v{r+2*p-1}")
    a(f"v_cvt_pk_bf16_f32 v{r+n-1}, v{r+2*n-2}, v{r+2*n-1}")
def att_finish(a):
    a(f"v_rcp_f32 v{MI+2}, v{LS}")
    for p in range(8): a(f"v_pk_mul_f32 {vr(OA+2*p,2)}, {vr(OA+2*p,2)}, {vr(MI+2,2)} op_sel_hi:[1,0]")
    for p in range(8): a(f"v_cvt_pk_bf16_f32 v{OA+p}, v{OA+2*p}, v{OA+2*p+1}")
    if WT0 & 1: a.stores([f"buffer_store_dwordx4 {vr(OA+4*f,4)}, v{vL16}, {sr(sWS)}, s{sXO} offen offset:{f*1024}" for f in range(2)])
    else:
        for f in range(2): a(f"buffer_store_dwordx4 {vr(OA+4*f,4)}, v{vL16}, {sr(sWS)}, s{sXO} offen offset:{f*1024}{STF}")
    a(f"s_lshl_b32 s{sT[5]}, s{sJ}, 1"); a(f"s_and_b32 s{sT[6]}, s{sWID}, 1"); a(f"s_add_u32 s{sT[5]}, s{sT[5]}, s{sT[6]}")
    tile_flag(a, MI, OFL, 8, 0, sCNT, f"s{sT[5]}")

def attention_A_exact(a):
    St = lambda u: S0 + 16 * u
    s = sT[1]; M = MI + 4
    a(f"s_lshl_b32 s{s+2}, s{sRB}, 2"); a(f"s_add_u32 s{s+2}, s{s+2}, s{sCNT}")
    a(f"s_lshl_b32 s{s}, s{sJ}, 15"); a(f"s_add_u32 s{s}, s{s}, s{sLK}"); a(f"s_and_b32 s{s+1}, s{sWID}, 1"); a(f"s_lshl_b32 s{s+1}, s{s+1}, 12")
    a(f"s_add_u32 s{s}, s{s}, s{s+1}"); a(f"v_add_u32 v{MI}, s{s}, v{vL16}")
    def ld(dst, u, f):
        a(f"s_add_i32 s{s}, s{s+2}, {u-8}"); a(f"s_max_i32 s{s}, s{s}, 0")
        a(f"s_lshr_b32 s{s+1}, s{s}, 2"); a(f"s_lshl_b32 s{s+1}, s{s+1}, 20"); a(f"s_and_b32 s{s}, s{s}, 3"); a(f"s_lshl_b32 s{s}, s{s}, 13"); a(f"s_add_u32 s{s}, s{s}, s{s+1}")
        for k in range(2): a(f"buffer_load_dwordx4 {vr(dst+4*k,4)}, v{MI}, {sr(sWS)}, s{s} offen offset:{(f+k)*1024} sc1")
    for u in range(9):
        ld(KF, u, 0); a("s_waitcnt vmcnt(0)")
        mfma32(a, St(u), KF, Q, BD if u == 8 else BO if u == 0 else "0"); mfma32(a, St(u), KF + 4, Q + 4, St(u))
        a("s_nop 7")
    fx = a.newlabel("Lfix")
    for u in range(8):
        a(f"s_cmp_ge_u32 s{s+2}, {8-u}"); a(f"s_cbranch_scc1 {fx}")
        for r in range(16): a(f"v_mov_b32 v{St(u)+r}, {BIG}")
    a.label(fx)
    a(f"v_max_f32 v{M}, v{St(0)}, v{St(0)+1}")
    for k in range(2, 144, 2): a(f"v_max3_f32 v{M}, v{M}, v{S0+k}, v{S0+k+1}")
    rowmax_finish(a, M, M + 1)
    for u in range(9):
        ld(KF, u, 2)
        exp_tile(a, St(u), M)
        a("s_waitcnt vmcnt(0)")
        mfma32(a, OA, KF, St(u), OA if u else "0"); mfma16(a, LS, SEL, St(u), LS if u else "0"); mfma32(a, OA, KF + 4, St(u) + 4, OA); mfma16(a, LS, SEL, St(u) + 4, LS)
        a("s_nop 7")

def fetch(a, back, base, attempt=False):
    s = sT[1]
    nf = a.newlabel("Lnofetch")
    if attempt: a(f"s_mov_b32 s{sMX}, 0")
    a(f"s_cmp_lt_u32 s{sRB}, {back}"); a(f"s_cbranch_scc1 {nf}")
    kv_flag(a, MI, back, "all4")
    a(f"s_andn2_b32 s{s+1}, 1, s{sWID}"); a(f"s_lshl_b32 s{s+1}, s{s+1}, 13")
    a(f"s_add_u32 s{s}, s{s}, s{s+1}"); a(f"v_add_u32 v{MI+1}, s{s}, v{vL16}")
    if attempt:
        ok = a.newlabel("Ltry")
        a(f"buffer_load_dwordx2 {vr(MI+4,2)}, v{MI}, {sr(sWS)}, 0 offen sc1"); a("s_waitcnt vmcnt(0)")
        a.flagtest(MI + 4, ok); a(f"s_branch {nf}"); a.label(ok)
        a(f"s_mov_b32 s{sMX}, 1")
    else: a.poll2(MI, 112, 116)
    for o in (20480, 16384, 4096, 0):
        a(f"s_add_u32 m0, s{s+1}, {base + o}"); a(f"s_mov_b32 s{s}, {o}")
        for k in range(4): a(f"buffer_load_dwordx4 v{MI+1}, {sr(sWS)}, s{s} offen offset:{k*1024} sc1 lds")
    a.label(nf)

def attention_A(a):
    SB_, PB, KB, VB = 32, 64, 80, 96
    Sx = lambda k: SB_ + 16 * (k & 1); Px = lambda k: PB + 8 * (k & 1); Kx = lambda k: KB + 8 * (k & 1); Vx = lambda k: VB + 8 * (k & 1)
    s = sT[1]
    AD = MI
    def rd(dst, off): return [f"ds_read_b128 {vr(dst,4)}, v{AD} offset:{off}", f"ds_read_b128 {vr(dst+4,4)}, v{AD} offset:{off+1024}"]
    def smf(k, C): return [f"v_mfma_f32_32x32x16_bf16 {vr(Sx(k),16)}, {vr(Kx(k),4)}, {vr(Q,4)}, {C}", f"v_mfma_f32_32x32x16_bf16 {vr(Sx(k),16)}, {vr(Kx(k)+4,4)}, {vr(Q+4,4)}, {vr(Sx(k),16)}"]
    def pv(k):
        L = [f"v_mfma_f32_32x32x16_bf16 {vr(OA,16)}, {vr(Vx(k),4)}, {vr(Px(k),4)}, {vr(OA,16)}", f"v_mfma_f32_16x16x32_bf16 {vr(LS,4)}, {vr(SEL,4)}, {vr(Px(k),4)}, {vr(LS,4)}",
             f"v_mfma_f32_32x32x16_bf16 {vr(OA,16)}, {vr(Vx(k)+4,4)}, {vr(Px(k)+4,4)}, {vr(OA,16)}", f"v_mfma_f32_16x16x32_bf16 {vr(LS,4)}, {vr(SEL,4)}, {vr(Px(k)+4,4)}, {vr(LS,4)}"]
        if DOTSUM:
            for h in range(2): L[2 * h + 1] = "\n".join(f"v_dot2_f32_bf16 v{LS + (i & 1)}, v{Px(k) + 4*h + i}, s{sMW}, v{LS + (i & 1)}" for i in range(4))
        return L
    mode = {"remote": False}
    def rdk(dst, k, o):
        if mode["remote"] and k >= 4: return [x.replace(f"v{AD} ", f"v{AD+1} ") for x in rd(dst, (8 - k) * 8192 + o)]
        return rd(dst, (4 - k) * 8192 + o)
    def nextS(k, special):
        if special is None: return smf(k + 1, "0")
        l0, l1 = a.newlabel("Lsp"), a.newlabel("Lsq")
        m0, m1 = smf(k + 1, "0"), smf(k + 1, vr(BO, 16))
        return ["\n".join([f"s_cmp_eq_u32 s{sCNT}, {special}", f"s_cbranch_scc1 {l0}", m0[0], f"s_branch {l1}", f"{l0}:", m1[0], f"{l1}:"]), m0[1]]
    def start(C, pend):
        for x in rdk(Kx(0), 0, 0) + rdk(Kx(1), 1, 0) + rdk(Vx(0), 0, 2048): a(x)
        a("s_waitcnt lgkmcnt(4)")
        for x in C: a(x)
    def body(k, havepv, last, special=None, dma=(), top=None):
        valu = []
        for p in range(8):
            valu += [f"v_exp_f32 v{Sx(k)+2*p}, v{Sx(k)+2*p}", f"v_exp_f32 v{Sx(k)+2*p+1}, v{Sx(k)+2*p+1}"]
            if p: valu.append(f"v_cvt_pk_bf16_f32 v{Px(k)+p-1}, v{Sx(k)+2*p-2}, v{Sx(k)+2*p-1}")
        valu.append(f"v_cvt_pk_bf16_f32 v{Px(k)+7}, v{Sx(k)+14}, v{Sx(k)+15}")
        ins = {}
        P = pv(k - 1) if havepv else []
        if top: top()
        else: a("s_waitcnt lgkmcnt(2)")
        if not last:
            S2 = nextS(k, special)
            ins[0] = [S2[0]]; ins[SAT2] = [S2[1]]; ins[5] = rdk(Kx(k + 2), k + 2, 0)
        for n, x in zip(PVAT, P): ins.setdefault(n, []).append(x)
        if not last: ins.setdefault(19, []).extend(rdk(Vx(k + 1), k + 1, 2048))
        for n, d in zip((9, 21), dma): ins.setdefault(n, []).extend(d)
        for n, x in enumerate(valu):
            for y in ins.get(n, []): a(y)
            a(x)
    def flush(k, last=False):
        a(f"s_waitcnt lgkmcnt({0 if last else 4})")
        for x in pv(k): a(x)
    l1 = a.wave_if("ge", 6)
    a(f"s_cmp_lg_u32 s{sMX}, 0"); a(f"s_cbranch_scc1 {l1}")
    fetch(a, 1, RB1); a.label(l1)
    for r in range(16): a(f"v_mov_b32 v{OA+r}, 0")
    for r in range(4): a(f"v_mov_b32 v{LS+r}, 0")
    a(f"s_mov_b32 s{sMW}, 0x3f803f80")
    a(f"s_add_u32 s{s}, s{sSLOT}, {OWN_A - 4*8192}"); a(f"v_add_u32 v{AD}, s{s}, v{vL16}")
    start(smf(0, vr(BD, 16)), False)
    p1 = a.newlabel("Lp1done"); ex = [a.newlabel("Lp1x") for _ in range(3)]
    for k in range(4):
        body(k, k > 0, k == 3)
        if k < 3: a(f"s_cmp_eq_u32 s{sCNT}, {k}"); a(f"s_cbranch_scc1 {ex[k]}")
    flush(3, True); a(f"s_branch {p1}")
    for k in range(3):
        a.label(ex[k]); flush(k); a(f"s_branch {p1}")
    a.label(p1)
    a.stamp("A_loc")
    l1 = a.wave_if("ge", 4); l2 = a.wave_if("lt", 6); fetch(a, 2, RB2); a.label(l2); a.label(l1)
    l1 = a.wave_if("ge", 6); a("s_waitcnt vmcnt(0)"); a.label(l1)
    a("s_waitcnt lgkmcnt(0)"); a("s_barrier")
    a.stamp("A_Z1")
    wbz = []
    if HOT and WBZ:
        t = Asm(); lz = a.newlabel("Lwbz"); t(f"s_cmp_lg_u32 s{sL}, 0"); t(f"s_cbranch_scc1 {lz}")
        srd(t, 40, pWB, 6291456); hot_slab(t, 40, 8, 112)
        t.label(lz); wbz = [x.strip() for x in t.lines]
    no1, no2, fin = a.newlabel("Lno1"), a.newlabel("Lno2"), a.newlabel("Lafin")
    m1 = [wo_one((0 if E2Z else 6) + 2 * m, True) for m in range(8 if E2Z else 5)]; m2 = [wo_one(16 + 2 * m, True) if 16 + 2 * m < LATE0 else [] for m in range(4)]
    a(f"s_cmp_eq_u32 s{sRB}, 0"); a(f"s_cbranch_scc1 {no1}")
    a(f"s_and_b32 s{s}, s{sSLOT}, 4096"); a(f"s_add_u32 s{s}, s{s}, {RB1 - 8192}"); a(f"v_add_u32 v{AD}, s{s}, v{vL16}"); a(f"v_add_u32 v{AD+1}, {RB2 - RB1}, v{AD}")
    mode["remote"] = True
    if APRIO: l1 = a.wave_if("ge", 6); a(f"s_setprio {APRIO}"); a.label(l1)
    def z2():
        l1 = a.wave_if("ge", 4); a("s_waitcnt vmcnt(4)"); a.label(l1)
        a.stamp("A_z2a")
        a("s_waitcnt lgkmcnt(2)"); a("s_barrier")
        a.stamp("A_z2b")
    def z3():
        a.stamp("A_z3a")
        a("s_waitcnt lgkmcnt(2)"); a("s_barrier")
    start(smf(0, "0"), False)
    body(0, False, False, dma=m1[0:2]); body(1, True, False, dma=m1[2:4]); body(2, True, False, dma=([m1[4], m1[5] + wbz] if E2Z else [m1[4], wbz]), top=z2)
    body(3, True, False, special=3, dma=m1[6:8])
    a(f"s_cmp_eq_u32 s{sRB}, 1"); a(f"s_cbranch_scc1 {no2}")
    ex = [a.newlabel("Lp3x") for _ in range(3)]
    for k in range(4, 8):
        if k == 4: body(k, True, False, special=2, top=z3, dma=[m2[0] + m2[1], m2[2] + m2[3]])
        elif k < 7: body(k, True, False, special=6 - k)
        else: body(k, True, True)
        if k < 7: a(f"s_cmp_eq_u32 s{sCNT}, {7-k}"); a(f"s_cbranch_scc1 {ex[k-4]}")
    flush(7, True); a(f"s_branch {fin}")
    for k in range(3):
        a.label(ex[k]); flush(4 + k); a(f"s_branch {fin}")
    a.label(no1)
    for d in m1:
        for x in d: a(x)
    a("s_barrier"); a("s_barrier")
    for d in m2:
        for x in d: a(x)
    a(f"s_branch {fin}")
    a.label(no2)
    flush(3)
    a("s_waitcnt lgkmcnt(0)"); a("s_barrier")
    for d in m2:
        for x in d: a(x)
    a.label(fin)
    a.stamp("A_fin")
    if APRIO: a("s_setprio 0")
    a("s_waitcnt lgkmcnt(0)")
    if DOTSUM:
        a(f"v_add_f32 v{LS}, v{LS}, v{LS+1}"); a(f"v_mov_b32 v{LS+1}, v{LS}"); a(f"v_permlane32_swap_b32 v{LS}, v{LS+1}"); a(f"v_add_f32 v{LS}, v{LS}, v{LS+1}")
    ok = a.newlabel("Laok")
    a(f"v_pk_mul_f32 {vr(MI+2,2)}, {vr(OA,2)}, 0")
    for p in range(1, 8): a(f"v_pk_fma_f32 {vr(MI+2,2)}, {vr(OA+2*p,2)}, 0, {vr(MI+2,2)}")
    a(f"v_add_f32 v{MI+2}, v{MI+2}, v{MI+3}"); a(f"v_add_f32 v{MI+2}, v{MI+2}, v{LS}")
    a(f"v_cmp_nle_f32 vcc, 0x21800000, v{MI+2}"); a(f"s_mov_b64 s[{s+1}:{s+2}], vcc"); a(f"v_cmp_nge_f32 vcc, 0x5d800000, v{MI+2}"); a(f"s_or_b64 vcc, vcc, s[{s+1}:{s+2}]")
    if FORCE_EXACT: a("s_mov_b64 vcc, -1")
    a(f"s_cbranch_vccz {ok}")
    attention_A_exact(a)
    a.label(ok)
    att_finish(a)

def halo_B(a):
    VB, KF = S0 + 32, S0 + 48
    s = sT[1]
    none, go = a.newlabel("Lbnone"), a.newlabel("Lbgo")
    a("s_waitcnt lgkmcnt(0)")
    a(f"s_cmp_eq_u32 s{sRB}, 0"); a(f"s_cbranch_scc1 {none}")
    kv_flag(a, MI + 1, 1, 2)
    a(f"s_add_u32 s{s+2}, s{s}, {3*8192}"); a(f"s_add_u32 s{s+2}, s{s+2}, s{sSLOT}")
    a.poll2(MI + 1, 120, 124)
    for d, o in ((KF + 8, 0), (KF + 12, 1024), (VB + 8, 3072)): a(f"buffer_load_dwordx4 {vr(d,4)}, v{vL16}, {sr(sWS)}, s{s+2} offen offset:{o} sc1")
    a(f"s_branch {go}")
    a.label(none)
    for r in list(range(KF + 8, KF + 16)) + list(range(VB + 8, VB + 12)): a(f"v_mov_b32 v{r}, 0")
    a.label(go)

def attention_B(a):
    SO, SP, VB, KF = S0, S0 + 16, S0 + 32, S0 + 48
    M = MI + 4; s = sT[1]
    a(f"s_add_u32 s{s}, s{sSLOT}, {OWN_B - 8192}"); a(f"v_add_u32 v{MI}, s{s}, v{vL16}")
    for d, o in ((KF, 8192), (KF + 4, 8192 + 1024), (VB, 8192 + 2048), (VB + 4, 8192 + 3072)): a(f"ds_read_b128 {vr(d,4)}, v{MI} offset:{o}")
    go = a.newlabel("Lbgo")
    a(f"s_cmp_eq_u32 s{sCNT}, 0"); a(f"s_cbranch_scc1 {go}")
    for d, o in ((KF + 8, 0), (KF + 12, 1024), (VB + 8, 3072)): a(f"ds_read_b128 {vr(d,4)}, v{MI} offset:{o}")
    a.label(go)
    l1 = a.wave_if("lt", 4)
    wo_dma(a, [x for x in BW3 if x < LATE0])
    masks_B(a)
    a(f"s_add_u32 s{s}, s{sRB}, s{sCNT}"); a(f"s_cmp_lg_u32 s{s}, 0"); a(f"s_cbranch_scc1 {go}b")
    for r in range(8, 16): a(f"v_mov_b32 v{BO+r}, {BIG}")
    a.label(go + "b")
    a(f"s_waitcnt vmcnt({len([x for x in BW3 if x < LATE0])})")
    assert sorted(list(BW1) + list(BW2) + list(BW3)) == list(range(0, 6)) + list(range(8, 24))
    a.label(l1)
    a.stamp("B_Z")
    a("s_waitcnt lgkmcnt(0)")
    mfma32(a, SO, KF, Q, BD); mfma32(a, SP, KF + 8, Q, BO); mfma32(a, SO, KF + 4, Q + 4, SO); mfma32(a, SP, KF + 12, Q + 4, SP)
    for r in range(8, 16): a(f"v_max_f32 v{SO+r}, v{SO+r}, v{SP+r}")
    a(f"v_max3_f32 v{M}, v{SO}, v{SO+1}, v{SO+2}"); a(f"v_max3_f32 v{M+1}, v{SO+3}, v{SO+4}, v{SO+5}")
    for k in range(6, 16, 2):
        m = M + ((k >> 1) & 1); a(f"v_max3_f32 v{m}, v{m}, v{SO+k}, v{SO+k+1}")
    a(f"v_max_f32 v{M}, v{M}, v{M+1}")
    rowmax_finish(a, M, M + 1)
    exp_tile(a, SO, M)
    for p in range(4, 8): a(f"v_and_b32 v{SP+p}, v{SO+p}, v{NM+p}"); a(f"v_xor_b32 v{SP+p-4}, v{SO+p}, v{SP+p}")
    mfma32(a, OA, VB, SO, "0"); mfma16(a, LS, SEL, SO, "0"); mfma32(a, OA, VB + 4, SP, OA); mfma16(a, LS, SEL, SO + 4, LS)
    mfma32(a, OA, VB + 8, SP + 4, OA)
    att_finish(a)

A0, OFR, WF2, GA = 24, 56, 120, 152
def gemm2(a):
    s = sT[1]; NB = G2L + 1; ND = G2D + 1
    assert OFR + 4 * ND <= WF2 and WF2 + 8 * NB <= GA
    a(f"s_lshl_b32 s{s}, s{sRB}, 4"); a(f"s_add_u32 s{s}, s{s}, s{sWID}"); a(f"s_lshl_b32 s{s}, s{s}, 16"); a(f"s_add_u32 s{sXO}, s{s}, {RGN + OF}")
    pre = []
    tile_flag(a, GA + 4, OFL, 8, 0, sWID, 31)
    mark = len(a.lines)
    a(f"buffer_load_dwordx2 {vr(GA+6,2)}, v{GA+4}, {sr(sWS)}, 0 offen sc1")
    a(f"v_mov_b32 v{GA}, v{vTR}"); a(f"v_xor_b32 v{GA+1}, 64, v{vTR}"); a(f"v_add_u32 v{GA+2}, 65536, v{GA}"); a(f"v_add_u32 v{GA+3}, 65536, v{GA+1}")
    for p in range(16):
        a(f"v_lshlrev_b32 v{A0+2*p}, 16, v{XRES+p}"); a(f"v_and_b32 v{A0+2*p+1}, 0xffff0000, v{XRES+p}")
    def ld(i):
        if i % 4 == 0: a(f"s_add_u32 s{s+3}, s{sJ}, {i//4}" if G2OWN else f"s_mov_b32 s{s+3}, {i//4}"); a(f"s_and_b32 s{s+3}, s{s+3}, 15"); a(f"s_lshl_b32 s{s+3}, s{s+3}, 12"); a(f"s_add_u32 s{sT[12]}, s{s+3}, s{sXO}")
        a(f"buffer_load_dwordx4 {vr(OFR+4*(i%ND),4)}, v{vL16}, {sr(sWS)}, s{sT[12]} offen offset:{(i%4)*1024}{LDF}")
    def rd(i):
        b = WF2 + 8 * (i % NB); hi = 2 * (i >= 32); o = (i & 31) * 2048
        return [f"ds_read_b64_tr_b16 {vr(b+4*c+2*hf,2)}, v{GA+hi+c} offset:{o + hf*1024}" for c in range(2) for hf in range(2)]
    for i in range(G2L):
        for x in rd(i): a(x)
    st = x_frags(a)
    tile_flag(a, 166, XFL, 7, 1, sWID, f"s{sJ}")
    c_setup(a, False, zero=False)
    a(f"s_lshl_b32 s{s}, s{sWID}, 12"); a(f"s_add_u32 s{s}, s{s}, {XB[0]}"); a(f"v_add_u32 v165, s{s}, v{vL16}")
    NOWN = 4 if G2OWN else 0
    if NOWN:
        t = G(False); a_, a = a, t
        for i in range(NOWN): ld(i)
        a = a_; a.lines[mark:mark] = t.lines
    def step(i, nld):
        b = WF2 + 8 * (i % NB); o = OFR + 4 * (i % ND)
        if G2ST and i in (1, 16, 32, 48): a.stamp(f"c_g2_{i}")
        R = rd(i + G2L) if i + G2L < 64 else []
        a(f"s_waitcnt vmcnt({nld - i - 1}) lgkmcnt({4 * (min(64, i + G2L) - i - 1)})")
        mfma32(a, A0, b, o, A0)
        for x in R[:2]: a(x)
        if i >= NOWN and i + G2D < 64: ld(i + G2D)
        if i == SLB: l1 = a.newlabel("Lnsl"); a(f"s_cmp_lg_u32 s{sL}, 0"); a(f"s_cbranch_scc1 {l1}"); a("s_barrier"); a.label(l1)
        if i == SAT or (SAT < 40 and i == 40): a("s_barrier")
        mfma32(a, A0 + 16, b + 4, o, A0 + 16)
        for x in R[2:]: a(x)
    for i in range(NOWN): step(i, NOWN + 1)
    a("s_waitcnt vmcnt(0)")
    ok = a.newlabel("Look"); a.flagtest(GA + 6, ok); a.poll2(GA + 4, 144, 148); a.label(ok); a.acquire()
    a.stamp("c_R")
    for i in range(NOWN, NOWN + G2D): ld(i)
    for i in range(NOWN, 64): step(i, min(64, i + G2D))
    a.stamp("c_g2end")
    a(f"s_cmp_eq_u32 s{sL}, 3"); a("s_cbranch_scc1 L_final")
    for f in range(4):
        for p in range(4 * f, 4 * f + 4): a(f"v_cvt_pk_bf16_f32 v{XRES+p}, v{A0+2*p}, v{A0+2*p+1}")
        if WT0 & 2: a.stores([st[f]])
        else: a(st[f])
        a(f"ds_write_b128 v165, {vr(XRES+4*f,4)} offset:{f*1024}")

def gen(stamps=False):
    a = G(stamps)
    s = sT[1]
    a("s_cmp_ge_u32 s2, 256"); a("s_cbranch_scc1 L_end")
    if stamps: a(f"s_memtime s[{sT0}:{sT0+1}]"); a("s_mov_b32 s70, -1"); a("s_mov_b32 s82, 0")
    if stamps or DBGT or PH: a("s_memrealtime s[80:81]"); a("s_mov_b32 s94, 0")
    a("s_load_dwordx16 s[48:63], s[0:1], 0"); a("s_load_dwordx2 s[64:65], s[0:1], 64")
    a("v_lshrrev_b32 v1, 6, v0"); a(f"v_readfirstlane_b32 s{sWID}, v1")
    a(f"v_and_b32 v{vLANE}, 63, v0"); a(f"v_lshlrev_b32 v{vL16}, 4, v{vLANE}")
    if CODEPF:
        l1 = a.wave_if("eq", 3)
        a("s_getpc_b64 s[40:41]")
        a.label("L_pc")
        a(f"s_lshr_b32 s{s}, s2, 3"); a(f"s_mul_i32 s{s}, s{s}, {CODEPF * 128}"); a(f"v_lshlrev_b32 v28, 7, v{vLANE}"); a(f"v_add_u32 v28, s{s}, v28")
        a(f"s_mov_b32 s{s}, L_end - L_pc"); a(f"v_min_u32 v28, s{s}, v28")
        a("v_mov_b32 v29, s41"); a("v_add_co_u32 v28, vcc, s40, v28"); a("v_addc_co_u32 v29, vcc, 0, v29, vcc")
        a(f"s_mov_b64 exec, {(1 << CODEPF) - 1}"); a(f"global_load_dword v{vDUM}, v[28:29], off"); a("s_mov_b64 exec, -1")
        a.label(l1)
    a(f"s_and_b32 s{s}, s2, 7"); a(f"s_lshr_b32 s{s+1}, s2, 3"); a(f"s_lshl_b32 s{sRB}, s{s}, 1"); a(f"s_and_b32 s{s}, s{s+1}, 1"); a(f"s_add_u32 s{sRB}, s{sRB}, s{s}")
    a(f"s_lshr_b32 s{sJ}, s{s+1}, 1"); a(f"s_mov_b32 s{sRM}, {RM0}"); a(f"s_and_b32 s{sROT}, s{sJ}, {RM0}")
    a(f"v_bfe_u32 v16, v{vLANE}, 4, 1"); a("v_lshlrev_b32 v16, 2, v16"); a(f"v_and_b32 v17, 7, v{vLANE}"); a("v_xor_b32 v16, v16, v17"); a(f"v_lshlrev_b32 v{vCH}, 4, v16")
    def common():
        srd(a, sWS, pWS, WS_SIZE); a(f"v_mov_b32 v28, {NONCE}")
        a(f"buffer_load_dwordx2 v[26:27], v28, {sr(sWS)}, 0 offen sc1")
        srd(a, sWO, pWOA, 2097152)
        a(f"s_mov_b32 s{sL}, 0"); a(f"s_mov_b32 s{sLK}, {RGN + KVA}"); a(f"s_mov_b32 s{sKSH}, 15"); a(f"s_mov_b32 s{sFAST}, 0"); a(f"s_mov_b32 s{sOWN}, {OWN_A}"); a(f"v_mov_b32 v{vSTAMP}, 0"); a("v_mov_b32 v7, 0")
        a(f"v_lshrrev_b32 v28, 5, v{vLANE}"); a("v_lshlrev_b32 v28, 2, v28"); a(f"v_bfe_u32 v29, v{vLANE}, 2, 2"); a("v_add_u32 v28, v28, v29")
        a(f"v_bfe_u32 v29, v{vLANE}, 4, 1"); a("v_lshlrev_b32 v29, 1, v29"); a(f"v_bfe_u32 v30, v{vLANE}, 1, 1"); a("v_add_u32 v29, v29, v30")
        a("v_bfe_u32 v30, v28, 1, 1"); a("v_lshlrev_b32 v30, 2, v30"); a("v_xor_b32 v29, v29, v30")
        a("v_lshlrev_b32 v28, 7, v28"); a("v_lshlrev_b32 v29, 4, v29"); a(f"v_and_b32 v30, 1, v{vLANE}"); a("v_lshlrev_b32 v30, 3, v30"); a(f"v_add3_u32 v{vTR}, v28, v29, v30")
        wo_setup(a)
        for r in range(HW, HF + 2): a(f"v_mov_b32 v{r}, 0")
    def nonce():
        a(f"v_readfirstlane_b32 s{sN0}, v26"); a(f"v_readfirstlane_b32 s{sN1}, v27")
        a(f"s_add_u32 s{sN0}, s{sN0}, 1"); a(f"s_add_u32 s{sN1}, s{sN1}, 16"); a(f"s_and_b32 s{sN1}, s{sN1}, 0xfffffff0")
        a(f"s_getreg_b32 s{s}, hwreg(HW_REG_XCC_ID, 0, 4)"); a(f"s_or_b32 s{sN1}, s{sN1}, s{s}")
    a(f"s_cmp_lt_u32 s{sWID}, 4"); a("s_cbranch_scc1 L_cstart")
    loader_setup_w(a); loader_setup_x(a, True)
    srd(a, sW, pWA, 6291456)
    def hot0():
        if HOT: hot_setup(a, 28)
        if HOT and HOT0: hot_issue(a, HOT0[0], HOT0[1], 28)
    if HOTF: hot0()
    if HOTX:
        a(f"s_and_b32 s{s}, s2, 7"); a(f"s_lshl_b32 s{s}, s{s}, 9"); a(f"s_lshr_b32 s{s+1}, s2, 3"); a(f"s_lshl_b32 s{s+1}, s{s+1}, 4"); a(f"s_add_u32 s{s}, s{s}, s{s+1}")
        a(f"s_and_b32 s{s+1}, s{sWID}, 3"); a(f"s_lshl_b32 s{s+1}, s{s+1}, 2"); a(f"s_add_u32 s{s}, s{s}, s{s+1}"); a(f"v_add_u32 v28, s{s}, v{vLANE}"); hot_line(a, 29, 28, sXS)
        a("s_mov_b64 exec, 15"); a(f"buffer_load_dword v{vDUM}, v29, {sr(sXS)}, 0 offen"); a("s_mov_b64 exec, -1")
    kstage(a, 0); dma_w(a, 0); dma_x(a, 0)
    common(); srd(a, sIO, pOUT, 4194304)
    if HOTS: hot_slab(a, sW, 4, 28)
    if not HOTF: hot0()
    kstage(a, 1); dma_w(a, 1); kstage(a, 2); dma_w(a, 2); kstage(a, 1); dma_x(a, 1)
    loader_pre(a)
    a(f"s_waitcnt vmcnt({16 + HOTS + (1 if HOT and HOT0 and not HOTF else 0)})"); nonce()
    a("s_barrier")
    a("s_branch L_lbody")
    a.label("L_cstart")
    io_addr(a, 24)
    a("s_waitcnt lgkmcnt(0)")
    srd(a, sIO, pX, 4194304)
    for f in range(4): a(f"buffer_load_dwordx4 {vr(XRES+4*f,4)}, v24, {sr(sIO)}, 0 offen offset:{f*32}")
    common(); srd(a, sW, pWA, 6291456)
    a("s_waitcnt vmcnt(0)")
    nonce(); half_swaps(a)
    x_stats(a, 24); stats_store(a, " sc1", 24)
    srd(a, sIO, pOUT, 4194304)
    a.stamp("c0_x0")
    tile_flag(a, 166, SFL, 7, 0, sWID, f"s{sJ}")
    c_setup(a, True); slab_setup(a, SLAB, 0)
    a(f"s_sub_u32 s{s}, s{sRB}, {PROG}"); a(f"s_max_i32 s{sH}, s{s}, 1"); a(f"s_lshl_b32 s{s}, {1 + 4 + 8 + (1 << POSTD)}, s{sH}"); a(f"s_or_b32 s{sMX}, s{sMX}, s{s}")
    a("s_waitcnt vmcnt(0)"); a.post(166, 168, True)
    a.label("L_cgo")
    consumer(a)
    a("s_branch L_att")
    a.label("L_lbody")
    loader(a, True)
    a("s_branch L_ldone")
    a.label("L_lbody2")
    loader(a, False)
    a.label("L_ldone")
    wo_dma(a, range(24, LATE0))
    att_common(a)
    a(f"s_bitcmp1_b32 s{sL}, 0"); a("s_cbranch_scc1 L_lB")
    masks_A(a)
    a("s_barrier")
    l1 = a.wave_if("ge", 6); fetch(a, 1, RB1, True); a.label(l1)
    a("s_branch L_attA")
    a.label("L_lB")
    masks_B(a)
    a("s_barrier")
    wo_dma(a, BW1)
    a("s_branch L_attB2")
    a.label("L_att")
    att_common(a)
    a(f"s_bitcmp1_b32 s{sL}, 0"); a("s_cbranch_scc1 L_attB")
    def qread():
        a(f"s_add_u32 s{s}, s{sWP}, {QOFF}"); a(f"v_add_u32 v{MI}, s{s}, v{vL16}")
        a(f"ds_read_b128 {vr(Q,4)}, v{MI}"); a(f"ds_read_b128 {vr(Q+4,4)}, v{MI} offset:4096")
    a.label("L_attA")
    a("s_waitcnt lgkmcnt(0)"); a("s_barrier")
    a.stamp("A_Y")
    l1 = a.wave_if("ge", 4); qread(); a.label(l1)
    l1 = a.wave_if("lt", 4); wo_dma(a, [] if E2Z else range(0, 6)); masks_A(a); a.label(l1)
    attention_A(a)
    a.stamp("A_end")
    a("s_branch L_attdone")
    a.label("L_attB")
    if HALOY: l1 = a.wave_if("lt", 2); halo_B(a); a.label(l1)
    a.label("L_attB2")
    a("s_waitcnt lgkmcnt(0)"); a("s_barrier")
    a.stamp("B_Y")
    if not HALOY: l1 = a.wave_if("lt", 2); halo_B(a); a.label(l1)
    l1 = a.wave_if("ge", 4); qread(); wo_dma(a, BW2); a("s_waitcnt lgkmcnt(0)"); wo_dma(a, [6, 7]); a.label(l1)
    attention_B(a)
    a.stamp("B_end")
    a.label("L_attdone")
    a("s_waitcnt vmcnt(0)"); a.post(MI, MI + 4, False, 0 if WT0 & 1 else None)
    a.label("L_P")
    for _ in range(IDLE): a("s_sleep 32")
    a("s_barrier")
    a.stamp("P")
    a(f"s_cmp_ge_u32 s{sWID}, 4"); a("s_cbranch_scc1 L_lnext")
    gemm2(a)
    next_layer(a)
    c_own_entry(a)
    a.label("L_lnext")
    assert LATE0 >= 22 and LATE0 % 2 == 0 and SAT < 40
    wo_dma(a, range(LATE0, 32))
    a(f"s_cmp_eq_u32 s{sL}, 3"); a("s_cbranch_scc1 L_lfinal")
    next_layer(a)
    l1 = a.newlabel("Lnsl"); a(f"s_cmp_lg_u32 s{sL}, 1"); a(f"s_cbranch_scc1 {l1}")
    slab_setup(a, WB[0], 4); slab_dma(a, WB[0], 4)
    if WOBW:
        a(f"s_lshl_b32 s{s}, s2, 2"); a(f"s_add_u32 s{s}, s{s}, s{sWID}"); a(f"s_sub_u32 s{s}, s{s}, 4"); a(f"s_lshl_b32 s{s}, s{s}, 11"); a(f"v_lshlrev_b32 v{S_}, 7, v{vLANE}")
        a("s_mov_b64 exec, 0xffff"); a(f"buffer_load_dword v{vDUM}, v{S_}, {sr(sWO)}, s{s} offen"); a("s_mov_b64 exec, -1")
    a("s_waitcnt vmcnt(0)"); a("s_barrier")
    slab_sums(a)
    a.label(l1)
    hot_burst(a, S_)
    loader_setup_w(a); loader_setup_x(a, False); loader_pre(a)
    a.stamp("ln_pre")
    a("s_barrier")
    a.stamp("ln_S")
    for n in range(3):
        if n and WPACE is not None: a(f"s_waitcnt vmcnt({WPACE})")
        if n == 1:
            assert WPACE == 0
            l1 = a.newlabel("Lnsl"); a(f"s_cmp_lg_u32 s{sL}, 1"); a(f"s_cbranch_scc1 {l1}"); a.post(HF, HD, True); a.label(l1)
        kstage(a, n); dma_w(a, n)
        if SAT < 40 and n == S2AT: a("s_waitcnt vmcnt(6)"); a("s_barrier")
    a.stamp("ln_S2")
    assert W2AT == "T" and SAT >= 24
    a.poll2(TA + 6, S_ + 24, S_ + 28); a.acquire()
    kstage(a, 1); dma_x(a, 1)
    a("s_barrier")
    a(f"s_cmp_ge_u32 s{sL}, 2"); a("s_cbranch_scc1 L_lbody2")
    a("s_branch L_lbody")
    a.label("L_lfinal")
    a("s_barrier")
    a("s_waitcnt vmcnt(0)"); a("s_barrier")
    if WBE:
        l1 = a.newlabel("Lwbe"); a(f"s_lshr_b32 s{s}, s2, 3"); a(f"s_lshl_b32 s{s}, s{s}, 2"); a(f"s_add_u32 s{s}, s{s}, s{sWID}"); a(f"s_and_b32 s{s}, s{s}, {WBE}"); a(f"s_cmp_lg_u32 s{s}, {5 & WBE}"); a(f"s_cbranch_scc1 {l1}")
        a("buffer_wbl2 sc1"); a.label(l1)
    a("s_branch L_out")
    a.label("L_final")
    io_addr(a, 160)
    for p in range(16): a(f"v_cvt_pk_bf16_f32 v{XRES+p}, v{A0+2*p}, v{A0+2*p+1}")
    half_swaps(a)
    for f in range(4): a(f"buffer_store_dwordx4 {vr(XRES+4*f,4)}, v160, {sr(sIO)}, 0 offen offset:{f*32}{FSC}")
    a.label("L_out")
    a.stamp("f_end")
    if stamps:
        a("s_waitcnt lgkmcnt(0)"); a(f"s_sub_u32 s68, s82, s{80 if RT else sT0}"); a("s_and_b32 m0, s70, 63"); a(f"v_writelane_b32 v{vSTAMP}, s68, m0")
        a("s_memrealtime s[82:83]"); a("s_waitcnt lgkmcnt(0)"); a(f"v_writelane_b32 v{vSTAMP}, s80, 62"); a(f"v_writelane_b32 v{vSTAMP}, s82, 63")
        a(f"s_lshl_b32 s{s}, s2, 11"); a(f"s_lshl_b32 s{s+1}, s{sWID}, 8"); a(f"s_add_u32 s{s}, s{s}, s{s+1}"); a(f"s_add_u32 s{s}, s{s}, {STAMP}")
        a(f"v_lshlrev_b32 v16, 2, v{vLANE}"); a(f"buffer_store_dword v{vSTAMP}, v16, {sr(sWS)}, s{s} offen")
        if TRACE: a(f"s_add_u32 s{s}, s{s}, {1 << 20}"); a(f"buffer_store_dword v7, v16, {sr(sWS)}, s{s} offen")
    if DBGT:
        srd(a, 40, pDBG, 256)
        a("s_waitcnt vmcnt(0)"); a("s_memrealtime s[82:83]"); a("s_waitcnt lgkmcnt(0)"); a("s_not_b32 s80, s80")
        a("v_mov_b32 v22, 4"); a("v_mov_b32 v24, s82"); a("v_mov_b32 v25, s80"); a("s_mov_b64 exec, 1")
        l1 = a.wave_if("eq", 0)
        a(f"buffer_atomic_umax v24, v22, {sr(40)}, 0 offen"); a(f"buffer_atomic_umax v25, v22, {sr(40)}, 0 offen offset:4")
        a.label(l1); a("s_mov_b64 exec, -1")
    if DBGT >= 2:
        a("s_not_b32 s80, s80")
        if DBGT == 3: a("s_waitcnt vmcnt(0)"); a("s_barrier"); a("buffer_wbl2 sc1"); a("s_waitcnt vmcnt(0)")
        a.label("L_pad"); a("s_memrealtime s[82:83]"); a("s_waitcnt lgkmcnt(0)"); a("s_sub_u32 s82, s82, s80"); a("s_cmp_lt_u32 s82, 20000"); a("s_cbranch_scc1 L_pad")
    if PH:
        if len(PH) > 2: a(f"s_cmp_eq_u32 s2, {PH[2]}"); a("s_cselect_b32 s94, s94, 0")
        a("s_mul_i32 s94, s94, 4"); a("s_add_u32 s94, s94, 20000")
        a.label("L_pad2"); a("s_memrealtime s[82:83]"); a("s_waitcnt lgkmcnt(0)"); a("s_sub_u32 s82, s82, s80"); a("s_cmp_lt_u32 s82, s94"); a("s_cbranch_scc1 L_pad2")
    a(f"s_xor_b32 s{s}, s{sWID}, {NONL}"); a(f"s_or_b32 s{s}, s2, s{s}"); a(f"s_cmp_lg_u32 s{s}, 0"); a("s_cbranch_scc1 L_end")
    srd(a, 40, pDBG, 256)
    a("v_mov_b32 v22, 0"); a(f"s_mov_b32 s{s}, 0")
    a.label("L_dbgpoll")
    a(f"buffer_load_dword v23, v22, {sr(40)}, 0 offen sc1"); a("s_waitcnt vmcnt(0)")
    a("v_cmp_gt_u32 vcc, 0x100, v23"); a("s_cbranch_vccz L_dbgok")
    a(f"s_add_u32 s{s}, s{s}, 1"); a(f"s_cmp_lt_u32 s{s}, {SPIN}"); a("s_cbranch_scc1 L_dbgpoll")
    a.label("L_dbgok")
    a(f"v_mov_b32 v22, {NONCE}"); a(f"v_mov_b32 v24, s{sN0}"); a(f"v_mov_b32 v25, s{sN1}")
    a("s_mov_b64 exec, 1")
    a(f"buffer_store_dwordx2 v[24:25], v22, {sr(sWS)}, 0 offen sc1")
    a.label("L_end")
    a("s_endpgm")
    body, n = hazard.fix(a.text())
    hdr = open(HERE + "/header.txt").read().rstrip("\n").split("\n")
    hdr.append("; @launch grid=(256,1,1) block=(512,1,1) lds=163840")
    return kernel_file(hdr, [(KNAME, body, 256, 100, 256)]), a.names, n

if __name__ == "__main__":
    for x in sys.argv[2:]:
        if "=" in x: k, v = x.split("="); globals()[k] = eval(v)
    txt, names, n = gen("stamps" in sys.argv)
    open(sys.argv[1], "w").write(txt)
    if names: open(sys.argv[1] + ".names", "w").write("\n".join(names))
    print("lines", txt.count("\n"), "nops inserted", n)
```

```python
from gen_seq import *
V = {}
def rep(f, n=48): return [x for i in range(n) for x in f(i)]
M = lambda i: f"v_mfma_f32_16x16x32_bf16 {vr(16+4*(i%24),4)}, {vr(112+4*((i//4)%6),4)}, {vr(140+4*(i%4),4)}, {vr(16+4*(i%24),4)}"
r = lambda i: 160 + (i % 16) * 2
pkm = lambda i: f"v_pk_mul_f32 {vr(r(i),2)}, {vr(r(i+3),2)}, v[200:201] op_sel_hi:[1,0]"
cvt = lambda i: f"v_cvt_pk_bf16_f32 v{210+i%8}, v{r(i+7)}, v{r(i+7)+1}"
mul = lambda i, k=0: f"v_mul_f32 v{r(i)+k}, v200, v{r(i+3)+k}"
ex = lambda i: f"v_exp_f32 v{r(i)}, v{r(i+3)}"
rd = lambda i: f"ds_read_b128 {vr(224+4*(i%4),4)}, v2 offset:{(i%8)*1024}"
for n in (1, 2, 4, 8, 12, 16, 24, 64):
    V[f"a_add{n:02d}"] = (rep(lambda i: [f"v_add_f32 v{r(k)}, v200, v201" for k in range(n)] + ["s_nop 15"], 16), 16)
for n in (4, 16):
    V[f"b_exp{n:02d}"] = (rep(lambda i: [ex(k) for k in range(n)] + ["s_nop 15"], 16), 16)
    V[f"b_pkm{n:02d}"] = (rep(lambda i: [pkm(k) for k in range(n)] + ["s_nop 15"], 16), 16)
    V[f"b_mfma{n:02d}"] = (rep(lambda i: [M(k) for k in range(n)] + ["s_nop 15"], 16), 16)
for n in range(0, 8):
    V[f"c_idle{n}"] = (rep(lambda i: [f"v_add_f32 v{r(k)}, v200, v201" for k in range(32)] + [f"s_nop {n}"], 16), 16)
V["d_mfma_then_add"] = (rep(lambda i: [M(k) for k in range(8)] + [f"v_add_f32 v{r(k)}, v200, v201" for k in range(16)], 8), 8)
V["d_idle_mfma4_add"] = (rep(lambda i: ["s_nop 15"] + [M(k) for k in range(4)] + [f"v_add_f32 v{r(k)}, v200, v201" for k in range(16)], 8), 8)
V["d_vnop_add"] = (rep(lambda i: ["v_nop"] * 16 + [f"v_add_f32 v{r(k)}, v200, v201" for k in range(16)], 8), 8)
V["d_sparse_add"] = (rep(lambda i: ["s_nop 2", "v_mov_b32 v250, 0"] * 4 + [f"v_add_f32 v{r(k)}, v200, v201" for k in range(16)], 8), 8)
V["d_salu_add"] = (rep(lambda i: ["s_add_u32 s40, s41, 3"] * 16 + [f"v_add_f32 v{r(k)}, v200, v201" for k in range(16)], 8), 8)
V["e_m_rd_cvt"] = (rep(lambda i: [M(i), rd(i), cvt(i)]), 48)
V["e_m_rd_mul"] = (rep(lambda i: [M(i), rd(i), mul(i)]), 48)
V["e_m_cvt_mul"] = (rep(lambda i: [M(i), cvt(i), mul(i)]), 48)
V["e_m_mul_cvt"] = (rep(lambda i: [M(i), mul(i), cvt(i)]), 48)
V["e_m_st"] = (rep(lambda i: [M(i)] + ([f"buffer_store_dwordx4 v[224:227], v2, s[16:19], 0 offen offset:2048"] if i % 4 == 0 else [])), 48)
V["e_m_mul_st"] = (rep(lambda i: [M(i), mul(i)] + ([f"buffer_store_dwordx4 v[224:227], v2, s[16:19], 0 offen offset:2048"] if i % 4 == 0 else [])), 48)
V["e_m8_dsw"] = (rep(lambda i: [M(i)] + ([f"ds_write_b128 v2, v[224:227] offset:{(i%8)*1024}"] if i % 8 == 0 else [])), 48)
V["e_m4_dsw64"] = (rep(lambda i: [M(i)] + ([f"ds_write_b64 v2, v[224:225] offset:{(i%8)*1024}"] if i % 2 == 0 else [])), 48)
V["e_add8_dsw"] = (rep(lambda i: [f"v_add_f32 v{r(k)}, v200, v201" for k in range(12)] + [f"ds_write_b128 v2, v[224:227] offset:{(i%8)*1024}"], 16), 16)
emit(V)
```

```python
import sys, os, struct, math
HERE = os.path.dirname(os.path.abspath(__file__)); sys.path.insert(0, HERE + "/../tools")
from asmlib import *
import hazard

KB, MB = 1 << 10, 1 << 20
ST, CSP, SFL, CSFL, NONCE, KVFL = 0, 256 * KB, 768 * KB, 800 * KB, 824 * KB, 832 * KB
OB, XF, KV, HB, STAMP, WS_SIZE = 2 * MB, 10 * MB, 14 * MB, 30 * MB, 70 * MB, 72 * MB
XB = [48 * KB, 64 * KB, 80 * KB]; WB = [136 * KB, 0, 24 * KB]
TAB, HX, SLAB = 128 * KB, 130 * KB, 96 * KB
QX, OWN, REM = 48 * KB, 64 * KB, 96 * KB
BIG = 0xF149F2CA
QSCALE = struct.unpack("<I", struct.pack("<f", 32 ** -0.5 * math.log2(math.e)))[0]
WSTEP = 64 * 6144
SPIN = 1 << 18
OOB = 0x40000000
RT = 0; SKIP = []; FORCE_EXACT = 0; FORCE_SLOW = 0; DIAG = 0; FJ = 15; TRACE = 0
NG = 5; S0AT = 9; S2AT = 22; HOT = 1; HOTD = 4; HOT0 = (0, 5); WOHOT = 12; CODEPF = 15; NF = 5; BAR0 = 6; PREP = 1; HALOAT = 0
WARM = []; SWARM = [(0, 6, 'woa', 0, 8), (0, 7, 'woa', 8, 8), (0, 8, 'woa', 16, 8), (0, 9, 'woa', 24, 8), (1, 8, 'wob', 0, 8), (1, 9, 'wob', 8, 8), (1, 10, 'wob', 16, 8), (1, 11, 'wob', 24, 8)]; TRICKLE = 0; HPAT = 11
WOA = [range(0, 6), range(6, 12), []]; WOB = [[*range(0, 6), *range(16, 20)], [*range(6, 12), *range(20, 24)], range(12, 16)]
HANDA = [('px', 14)]; HANDB = []; PXF = ''
G2PRE = 2; G2RAMP = 2; VG = [1, 5, 6]; LATE = 30; F1AT = 2; ZPRIO = 1; RG = 0; RG1 = 0; ROTL = [1]; F2A = 4; WT = 0; WOT = 99; OP0 = 1; WOY = [22, 23, 14, 15]
WSCH = [[['h', 0], [1], [2]], [[], ['h', 0, 1], [2]], [['h', 0], [1], [2]]]; WP = [2, 3, 2]; ATAT = [0, 2, 4, 7, 11]; LAST = 3

sW, sWO, sWS, sIO, sXS = 4, 8, 12, 16, 88
sWID, sRB, sJ, sL, sFAST, sN0, sN1 = 3, 20, 21, 22, 23, 24, 25
sT = list(range(26, 48))
pX, pWA, pWOA, pWB, pWOB, pOUT, pDBG, pWS = 48, 50, 52, 56, 58, 60, 62, 64
sT0 = 66
sTILE, sOA, sKVS, sCNT, sU, sXO, sWOF, sMX, sMW = 71, 72, 73, 74, 75, 76, 77, 78, 79
sT32, sWP, sWR, sKF = 84, 85, 86, 87
sH, sGO = 54, 55
mB0, mB1, mP0, mP1 = 92, 94, 96, 98
vL16, vLANE, vTR, vWO, vD0, vSTAMP = 0, 1, 2, 3, 4, 6
XRES = 8
vDUM = 255

def vr(r, n): return f"v[{r}:{r+n-1}]"
def sr(r, n=4): return f"s[{r}:{r+n-1}]"
def M(d, A, B, C): return f"v_mfma_f32_16x16x32_bf16 {vr(d,4)}, {vr(A,4)}, {vr(B,4)}, {C if isinstance(C,str) else vr(C,4)}"
STAMPS = ["g1start", "g1kv", "epi", "qmm", "Y", "loc", "Z", "Z2", "fin", "P", "R", "g2end", "l_a", "l_b", "l_c", "end"]

class G(Asm):
    def __init__(self, stamps):
        super().__init__(); self.stamps = stamps; self.tail = []
    def all(self, L):
        for x in L: self(x)
    def stamp_l(self, name):
        if not self.stamps or SKIP == 'all' or name in SKIP: return []
        return ["s_mov_b32 s69, m0", "s_mov_b32 m0, s70", f"v_writelane_b32 v{vSTAMP}, s82, m0", "s_memrealtime s[82:83]" if RT else "s_memtime s[82:83]",
                f"s_mul_i32 s70, s{sL}, 16", "s_mov_b32 m0, s69"] + [f"s_bitset1_b32 s70, {b}" for b in range(4) if STAMPS.index(name) >> b & 1]
    def stamp(self, name): self.all(self.stamp_l(name))
    def skip_unless(self, cond, sreg, imm):
        l = self.newlabel("Lw")
        self(f"s_cmp_{cond}_u32 s{sreg}, {imm}"); self(f"s_cbranch_scc0 {l}")
        return l
    def bymode(self, L):
        sl, dn = self.newlabel("Lslow"), self.newlabel("Lback")
        self(f"s_cmp_eq_u32 s{sFAST}, 0"); self(f"s_cbranch_scc1 {sl}")
        self.all(L); self.label(dn)
        self.tail += [sl + ":"] + [x + " sc1" if x.startswith("buffer_store") else x for x in L] + [f"s_branch {dn}"]
    def flagtest(self, vt, ok, fail=None):
        self(f"v_xor_b32 v{vt+2}, s{sN0}, v{vt}"); self(f"v_xor_b32 v{vt+3}, s{sN1}, v{vt+1}")
        self(f"v_lshrrev_b32 v{vt+3}, 4, v{vt+3}"); self(f"v_or_b32 v{vt+2}, v{vt+2}, v{vt+3}")
        self(f"v_cmp_ne_u32 vcc, 0, v{vt+2}"); self(f"s_cbranch_vccz {ok}" if ok else f"s_cbranch_vccnz {fail}")
    def flagload(self, vt, vaddr, off=0): self(f"buffer_load_dwordx2 {vr(vt,2)}, v{vaddr}, {sr(sWS)}, 0 offen offset:{off} sc1")
    def poll(self, vaddr, vt, off=0):
        lp, ok = self.newlabel("Lpoll"), self.newlabel("Lok")
        self(f"s_mov_b32 s{sT[0]}, 0")
        self.label(lp)
        self.flagload(vt, vaddr, off); self("s_waitcnt vmcnt(0)")
        self.flagtest(vt, ok)
        self(f"s_add_u32 s{sT[0]}, s{sT[0]}, 1"); self(f"s_cmp_lt_u32 s{sT[0]}, {SPIN}"); self(f"s_cbranch_scc1 {lp}")
        self.label(ok)
def post_l(vaddr, vt, off=0, fl=" sc1"):
    return [f"v_mov_b32 v{vt}, s{sN0}", f"v_mov_b32 v{vt+1}, s{sN1}"], ["s_mov_b64 exec, 1", f"buffer_store_dwordx2 {vr(vt,2)}, v{vaddr}, {sr(sWS)}, 0 offen offset:{off}{fl}", "s_mov_b64 exec, -1"]
def weave(a, mf, fill):
    for m, x in enumerate(mf):
        a(x)
        for y in fill.get(m, ()): a(y)
def spread(fill, L, gaps):
    gaps = list(gaps); assert len(L) <= len(gaps), (len(L), len(gaps))
    for g, x in zip(gaps, L): fill.setdefault(g, []).extend(x if isinstance(x, list) else [x])
def rr(*streams):
    out = []; n = max(map(len, streams))
    for k in range(n): out += [s[k] for s in streams if k < len(s)]
    return out
def poison_test(t, regs):
    L = []; regs = list(regs); cur = regs.pop(0)
    while regs:
        if len(regs) >= 2: L.append(f"v_max3_u32 v{t}, v{cur}, v{regs[0]}, v{regs[1]}"); regs = regs[2:]
        else: L.append(f"v_max_u32 v{t}, v{cur}, v{regs[0]}"); regs = []
        cur = t
    return L + [f"v_cmp_eq_u32 vcc, -1, v{cur}"]
def pack(d, r, t, tmp=None):
    C = [f"v_cvt_pk_bf16_f32 v{d+k}, v{r+2*k}, v{r+2*k+1}" for k in range(4)]; S = "dst_sel:WORD_0 dst_unused:UNUSED_PRESERVE src0_sel:WORD_1 src1_sel:DWORD"
    u = r if tmp is None else tmp
    if t: return ([] if tmp is None else [f"v_mov_b32 v{u}, v{r}"]) + C[:2] + [f"v_or_b32_sdwa v{d}, v{u}, 1 {S}"] + C[2:]
    return [f"v_add_u32 v{u}, 0x10000, v{r}"] + C[:2] + [f"v_and_b32_sdwa v{d}, v{u}, -2 {S}"] + C[2:]
def tag_test(t, d, ph):
    if ph == 0: return [f"v_or3_b32 v{t}, v{d[0]}, v{d[1]}, v{d[2]}", f"v_bitop3_b32 v{t}, v{t}, v{d[3]}, 1 bitop3:0xa8", f"v_cmp_ne_u32 vcc, 0, v{t}"]
    if ph == 1: return [f"v_bitop3_b32 v{t}, v{d[0]}, v{d[1]}, v{d[2]} bitop3:0x80", f"v_bitop3_b32 v{t}, v{t}, v{d[3]}, 1 bitop3:0x80", f"v_cmp_eq_u32 vcc, 0, v{t}"]
    return [f"v_bitop3_b32 v{t}, v{d[0]}, v{d[1]}, {ph} bitop3:0x7e", f"v_bitop3_b32 v{t+1}, v{d[2]}, v{d[3]}, {ph} bitop3:0x7e", f"v_bitop3_b32 v{t}, v{t}, v{t+1}, 1 bitop3:0xa8", f"v_cmp_ne_u32 vcc, 0, v{t}"]
clean = lambda d, s=None: f"v_min_u32 v{d}, -2, v{d if s is None else s}"

def io_addr(a, v):
    s = sT[1]
    a(f"s_lshl_b32 s{s}, s{sRB}, 2"); a(f"s_add_u32 s{s}, s{s}, s{sWID}"); a(f"s_lshl_b32 s{s}, s{s}, 16"); a(f"s_lshl_b32 s{s+1}, s{sJ}, 7"); a(f"s_add_u32 s{s}, s{s}, s{s+1}")
    a(f"v_and_b32 v{v}, 15, v{vLANE}"); a(f"v_lshlrev_b32 v{v}, 11, v{v}"); a(f"v_and_b32 v{v+1}, 48, v{vLANE}")
    a(f"v_add3_u32 v{v}, v{v}, v{v+1}, s{s}"); a(f"v_add_u32 v{v+1}, 32768, v{v}")
def col_swaps(f, order): return [f"v_permlane{w}_swap_b32 v{XRES+4*f+k}, v{XRES+4*f+k+2}" for w in order for k in range(2)]

LX, LW, vHOT, vCS = 8, 12, 18, 20
vSF, vXV, vTW, vCW, vCF, vKF, vPO, vCH = 168, 169, 170, 171, 172, 174, 176, 173
S_, SELA = 24, 64
def setup_w(a, first):
    s = sT[1]
    a(f"v_lshrrev_b32 v{LW}, 3, v{vLANE}")
    if first:
        a(f"v_lshrrev_b32 v{LW+1}, 5, v{vLANE}"); a(f"v_lshl_add_u32 v{LW}, v{LW+1}, 2, v{LW}")
        a(f"s_lshr_b32 s{s}, s{sU}, 1"); a(f"s_lshl_b32 s{s}, s{s}, 3"); a(f"s_and_b32 s{s+1}, s{sU}, 1"); a(f"s_add_u32 s{s}, s{s}, s{s+1}"); a(f"s_mul_i32 s{s}, s{s}, {4*6144}")
    else: a(f"s_mul_i32 s{s}, s{sU}, {16*6144}")
    a(f"v_mul_u32_u24 v{LW}, 6144, v{LW}"); a(f"s_lshl_b32 s{s+1}, s{sJ}, 7"); (FJ == 15 or a(f"s_and_b32 s{s+1}, s{s+1}, {FJ << 7}")); a(f"s_add_u32 s{s}, s{s}, s{s+1}"); a(f"v_add3_u32 v{LW}, v{LW}, v{vCH}, s{s}")
    for k in range(1, 6): a(f"v_add_u32 v{LW+k}, {(k//3)*(16 if first else 8)*6144 + (k%3)*1024}, v{LW}")
def setup_x(a, l):
    s = sT[1]
    a(f"s_lshl_b32 s{s}, s{sRB}, 2"); a(f"s_add_u32 s{s}, s{s}, s{sU}"); a(f"s_lshl_b32 s{s}, s{s}, 16")
    if l == 0:
        a(f"v_lshrrev_b32 v{LX+1}, 4, v{vLANE}"); a(f"v_and_b32 v{LX+2}, 7, v{vLANE}"); a(f"v_xor_b32 v{LX+1}, v{LX+1}, v{LX+2}"); a(f"v_lshlrev_b32 v{LX+1}, 4, v{LX+1}")
        a(f"v_lshrrev_b32 v{LX+2}, 3, v{vLANE}"); a(f"v_lshlrev_b32 v{LX+2}, 11, v{LX+2}"); a(f"v_add3_u32 v{LX}, v{LX+1}, v{LX+2}, s{s}")
        a(f"v_xor_b32 v{LX+1}, 64, v{LX}"); a(f"v_add_u32 v{LX+2}, {2*15360}, v{LX}"); a(f"v_add_u32 v{LX+3}, {3*15360}, v{LX+1}"); a(f"v_add_u32 v{LX+1}, 15360, v{LX+1}")
    elif l == 1: a(f"v_add_u32 v{LX}, s{s}, v{vL16}")
def xsrd(a, d, l):
    srd(a, d, pOUT if l else pX, 4194304)
def kstage(a, l, n, x=True, w=True):
    t = sXO if x else sWOF
    if l in ROTL and n: a(f"s_add_u32 s{t}, s{sGO}, {n}"); a(f"s_cmp_ge_u32 s{t}, 16"); a(f"s_addc_u32 s{t}, s{t}, s{sJ}")
    else: a(f"s_add_u32 s{t}, s{sJ if l else sGO}, {n}")
    a(f"s_and_b32 s{t}, s{t}, 15")
    if w: a(f"s_mul_i32 s{sWOF}, s{t}, {WSTEP}")
    if x: a(f"s_lshl_b32 s{sXO}, s{t}, {12 if l else 7}")
def dma_w(a, base, so=sWOF):
    for i in range(2):
        a(f"s_add_u32 m0, s{sMW}, {base + i*3072}")
        for seg in range(3): a(f"buffer_load_dwordx4 v{LW+i*3+seg}, {sr(sW)}, s{so} offen offset:{seg*1024} lds")
def dma_x(a, l, n):
    a(f"s_add_u32 m0, s{sMX}, {XB[n % 3]}")
    for k in range(4): a(f"buffer_load_dwordx4 v{LX + (0 if l else k)}, {sr(sIO if l else sXS)}, s{sXO} offen offset:{k*1024} sc1 lds")
def hot_line(a, v, q, base):
    s = sT[4]
    a(f"s_lshr_b32 s{s}, s{base}, 7"); a(f"s_sub_u32 s{s}, 3, s{s}"); a(f"s_and_b32 s{s}, s{s}, 7"); a(f"s_lshl_b32 s{s}, s{s}, 7")
    a(f"v_and_b32 v{v}, 1, v{q}"); a(f"v_lshlrev_b32 v{v}, 10, v{v}"); a(f"v_lshrrev_b32 v{q}, 1, v{q}"); a(f"v_lshlrev_b32 v{q}, 11, v{q}")
    a(f"v_add3_u32 v{v}, v{v}, v{q}, s{s}")
def hot_setup(a, l, t):
    s = sT[1]
    a(f"s_lshr_b32 s{s}, s2, 3"); a(f"s_mul_i32 s{s}, s{s}, 12"); a(f"s_mul_i32 s{s+1}, s{sU}, 3"); a(f"s_add_u32 s{s}, s{s}, s{s+1}")
    a(f"v_mul_u32_u24 v{vHOT+1}, 21846, v{vLANE}"); a(f"v_lshrrev_b32 v{vHOT+1}, 16, v{vHOT+1}")
    a(f"v_mul_u32_u24 v{t}, 3, v{vHOT+1}"); a(f"v_sub_u32 v{t}, v{vLANE}, v{t}"); a(f"v_add_u32 v{t}, s{s}, v{t}")
    hot_line(a, vHOT, t, sW)
    if l and l not in ROTL: a(f"v_bfe_u32 v{t}, v{vHOT}, 7, 4"); a(f"v_add_u32 v{vHOT+1}, v{vHOT+1}, v{t}")
    else: a(f"s_and_b32 s{s}, s{sRB}, {14 & ~(RG1 if l else RG)}"); a(f"v_add_u32 v{vHOT+1}, s{s}, v{vHOT+1}")
def hot_issue(a, l, first, count, t):
    s = sT[1]
    a(f"v_add_u32 v{t}, {first}, v{vHOT+1}")
    if l in ROTL: a(f"v_lshrrev_b32 v{t+1}, 4, v{t}"); a(f"v_lshrrev_b32 v{t+2}, 7, v{vHOT}"); a(f"v_add3_u32 v{t}, v{t}, v{t+1}, v{t+2}")
    a(f"v_and_b32 v{t}, 15, v{t}")
    a(f"s_mov_b32 s{s}, {WSTEP}"); a(f"v_mad_u32_u24 v{t}, v{t}, s{s}, v{vHOT}")
    a(f"s_mov_b64 exec, {(1 << (3 * count)) - 1}")
    a(f"buffer_load_dword v{vDUM}, v{t}, {sr(sW)}, 0 offen")
    a("s_mov_b64 exec, -1")
def hot_slab(t, sd, v):
    s = sT[1]; per = 6
    t(f"s_lshr_b32 s{s}, s2, 3"); t(f"s_lshl_b32 s{s}, s{s}, 2"); t(f"s_add_u32 s{s}, s{s}, s{sU}")
    t(f"s_lshr_b32 s{s+1}, s{s}, 5"); t(f"s_and_b32 s{s}, s{s}, 31"); t(f"s_mul_i32 s{s}, s{s}, {per*2048}")
    t(f"s_lshr_b32 s{s+2}, s{sd}, 7"); t(f"s_sub_u32 s{s+2}, 3, s{s+2}"); t(f"s_and_b32 s{s+2}, s{s+2}, 7"); t(f"s_and_b32 s{s+3}, s{s+1}, 1"); t(f"s_lshl_b32 s{s+3}, s{s+3}, 3"); t(f"s_add_u32 s{s+2}, s{s+2}, s{s+3}")
    t(f"s_lshr_b32 s{s+1}, s{s+1}, 1"); t(f"s_and_b32 s{s+3}, s{sRB}, 14"); t(f"s_add_u32 s{s+1}, s{s+1}, s{s+3}")
    t(f"s_add_u32 s{s+1}, s{s+1}, s{s+2}"); t(f"s_and_b32 s{s+1}, s{s+1}, 15")
    t(f"s_mul_i32 s{s+1}, s{s+1}, {WSTEP}"); t(f"s_add_u32 s{s}, s{s}, s{s+1}"); t(f"s_lshl_b32 s{s+2}, s{s+2}, 7"); t(f"s_add_u32 s{s}, s{s}, s{s+2}")
    t(f"v_lshlrev_b32 v{v}, 11, v{vLANE}")
    t(f"s_mov_b64 exec, {(1 << per) - 1}"); t(f"buffer_load_dword v{vDUM}, v{v}, {sr(sd)}, s{s} offen"); t("s_mov_b64 exec, -1")
def wo_one(step):
    s = sT[10]
    return [f"s_add_u32 m0, s{sWP}, {step*4096}", f"s_add_u32 s{s}, s{sWR}, {step*65536}", f"s_and_b32 s{s}, s{s}, 0x1fffff", f"buffer_load_dwordx4 v{vWO}, {sr(sWO)}, s{s} offen lds"]

class VM:
    def __init__(self, a): self.a = a; self.q = []
    def add(self, tag, n=1): self.q += [tag] * n
    def wait(self, tag):
        if tag not in self.q: return
        last = max(i for i, t in enumerate(self.q) if t == tag)
        y = self.q[last + 1:]; self.q = y
        n = sum(1 for t in y if t[0] != "if"); c = sorted({t[1] for t in y if t[0] == "if"})
        assert n + 6 <= 63
        if c:
            a = self.a; l0, l1 = a.newlabel("Lvm"), a.newlabel("Lvm"); assert c == list(range(c[0], c[-1] + 1))
            a(f"s_sub_u32 s{sT[1]}, s{sH}, {c[0]}"); a(f"s_cmp_lt_u32 s{sT[1]}, {len(c)}"); a(f"s_cbranch_scc1 {l0}")
            a(f"s_waitcnt vmcnt({n})"); a.label(l0); a(f"s_waitcnt vmcnt({n + 6})")
        else: self.a(f"s_waitcnt vmcnt({n})")
    def wait_wo(self):
        w = [t for t in self.q if t[0] == "wo"]
        if w: self.wait(w[-1])
    def wo(self, steps):
        for st in steps: self.a.all(wo_one(st)); self.add(("wo", st))

def slab_sums(a, base, parts="rmw"):
    s = sT[1]; F, D, A = S_, 48, 60
    if "r" in parts:
        a(f"v_lshrrev_b32 v{A}, 5, v{vLANE}"); a(f"v_mul_u32_u24 v{A}, 3072, v{A}"); a(f"s_add_u32 s{s}, s{sMW}, {base}"); a(f"v_add3_u32 v{A}, v{A}, v{vTR}, s{s}")
        for cb in range(1, 4): a(f"v_xor_b32 v{A+cb}, {32*cb}, v{A}")
        for seg in range(3):
            for cb in range(4): a(f"ds_read_b64_tr_b16 {vr(F+8*seg+2*cb,2)}, v{A+cb} offset:{seg*1024}")
    if "m" in parts:
        a(f"v_bfe_u32 v{D}, v{vLANE}, 2, 2"); a(f"v_lshlrev_b32 v{D}, v{D}, 1")
        for cb in range(4):
            a(f"v_bfe_i32 v{SELA+2*cb}, v{D}, {cb}, 1"); a(f"v_and_b32 v{SELA+2*cb}, 0x3f803f80, v{SELA+2*cb}"); a(f"v_mov_b32 v{SELA+2*cb+1}, v{SELA+2*cb}")
        a("s_waitcnt lgkmcnt(0)")
        for h in range(2):
            for seg in range(3): a(M(D + 4 * seg, SELA + 4 * h, F + 8 * seg + 4 * h, D + 4 * seg if h else "0"))
    if "w" in parts:
        a(f"s_mul_i32 s{s}, s{sU}, 768"); a(f"s_add_u32 s{s}, s{s}, {HX}"); a(f"v_lshl_add_u32 v{A}, v{vLANE}, 2, s{s}")
        for seg in range(3): a(f"ds_write_b32 v{A}, v{D+4*seg} offset:{seg*256}")
        a("s_waitcnt lgkmcnt(0)")
def cs_off(a, d, l, unit, base):
    a(f"s_lshl_b32 s{d}, s{sJ}, 2"); a(f"s_add_u32 s{d}, s{d}, s{sU}"); a(f"s_mul_i32 s{d}, s{d}, {unit}"); a(f"s_add_u32 s{d}, s{d}, {base + l*64*unit}")
def slab_publish(a, l):
    s = sT[1]; F = S_
    a(f"s_min_u32 s{s}, s{sU}, 2"); a(f"s_lshl_b32 s{s}, s{s}, 8"); a(f"s_add_u32 s{s}, s{s}, {HX}"); a(f"v_lshl_add_u32 v{F}, v{vLANE}, 2, s{s}")
    for k in range(4): a(f"ds_read_b32 v{F+1+k}, v{F} offset:{k*768}")
    cs_off(a, s, l, 4096, CSP); a(f"s_lshl_b32 s{s+1}, s{sRB}, 8"); a(f"s_add_u32 s{s}, s{s}, s{s+1}"); a(f"v_lshlrev_b32 v{F}, 2, v{vLANE}")
    a("s_waitcnt lgkmcnt(0)")
    a(f"v_add_f32 v{F+1}, v{F+1}, v{F+2}"); a(f"v_add_f32 v{F+3}, v{F+3}, v{F+4}"); a(f"v_add_f32 v{F+1}, v{F+1}, v{F+3}")
    a(f"buffer_store_dword v{F+1}, v{F}, {sr(sWS)}, s{s} offen sc1")
def slab_post(a, l):
    s = sT[1]; F = S_ + 20
    cs_off(a, s, l, 128, CSFL); a(f"v_and_b32 v{vCF}, 15, v{vLANE}"); a(f"v_lshl_add_u32 v{vCF}, v{vCF}, 3, s{s}")
    a(f"s_lshl_b32 s{s+1}, s{sRB}, 3"); a(f"s_add_u32 s{s}, s{s}, s{s+1}"); a(f"v_mov_b32 v{F+2}, s{s}")
    p0, p1 = post_l(F + 2, F); a.all(p0 + p1)

def chunks(a, L, k):
    L = [x.strip() for x in L]
    return [(lambda part: lambda: a.all(part))(L[i:i + k]) for i in range(0, len(L), k)]
def hand(a, vm, l, what):
    s = sT[1]
    if what[1] == "x" and l >= LAST or what[0] == "p" and l: return []
    sd = sIO if what[1] == "x" else sWS; off = 0 if what[1] == "x" else OB
    def st(k):
        a(f"s_add_u32 s{s}, s{sTILE}, {off}"); (a.all if PXF else a.bymode)([f"buffer_store_dwordx4 {vr(vPO,4)}, v{vL16}, {sr(sd)}, s{s} offen offset:{k*1024}{PXF}"]); vm.add(("p",))
    def touch():
        a(f"s_add_u32 s{s}, s{sTILE}, {off}"); a(f"v_lshlrev_b32 v{S_+22}, 3, v{vL16}")
        a("s_mov_b32 exec_hi, 0"); a(f"buffer_load_dword v{vDUM}, v{S_+22}, {sr(sd)}, s{s} offen sc1"); a("s_mov_b64 exec, -1"); vm.add(("hot",))
    return [touch] if what[0] == "t" else [(lambda k: lambda: st(k))(k) for k in range(4)]
def swarm(what, lo, cnt):
    s = sT[1]; p = {"woa": pWOA, "wob": pWOB, "wb": pWB}[what]
    return [f"s_lshl_b32 s{s}, s2, 2", f"s_add_u32 s{s}, s{s}, s{sU}", f"s_mul_i32 s{s}, s{s}, {6144 if what == 'wb' else 2048}", "s_nop 0", f"s_add_u32 s44, s{p}, s{s}", f"s_addc_u32 s45, s{p+1}, 0"] + [f"s_load_dword s46, s[44:45], {k*64}" for k in range(lo, lo + cnt)]
def loader(a, l, vm):
    S, G = S_, S_ + 24
    s = sT[1]; A = l % 2 == 0
    NR = RG1 + 1 if l else RG; NS, NP = NR + 1, NR + 2
    NCF = 10
    for n in range(17):
        if n <= 13: kstage(a, l, n + 2, w=n > 0); a(f"s_add_u32 m0, s{sMX}, {XB[(n + 2) % 3]}")
        if n:
            vm.wait(("x", n)); vm.wait(("w", n))
            if n == 15: a("s_waitcnt lgkmcnt(0)")
            a("s_barrier")
            if a.stamps and TRACE:
                if n > 1: a(f"v_writelane_b32 v5, s100, {l*16 + n - 1}")
                a("s_memrealtime s[100:101]" if RT else "s_memtime s[100:101]")
            if n == 1: a.stamp("l_c")
        D = []; X = []; late = []
        if n <= 13:
            t = G_(a); dma_x(t, l, n + 2); D += [([x], ("x", n + 2)) for x in t.lines[1:]]
            if n:
                t = G_(a); dma_w(t, WB[(n + 2) % 3]); L = t.lines
                D += [(x, ("w", n + 2)) for x in (L[0:2], L[2:3], L[3:4], L[4:6], L[6:7], L[7:8])]
        wo = []
        if not A and TRICKLE and 14 - TRICKLE <= n < 14: wo = [18 + n]
        if n >= 14: wo = (WOA if A else WOB)[n - 14]
        if n == 16 and not A: wo = list(wo) + list(range(24, 32 - TRICKLE))
        D += [(wo_one(st), ("wo", st)) for st in wo]
        if n == NF: X.append(lambda: (a.flagload(S, vSF), vm.add(("F",))))
        if l < 2 and n == NCF: X.append(lambda: (a.flagload(G + 16, vCF), vm.add(("CF",))))
        if n == NF + 1:
            def chk():
                vm.wait(("F",)); ok = a.newlabel("Lsok"); a.flagtest(S, ok); a.poll(vSF, S); a.label(ok)
            def mode():
                a(f"v_cmp_ne_u32 vcc, s{sN1}, v{S+1}"); a("s_cmp_eq_u64 vcc, 0"); a(f"s_cselect_b32 s{sFAST}, {0 if FORCE_SLOW else 1}, 0")
                a(f"v_mov_b32 v{S+18}, s{sFAST}"); a(f"v_mov_b32 v{S+19}, {TAB+1792}"); a(f"ds_write_b32 v{S+19}, v{S+18}")
            X += [chk] + ([mode] if l == 0 else [])
        if NF + 2 <= n < NF + 6:
            def sl(i=n - NF - 2):
                a(f"s_lshr_b32 s{s}, s{sTILE}, 16"); a(f"s_lshl_b32 s{s}, s{s}, 12"); assert ST == 0
                a(f"buffer_load_dwordx4 {vr(S+4*i,4)}, v{vL16}, {sr(sWS)}, s{s} offen offset:{i*1024} sc1"); vm.add(("stats",))
            X.append(sl)
        if n == NF + 7:
            L = [f"v_add_f32 v{S+i}, v{S+i}, v{S+8+i}" for i in range(8)] + [f"v_add_f32 v{S+i}, v{S+i}, v{S+4+i}" for i in range(4)]
            L += [f"v_permlane32_swap_b32 v{S}, v{S+2}", f"v_permlane32_swap_b32 v{S+1}, v{S+3}",
                  f"v_add_f32 v{S}, v{S}, v{S+2}", f"v_add_f32 v{S+1}, v{S+1}, v{S+3}", f"v_mov_b32 v{S+2}, v{S}", f"v_mov_b32 v{S+3}, v{S+1}"]
            X += [lambda: vm.wait(("stats",))] + chunks(a, L, 3)
        if n == NF + 8:
            L = [f"v_permlane16_swap_b32 v{S}, v{S+2}", f"v_permlane16_swap_b32 v{S+1}, v{S+3}", f"v_add_f32 v{S}, v{S}, v{S+2}", f"v_add_f32 v{S+1}, v{S+1}, v{S+3}",
                 f"v_mul_f32 v{S}, 0xba800000, v{S}", f"v_mul_f32 v{S+1}, 0x3a800000, v{S+1}",
                 f"v_fma_f32 v{S+1}, -v{S}, v{S}, v{S+1}", f"v_max_f32 v{S+1}, 0, v{S+1}", f"v_add_f32 v{S+1}, 0x3727c5ac, v{S+1}", f"v_rsq_f32 v{S+1}, v{S+1}", f"v_mul_f32 v{S}, v{S}, v{S+1}",
                 f"ds_write_b32 v{vTW}, v{S+1}", f"ds_write_b32 v{vTW}, v{S} offset:512"] + ([f"ds_write_b32 v{vCW}, v{vCS + (l & 1)}"] if l >= 2 else [])
            X += chunks(a, L, 2); assert n <= 14
        def piece(f, tag, k=4):
            t = G_(a); f(t); L = t.lines
            X.extend(chunks(a, L[:-3], k) + [lambda: (a.all(L[-3:]), vm.add(tag))])
        if HOT and n == WOHOT:
            def f(a):
                a(f"s_lshr_b32 s{s}, s2, 3"); a(f"s_lshl_b32 s{s}, s{s}, 6"); a(f"s_lshl_b32 s{s+1}, s{sU}, 4"); a(f"s_add_u32 s{s}, s{s}, s{s+1}")
                a(f"v_add_u32 v{S+20}, s{s}, v{vLANE}"); hot_line(a, S + 21, S + 20, sWO)
                a("s_mov_b64 exec, 0xffff"); a(f"buffer_load_dword v{vDUM}, v{S+21}, {sr(sWO)}, 0 offen"); a("s_mov_b64 exec, -1")
            piece(f, ("hot",))
        if HOT and n % 4 == 0 and n + HOTD + 1 <= 16: piece(lambda t: hot_issue(t, l, n + HOTD + 1, 4, S + 21), ("hot",))
        if (l, n) in WARM:
            def f(a):
                a(f"s_lshl_b32 s{s}, s2, 2"); a(f"s_add_u32 s{s}, s{s}, s{sU}"); a(f"s_lshl_b32 s{s}, s{s}, 11"); a(f"v_lshlrev_b32 v{S+20}, 7, v{vLANE}")
                a("s_mov_b64 exec, 0xffff"); a(f"buffer_load_dword v{vDUM}, v{S+20}, {sr(sWO)}, s{s} offen"); a("s_mov_b64 exec, -1")
            piece(f, ("hot",))
        if l == 0 and n == 1:
            def f(a):
                srd(a, 40, pDBG, 256); a(f"s_lshl_b32 s{s}, s{sU}, 20"); a(f"v_mov_b32 v{S+20}, s{s}"); a(f"v_mov_b32 v{S+21}, 1")
                a("s_mov_b64 exec, 1"); a(f"buffer_atomic_add v{S+21}, v{S+20}, {sr(40)}, 0 offen"); a("s_mov_b64 exec, -1")
            piece(f, ("hot",))
        if l == 0 and n in (HPAT, HPAT + 1):
            def f(a):
                a(f"s_lshl_b32 s{s}, s{sRB}, 4"); a(f"s_add_u32 s{s}, s{s}, s{sJ}"); a(f"s_lshl_b32 s{s}, s{s}, 2"); a(f"s_add_u32 s{s}, s{s}, s{sU}"); a(f"s_lshl_b32 s{s}, s{s}, 10"); a(f"s_add_u32 s{s}, s{s}, {HB + (n - HPAT) * MB}")
                a(f"buffer_store_dwordx4 {vr(vPO,4)}, v{vL16}, {sr(sWS)}, s{s} offen sc1")
            piece(f, ("hp",))
        for what, at in (HANDA if A else HANDB):
            if at == n: assert n > NF + 1; X += hand(a, vm, l, what)
        if l < 2 and n <= NR:
            def f():
                e = a.skip_unless("eq", sH, n); t = G_(a); slab_sums(t, WB[n % 3], "r"); a.all(shift(t.lines, 56)); a.label(e)
            X.append(f); late.append(lambda: a("s_waitcnt lgkmcnt(0)"))
        if l < 2 and n == NS: t = G_(a); slab_sums(t, 0, "mw"); X += chunks(a, shift(t.lines, 56), 4)
        for ll, nn, what, lo, cnt in SWARM:
            if (ll, nn) == (l, n): X += chunks(a, swarm(what, lo, cnt), 2)
        if A and n == WOT:
            def f(a):
                a(f"s_and_b32 s{s}, s{sRB}, 1"); a(f"s_lshl_b32 s{s}, s{s}, 2"); a(f"s_add_u32 s{s}, s{s}, s{sU}"); a(f"s_cmp_ge_u32 s{s}, 1"); a(f"s_addc_u32 s{s+1}, s{s}, 6"); a(f"s_cmp_ge_u32 s{s}, 4"); a(f"s_addc_u32 s{s}, s{s+1}, s{sJ}")
                a(f"s_and_b32 s{s}, s{s}, 15"); a(f"s_lshl_b32 s{s}, s{s}, 10"); a(f"s_add_u32 s{s}, s{s}, s{sJ}"); a(f"s_lshl_b32 s{s}, s{s}, 7"); a(f"v_lshlrev_b32 v{S+20}, 11, v{vLANE}")
                a(f"buffer_load_dword v{vDUM}, v{S+20}, {sr(sWO)}, s{s} offen")
            piece(f, ("hot",), 99)
        if l < 2 and n == NP:
            def f(t): u = G_(a); slab_publish(u, l); t.all(shift(u.lines, 56))
            piece(f, ("cs",))
        if l < 2 and n == NP + 2: X.append(lambda: vm.wait(("cs",))); piece(lambda t: slab_post(t, l), ("hot",))
        if l < 2 and n == NCF + 1:
            def chk():
                vm.wait(("CF",)); ok = a.newlabel("Lcsok"); a.flagtest(G + 16, ok); a.poll(vCF, G + 16); a.label(ok)
            X += [chk, lambda: cs_off(a, s + 4, l, 4096, CSP)]
            X += [(lambda i: lambda: (a(f"buffer_load_dwordx4 {vr(G+4*i,4)}, v{vL16}, {sr(sWS)}, s{s+4} offen offset:{i*1024} sc1"), vm.add(("G",))))(i) for i in range(4)]
        if l < 2 and n == NCF + 3:
            L = [f"v_add_f32 v{G+i}, v{G+i}, v{G+8+i}" for i in range(8)] + [f"v_add_f32 v{G+i}, v{G+i}, v{G+4+i}" for i in range(4)]
            L += [f"v_permlane32_swap_b32 v{G}, v{G+2}", f"v_permlane32_swap_b32 v{G+1}, v{G+3}", f"v_add_f32 v{G}, v{G}, v{G+2}", f"v_add_f32 v{G+1}, v{G+1}, v{G+3}",
                  f"v_permlane16_swap_b32 v{G}, v{G+1}", f"v_add_f32 v{vCS+l}, v{G}, v{G+1}", f"ds_write_b32 v{vCW}, v{vCS+l}"]
            X += [lambda: vm.wait(("G",))] + chunks(a, L, 3)
        V = []
        if l and n + 1 <= NF + 3:
            m = n + 1; ok, rt = a.newlabel("Lxok"), a.newlabel("Lxrt")
            rd = [f"ds_read_b32 v{S+16+k}, v{vXV} offset:{(m % 3)*16384 + k*1024}" for k in range(4)]; T = tag_test(S + 16, range(S + 16, S + 20), (l - 1) & 1)
            V = [lambda: (vm.wait(("x", m)), a.all(rd)), lambda: a.all(["s_waitcnt lgkmcnt(0)"] + T), lambda: (a(f"s_cbranch_vccnz {rt}"), a.label(ok))]
            t = G_(a); t.label(rt); t(f"s_mov_b32 s{sT[0]}, 0"); kstage(t, l, m, w=False); t.label(rt + "a"); dma_x(t, l, m); t("s_waitcnt vmcnt(0)"); t.all(rd + ["s_waitcnt lgkmcnt(0)"] + T)
            t(f"s_cbranch_vccz {ok}"); t(f"s_add_u32 s{sT[0]}, s{sT[0]}, 1"); t(f"s_cmp_lt_u32 s{sT[0]}, {SPIN}"); t(f"s_cbranch_scc1 {rt}a"); t(f"s_branch {ok}"); a.tail += t.lines
        gaps = [[] for _ in range(max(1, len(D)))]
        vg = VG if V and n else []
        for g, f in zip(vg, V): gaps[g].append(f)
        free = [g for g in range(len(gaps)) if g not in vg[1:]]; free = free[:-1] or free
        for k, f in enumerate(X): gaps[free[k * len(free) // len(X)]].append(f)
        for k, g in enumerate(gaps):
            if k < len(D): a.all(D[k][0]); vm.add(D[k][1])
            for f in g: f()
        for f in late + ([] if vg else V): f()
        if n == 15: vm.wait(("hp",))
def G_(a):
    t = G(a.stamps); t.newlabel = a.newlabel; t.tail = a.tail
    return t
def shift(lines, d):
    import re
    def one(m): n = int(m.group(1)); return f"v{n + d}" if 24 <= n < 72 else m.group(0)
    def rng(m): p, q = int(m.group(1)), int(m.group(2)); return f"v[{p+d}:{q+d}]" if 24 <= p < 72 else m.group(0)
    return [re.sub(r"\bv(\d+)\b", one, re.sub(r"\bv\[(\d+):(\d+)\]", rng, x)).strip() for x in lines]

def between(a, l, vm):
    s = sT[1]; A = l % 2 == 0
    if A: vm.wo(range(LATE, 32))
    if l == LAST:
        vm.wait_wo(); a("s_barrier"); a("s_barrier"); return
    n = l + 1
    a(f"s_mov_b32 s{sL}, {n}")
    p = (pWB, pWOB) if n & 1 else (pWA, pWOA)
    a(f"s_mov_b32 s{sW}, s{p[0]}"); a(f"s_mov_b32 s{sW+1}, s{p[0]+1}")
    if l == 0:
        setup_w(a, False); setup_x(a, 1); assert 1 in ROTL
        a(f"s_andn2_b32 s{sGO}, s{sRB}, {RG1}"); a(f"s_cmp_eq_u32 s{sGO}, 15"); a(f"s_cselect_b32 s{sGO}, 0, s{sGO}")
        a(f"s_and_b32 s{sH}, s{sRB}, {RG1}"); a(f"s_add_u32 s{sH}, s{sH}, 1"); a(f"s_cmp_eq_u32 s{sRB}, 15"); a(f"s_cselect_b32 s{sH}, 0, s{sH}")
    a(f"v_add_u32 v{vSF}, 8192, v{vSF}")
    if HOT: hot_setup(a, n, S_)
    def batch(k):
        for ll, nn, what, lo, cnt in SWARM:
            if (ll, nn) == (l, 17 + k): a.all(swarm(what, lo, cnt))
        for st in WSCH[l][k]:
            if st == "h":
                if HOT: hot_issue(a, n, int(n in ROTL), HOTD + 1, S_); vm.add(("hot",))
                continue
            assert st <= k
            kstage(a, n, st, x=False); t = G_(a); dma_w(t, WB[st])
            for x in t.lines:
                if "buffer" in x and WP[l] is not None: a(f"s_waitcnt vmcnt({WP[l]})")
                a(x)
            vm.add(("w", st), 6)
    batch(0)
    if not A: vm.wait_wo()
    a.stamp("l_a")
    a("s_barrier")
    batch(1)
    vm.wait_wo()
    a(f"s_mov_b32 s{sWO}, s{p[1]}"); a(f"s_mov_b32 s{sWO+1}, s{p[1]+1}")
    a("s_barrier")
    batch(2)
    vm.wait(("w", 0))
    kstage(a, n, 1, w=False)
    a.stamp("l_b")
    a("s_barrier")
    dma_x(a, n, 1); vm.add(("x", 1), 4)

ACC, FR, AX, AW = 24, 120, 200, 202
def acc(q, i): return ACC + 32 * (q >> 1) + 8 * i + 4 * (q & 1) if q < 4 else ACC + 64 + 16 * (q & 1) + 4 * i
xf = lambda p, i: FR + 40 * p + 4 * i
wf = lambda p, q: FR + 40 * p + 16 + 4 * q
snake = lambda qs: [(q, i if k % 2 == 0 else 3 - i) for k, q in enumerate(qs) for i in range(4)]
VORD = [(4 + (b ^ (i & 1)), i) for i in range(4) for b in range(2)]
ORD = snake([0, 1, 2, 3]) + VORD; KVORD = snake([2, 3]) + VORD; QORD = snake([0, 1])
def g1m(p, order, init=False):
    return [M(acc(q, i), *((wf(p, q), xf(p, i)) if q < 4 else (xf(p, i), wf(p, q))), "0" if init else acc(q, i)) for q, i in order]
def g1r(p, n, ks, qs=range(6)):
    slot = n % 3
    rx = lambda i: f"ds_read_b128 {vr(xf(p,i),4)}, v{AX+ks} offset:{slot*16384 + i*2048}"
    rw = lambda q: [f"ds_read_b64_tr_b16 {vr(wf(p,q)+2*e,2)}, v{AW + (q & 1) + (0 if slot else 2)} offset:{(WB[slot] if slot else 0) + (4*ks + 2*e)*3072 + (q >> 1)*1024}" for e in range(2)]
    qs = list(qs)
    return [rx(0)] + rw(qs[0]) + [rx(1), rx(2), rx(3)] + [x for q in qs[1:] for x in rw(q)]
def stage(a, n, h0=None, h1=None, first=False, bar=1):
    f0 = {k: [x] for k, x in enumerate(g1r(1, n, 1))}
    if first:
        for m, need in ((1, 4), (2, 5), (3, 6), (4, 8), (8, 10), (12, 12), (16, 16)): f0[m - 1].append(f"s_waitcnt lgkmcnt({min(15, 16 - need + m)})")
    else: f0[7].append("s_waitcnt lgkmcnt(8)")
    f0[23] = ["s_waitcnt lgkmcnt(4)"]
    f1 = {bar + 1 + k: [x] for k, x in enumerate(g1r(0, n + 1, 0))}
    f1[bar - 1] = ["s_waitcnt lgkmcnt(0)"]; f1[bar] = ["s_barrier"]
    f1.setdefault(max(22, bar + 17), []).append("s_waitcnt lgkmcnt(4)")
    for f, h in ((f0, h0), (f1, h1)):
        for g, L in (h or {}).items(): f.setdefault(g, []).extend(L)
    weave(a, g1m(0, ORD, first), f0); weave(a, g1m(1, ORD), f1)
AB, CK, CQ, CV, TA, MD = 206, 214, 192, 230, 248, 252
VT = {3: 232, 2: 240, 1: 144, 0: 152}; TM = 184
SD, SQ, SFA = 206, 230, 236
BD, ONE = 222, 226
def c_setup(a, first):
    s = sT[1]
    a(f"s_lshr_b32 s{s}, s{sWID}, 1"); a(f"s_lshl_b32 s{s}, s{s}, 13"); a(f"s_add_u32 s{s}, s{s}, {XB[0]}")
    if not first: a(f"v_add_u32 v{AX}, s{s}, v{vL16}"); a(f"v_add_u32 v{AX+1}, 1024, v{AX}"); return
    a(f"v_and_b32 v{AX}, 15, v{vLANE}"); a(f"v_bfe_u32 v{AX+1}, v{vLANE}, 1, 3"); a(f"v_lshrrev_b32 v{AW}, 4, v{vLANE}"); a(f"v_xor_b32 v{AX+1}, v{AX+1}, v{AW}")
    a(f"v_lshlrev_b32 v{AX}, 7, v{AX}"); a(f"v_lshlrev_b32 v{AX+1}, 4, v{AX+1}"); a(f"v_add3_u32 v{AX}, v{AX}, v{AX+1}, s{s}"); a(f"v_xor_b32 v{AX+1}, 64, v{AX}")
    a(f"s_and_b32 s{s+1}, s{sWID}, 1"); a(f"s_lshl_b32 s{s+2}, s{s+1}, 6"); a(f"v_xor_b32 v{AW}, s{s+2}, v{vTR}")
    a(f"v_lshrrev_b32 v{AW+1}, 5, v{vLANE}"); a(f"v_mul_u32_u24 v{AW+1}, 3072, v{AW+1}"); a(f"v_add_u32 v{AW}, v{AW}, v{AW+1}"); a(f"v_xor_b32 v{AW+1}, 32, v{AW}")
    for k in range(2): a(f"v_add_u32 v{AW+2+k}, {WB[0]}, v{AW+k}")
    a(f"s_lshr_b32 s{s}, s{sWID}, 1"); a(f"s_lshl_b32 s{s}, s{s}, 8"); a(f"s_add_u32 s{s}, s{s}, {TAB}"); a(f"s_lshl_b32 s{s+1}, s{s+1}, 7"); a(f"s_add_u32 s{s+1}, s{s+1}, {TAB+1024}")
    a(f"v_and_b32 v{TA+3}, 15, v{vLANE}"); a(f"v_and_b32 v{TA+2}, 48, v{vLANE}")
    a(f"v_lshl_add_u32 v{TA}, v{TA+3}, 2, s{s}"); a(f"v_add_u32 v{TA+1}, s{s}, v{TA+2}"); a(f"v_add_u32 v{TA+2}, s{s+1}, v{TA+2}"); a(f"v_lshl_add_u32 v{TA+3}, v{TA+3}, 2, s{s+1}")
def stat_mfma():
    L = []
    for ks in range(2):
        for t in range(2):
            x = XRES + 8 * t + 4 * ks
            L += [M(SD + 8 * t, ONE, x, SD + 8 * t if ks else "0"), M(SD + 8 * t + 4, x, x, SD + 8 * t + 4 if ks else "0")]
    return L
o_first = lambda: [f"s_add_u32 s{sT[5]}, s{sTILE}, {OB}"] + [f"buffer_store_dwordx4 {vr(240,4)}, v{vL16}, {sr(sWS)}, s{sT[5]} offen offset:{k*1024} sc1" for k in range(4)]
def epi_qk(seg, i, cs):
    r = acc(2 * seg, i); ab = AB + 2 * i; L = []
    for p in range(4):
        t = TM + 2 * p
        L += [f"v_pk_mul_f32 {vr(t,2)}, {vr(cs+2*p,2)}, {vr(ab,2)} op_sel:[0,1] op_sel_hi:[1,1]", f"v_pk_fma_f32 {vr(t,2)}, {vr(r+2*p,2)}, {vr(ab,2)}, {vr(t,2)} op_sel_hi:[1,0,1]",
              f"v_cvt_pk_bf16_f32 v{r+p}, v{t}, v{t+1}"]
    return L
vout = lambda b, i: acc(4 + b, 0) + 8 + 2 * i
def epi_v(i):
    L = []
    for b in range(2):
        for p in (1, 0):
            t = TM + 2 * (2 * b + p); r = acc(4 + b, i) + 2 * p
            L += [f"v_pk_mul_f32 {vr(t,2)}, {vr(VT[i]+4+2*p,2)}, {vr(CV,2)} op_sel:[0,{b}] op_sel_hi:[1,{b}]", f"v_pk_fma_f32 {vr(t,2)}, {vr(r,2)}, {vr(VT[i]+2*p,2)}, {vr(t,2)}",
                  f"v_cvt_pk_bf16_f32 v{vout(b,i)+p}, v{t}, v{t+1}"]
    return L
def consumer(a):
    s = sT[1]
    a("s_barrier")
    a.stamp("g1start")
    a.all(g1r(0, 0, 0)); a("s_waitcnt lgkmcnt(13)")
    ex = []
    for t in range(2):
        d = SD + 8 * t + 4
        ex += [f"v_cndmask_b32 v{d}, v{d}, v{d+1}, {sr(mB0,2)}", f"v_cndmask_b32 v{d+2}, v{d+2}, v{d+3}, {sr(mB0,2)}", f"v_mov_b32 v{SQ+2*t}, v{d-4}", f"v_cndmask_b32 v{SQ+2*t+1}, v{d}, v{d+2}, {sr(mB1,2)}"]
    ex += [f"v_and_b32 v{SFA+1}, 0xf0, v{vL16}", f"s_lshr_b32 s{s}, s{sTILE}, 4"]
    h0 = {}; spread(h0, [ex[k:k+2] for k in range(0, len(ex), 2)], range(16, 23))
    t = G_(a); t("s_mov_b32 exec_lo, 0x00f0000f"); t("s_mov_b32 exec_hi, 0xf0000f00")
    t.bymode([f"buffer_store_dwordx4 {vr(SQ,4)}, v{SFA+1}, {sr(sWS)}, s{s} offen"]); t("s_mov_b64 exec, -1")
    h1 = {1: [x.strip() for x in t.lines]}
    if OP0:
        t = G_(a); e = t.skip_unless("eq", sL, 0); t.all(o_first()); t.label(e); h1[BAR0 - 2] = [x.strip() for x in t.lines]
    stage(a, 0, h0, h1, first=True, bar=BAR0)
    p0, p1 = post_l(SFA, SFA - 2, fl="")
    h0 = {}; spread(h0, [f"s_lshr_b32 s{s}, s{sTILE}, 9", f"s_lshl_b32 s{s+1}, s{sL}, 13", f"s_add_u32 s{s}, s{s}, s{s+1}", f"s_add_u32 s{s}, s{s}, {SFL}", f"v_mov_b32 v{SFA}, s{s}"] + p0, range(16, 23))
    t = G_(a); t("s_waitcnt vmcnt(0)"); t(p1[0]); t.bymode([p1[1]]); t(p1[2])
    stage(a, 1, h0, {19: [x.strip() for x in t.lines], 21: [f"s_mov_b32 s{sCNT}, 0"]})
    a(".p2align 3")
    a.label("L_cloop")
    stage(a, 2); stage(a, 3); stage(a, 4, None, {19: [f"s_add_u32 s{sCNT}, s{sCNT}, 1"], 20: [f"s_cmp_lt_u32 s{sCNT}, 4"], 23: ["s_cbranch_scc1 L_cloop"]})
    stage(a, 14, {17: [f"v_mov_b32 v{MD}, {TAB+1792}"]})
    f = {k: [x] for k, x in enumerate(g1r(1, 15, 1, [2, 3, 4, 5, 0, 1]))}
    f[7].append("s_waitcnt lgkmcnt(8)"); f[15].append("s_waitcnt lgkmcnt(8)")
    weave(a, g1m(0, KVORD), f)
    ab = lambda i: f"ds_read2_b32 {vr(AB+2*i,2)}, v{TA} offset0:{16*i} offset1:{128+16*i}"
    vt = lambda i: [f"ds_read_b128 {vr(VT[i]+4*k,4)}, v{TA+1} offset:{k*512 + i*64}" for k in range(2)]
    cs = lambda d, seg: [f"ds_read_b128 {vr(d+4*b,4)}, v{TA+2} offset:{seg*256 + b*64}" for b in range(2)]
    tr = [ab(3)] + cs(CK, 1) + [f"ds_read2_b32 {vr(CV,2)}, v{TA+3} offset0:128 offset1:144"] + vt(3) + [ab(2)] + vt(2) + [ab(1)] + vt(1) + [ab(0)] + vt(0) + cs(CQ, 0) + [f"ds_read_b32 v{MD}, v{MD}"]
    f = {k: [x] for k, x in enumerate(tr[:15])}; f[15] = tr[15:]
    f[4].append("s_waitcnt lgkmcnt(5)"); f[5].append("s_barrier")
    f[12].append(f"s_bitcmp1_b32 s{sL}, 0")
    weave(a, g1m(1, KVORD), f)
    a.stamp("g1kv")
    a("s_cbranch_scc1 L_tailB")

def q_scale(): return [f"s_mov_b32 s{sT[9]}, {QSCALE}"] + [f"v_mul_f32 v{AB+k}, s{sT[9]}, v{AB+k}" for k in range(8)]
Qr = lambda t: acc(0, 2 + t)
Kr = lambda par, c: acc(2, 2 * (1 - par) + c)
Vr = lambda par, b: vout(b, 2 * (1 - par))
SS, PP, OO, LL, BO, AD, MI = 120, 136, 144, 160, 236, 244, 245
def masks_A():
    L = []
    for r in range(4): L += [f"v_subrev_u32 v{BD+r}, {r}, v{vD0}", f"v_ashrrev_i32 v{BD+r}, 31, v{BD+r}", f"v_and_b32 v{BD+r}, {BIG}, v{BD+r}"]
    return L
ones = lambda val="0x3f803f80": [f"v_mov_b32 v{ONE+k}, {val}" for k in range(4)]
def blocks(kind, t):
    if kind == "diag": return [(0, BD)] if t == 0 else [(0, "0"), (1, BD)]
    if kind == "old": return [(0, BO), (1, "0")] if t == 0 else [(1, BO)]
    return [(0, "0"), (1, "0")]
def s_mf(kind, par, t): return [M(SS + 8 * t + 4 * c, Kr(par, c), Qr(t), C) for c, C in blocks(kind, t)]
def pv_mf(par, t, init=False):
    return [M(OO + 8 * t + 4 * b, Vr(par, b), PP + 4 * t, "0" if init else OO + 8 * t + 4 * b) for b in range(2)] + [M(LL + 4 * t, ONE, PP + 4 * t, "0" if init else LL + 4 * t)]
def kv_rd(par, off, what):
    R = Kr if what == "K" else Vr; o = off + (0 if what == "K" else 2048)
    return [f"ds_read_b128 {vr(R(par,k),4)}, v{AD} offset:{o + k*1024}" for k in range(2)]
def half(a, kind, t, nxt, pv, rd=(), top=(), mid=(), early=False):
    valu = []; cs = [c for c, _ in blocks(kind, t)]
    for c in cs:
        s = SS + 8 * t + 4 * c; p = PP + 4 * t + 2 * c
        valu += [f"v_exp_f32 v{s}, v{s}", f"v_exp_f32 v{s+1}, v{s+1}", f"v_exp_f32 v{s+2}, v{s+2}", f"v_cvt_pk_bf16_f32 v{p}, v{s}, v{s+1}", f"v_exp_f32 v{s+3}, v{s+3}", None, f"v_cvt_pk_bf16_f32 v{p+1}, v{s+2}, v{s+3}"]
    if len(cs) == 2: valu[5] = valu.pop(7)
    else: z = PP + 4 * t + 2 * (1 - cs[0]); valu[5] = f"v_mov_b32 v{z}, 0"; valu.insert(2, f"v_mov_b32 v{z+1}, 0")
    valu = [x for x in valu if x]
    mf = list(nxt) + list(pv); a.all(top)
    at = ATAT if len(valu) > 8 else [0, 1, 3, 4, 5]
    ins = {}
    for k, x in enumerate(mf): ins.setdefault(at[k], []).append(x)
    rd = list(rd)
    for k in range(len(rd)): ins.setdefault(at[k if early else max(0, len(mf) - len(rd) + k)], []).append(rd[k])
    for k, x in enumerate(mid): ins.setdefault(at[min(len(mf) - 1, (2 + k) if early else k)], []).extend(x)
    for k, x in enumerate(valu): a.all(ins.get(k, [])); a(x)
def local_steps(a, T, have, init, hook=None):
    off = lambda s: (3 - s) * 8192
    kind = lambda s: "diag" if s == 0 else "full"
    a.all(s_mf("diag", 0, 0))
    for s in range(T + 1):
        par = s & 1; more = have <= s + 1 <= T
        half(a, kind(s), 0, s_mf(kind(s), par, 1), pv_mf(par ^ 1, 1, init and s == 1) if s else [], kv_rd(par ^ 1, off(s + 1), "K") if more else [], early=True)
        half(a, kind(s), 1, s_mf("full", par ^ 1, 0) if s < T else [], pv_mf(par, 0, init and s == 0), kv_rd(par ^ 1, off(s + 1), "V") if more else [], top=["s_waitcnt lgkmcnt(0)"] if s + 1 >= have else [])
        if hook and s == hook[0]: a.all(hook[1])
RTILE = [3, 2, 1, 0, 3, 2, 1, 0]
def fetch(F, steps):
    s = sT[1]; back = None; out = []
    for n in steps:
        L = []
        if back != 1 + (n >> 2):
            back = 1 + (n >> 2)
            L += [f"s_and_b32 s{s}, s{sKVS}, {~0x6000 & 0xffffffff}", f"s_sub_u32 s{s}, s{s}, {back << 19}", f"s_cmp_lt_u32 s{sRB}, {back}", f"s_cselect_b32 s{s}, {OOB}, s{s}",
                  f"v_add_u32 v{F}, s{s}, v{vL16}", f"s_and_b32 s{s+1}, s{sKVS}, 4096"]
        L += [f"s_add_u32 m0, s{s+1}, {REM + n*8192}", f"s_mov_b32 s{s}, {RTILE[n]*8192}"]
        for k in range(4): out.append(L + [f"buffer_load_dwordx4 v{F}, {sr(sWS)}, s{s} offen offset:{k*1024} sc1 lds"]); L = []
    return out
def before_Z():
    s = sT[1]
    return [f"s_and_b32 s{s}, s{sKVS}, 4096", f"s_add_u32 s{s}, s{s}, {REM}", f"v_add_u32 v{AD}, s{s}, v{vL16}"] + [f"v_xor_b32 v{BO+r}, {BIG}, v{BD+r}" for r in range(4)]
def w_touch(k, v):
    s = sT[1]
    return [f"s_mov_b32 s40, s{pWB}", f"s_mov_b32 s41, s{pWB+1}", "s_mov_b32 s42, 6291456", "s_mov_b32 s43, 0x00020000",
            f"s_and_b32 s{s}, s{sRB}, 1", f"s_lshl_b32 s{s}, s{s}, 2", f"s_add_u32 s{s}, s{s}, s{sU}", f"s_mul_i32 s{s}, s{s}, 36", f"s_mul_i32 s{s+1}, s{sJ}, 192", f"s_add_u32 s{s}, s{s}, s{s+1}", f"s_add_u32 s{s}, s{s}, {288*k}",
            f"v_add_u32 v{v}, s{s}, v{vLANE}", f"v_subrev_u32 v{v+1}, 3072, v{v}", f"v_min_u32 v{v}, v{v}, v{v+1}", f"v_lshlrev_b32 v{v}, 11, v{v}", f"s_lshl_b32 s{s}, s{sJ}, 7",
            "s_mov_b32 exec_hi, 15", f"buffer_load_dword v{vDUM}, v{v}, s[40:43], s{s} offen", "s_mov_b64 exec, -1"]
def remote_steps(a, T):
    R = 8 - T; vm = VM(a); par = lambda r: (T + 1 + r) & 1; kind = lambda r: "old" if r == R - 1 else "full"
    X = {}
    if T >= 2:
        F = fetch(MI, [T + 2, T + 4]); wo = lambda L: [(wo_one(st), ("wo", st)) for st in L]
        X[-1] = [(x, ("kv",)) for x in F[:F2A]]
        def deal(L, h0, h1):
            for k, x in enumerate(L): X.setdefault(h0 + k * (h1 - h0) // len(L), []).append(x)
        if F2A < 8: deal([(x, ("kv",)) for x in F[F2A:]], 0, 2)
        early = {st for L in WOA + [WOY] for st in L}
        deal(wo([st for st in range(12, 26) if st not in early]), 2, 6); deal(wo(range(26, LATE)) + [(w_touch(k, MI), ("t",)) for k in range(WT)], 6, 9); assert 28 <= LATE <= 30
    def ex(h):
        for x, tag in X.get(h, []): vm.add(tag)
        return [x for x, _ in X.get(h, [])]
    a.all(kv_rd(par(0), 0, "K") + kv_rd(par(0), 0, "V"))
    for x in ex(-1): a.all(x)
    a("s_waitcnt lgkmcnt(2)"); a.all(s_mf("full", par(0), 0))
    for r in range(R):
        p = par(r); more = r + 1 < R
        if r == 1:
            if T == 0: a("s_waitcnt vmcnt(0)")
            a("s_barrier"); a.stamp("l_a")
        if r == 3:
            vm.wait(("kv",)); a("s_barrier"); a.stamp("Z2")
        half(a, kind(r), 0, s_mf(kind(r), p, 1), pv_mf(p ^ 1, 1), kv_rd(p ^ 1, (r + 1) * 8192, "K") if more else [], mid=ex(2 * r), early=True)
        if r in (0, 4): e = a.skip_unless("eq", sRB, r >> 2); a.all(ones("0")); a.label(e)
        half(a, kind(r), 1, s_mf(kind(r + 1), p ^ 1, 0) if more else [], pv_mf(p, 0), kv_rd(p ^ 1, (r + 1) * 8192, "V") if more else [], mid=ex(2 * r + 1), top=["s_waitcnt lgkmcnt(0)"])
    assert par(R - 1) == 0
    a("s_branch L_afin")
def finish_A(a):
    s = sT[1]; R = MI
    fin = lambda t: [f"v_rcp_f32 v{R+t}, v{LL+4*t}"] + [f"v_mul_f32 v{OO+8*t+k}, v{OO+8*t+k}, v{R+t}" for k in range(8)] + pack(OO + 8*t, OO + 8*t, 0, R + 2)
    a.all(fin(0)); a(M(SS, ONE, OO, "0")); a.all(fin(1)); a(M(SS, ONE, OO + 8, SS))
    a(f"v_max_f32 v{R}, v{LL}, v{LL+4}"); a(f"v_min_f32 v{R+1}, v{LL}, v{LL+4}")
    a(f"v_cmp_nge_f32 vcc, 0x5d800000, v{R}"); a(f"s_mov_b64 {sr(s+1,2)}, vcc"); a(f"v_cmp_nle_f32 vcc, 0x21800000, v{R+1}"); a(f"s_or_b64 {sr(s+1,2)}, vcc, {sr(s+1,2)}")
    a(f"v_mov_b32 v{R}, 0x207"); a(f"v_cmp_class_f32 vcc, v{SS}, v{R}"); a(f"s_or_b64 vcc, vcc, {sr(s+1,2)}")
    if FORCE_EXACT: a("s_mov_b64 vcc, -1")
    a("s_cbranch_vccnz L_exact")
    a.label("L_ostore")
    a.bymode([f"buffer_store_dwordx4 {vr(OO+8*t,4)}, v{vL16}, {sr(sWS)}, s{sOA} offen offset:{t*1024}" for t in range(2)])
    t = G_(a); exact_A(t); t.all(fin(0) + fin(1)); t("s_branch L_ostore"); a.tail += t.lines
def kv_flag_addr(a, v, t):
    s = sT[1]
    a(f"s_and_b32 s{s}, s{sKF}, 0xfffff00f"); a(f"s_sub_u32 s{s}, s{s}, 256"); a(f"v_and_b32 v{t}, 16, v{vL16}"); a(f"v_add_u32 v{t}, s{s}, v{t}"); assert KVFL % 4096 == 0
    a(f"v_bfe_u32 v{v}, v{vLANE}, 1, 1"); a(f"v_sub_u32 v{v}, s{sRB}, v{v}"); a(f"v_max_i32 v{v}, 1, v{v}"); a(f"v_lshl_add_u32 v{v}, v{v}, 8, v{t}")
def exact_A(a):
    s = sT[1]; D, MX, BG, T_ = MI + 2, MI, 168 + 12, 168 + 13
    sN, sI, sP = sT[12], sT[13], sT[11]
    a.label("L_exact")
    a(f"s_lshl_b32 s{sN}, s{sRB}, 2"); a(f"s_add_u32 s{sN}, s{sN}, s{sT32}")
    a(f"s_mov_b32 s{sP}, 0"); a.all(ones()); a(f"v_mov_b32 v{BG}, {BIG}"); a(f"v_mov_b32 v{MX}, {BIG}"); a(f"v_mov_b32 v{MX+1}, {BIG}")
    if DIAG: srd(a, 40, pDBG, 256); a(f"v_mov_b32 v{T_}, 4"); a(f"v_mov_b32 v{D}, 1"); a("s_mov_b64 exec, 1"); a(f"buffer_atomic_add v{D}, v{T_}, {sr(40)}, 0 offen"); a("s_mov_b64 exec, -1")
    for r in range(OO, LL + 8): a(f"v_mov_b32 v{r}, 0")
    a.label("L_expass")
    a(f"s_mov_b32 s{sI}, 0"); a(f"v_mov_b32 v{D}, v{vD0}")
    a.label("L_exstep")
    a(f"s_sub_u32 s{s}, s{sN}, s{sI}"); a(f"s_lshr_b32 s{s+1}, s{s}, 2"); a(f"s_lshl_b32 s{s+1}, s{s+1}, 19"); a(f"s_and_b32 s{s}, s{s}, 3"); a(f"s_lshl_b32 s{s}, s{s}, 13"); a(f"s_add_u32 s{s}, s{s}, s{s+1}")
    a(f"s_lshl_b32 s{s+1}, s{sJ}, 15"); a(f"s_add_u32 s{s}, s{s}, s{s+1}"); a(f"s_and_b32 s{s+1}, s{sWID}, 1"); a(f"s_lshl_b32 s{s+1}, s{s+1}, 12"); a(f"s_add_u32 s{s}, s{s}, s{s+1}"); a(f"s_add_u32 s{s}, s{s}, {KV}")
    a(f"s_lshl_b32 s{s+1}, s{sL}, 22"); a(f"s_add_u32 s{s}, s{s}, s{s+1}")
    for k, d in enumerate((Kr(0, 0), Kr(0, 1), Vr(0, 0), Vr(0, 1))): a(f"buffer_load_dwordx4 {vr(d,4)}, v{vL16}, {sr(sWS)}, s{s} offen offset:{k*1024} sc1")
    a("s_waitcnt vmcnt(0)")
    a.all(s_mf("full", 0, 0) + s_mf("full", 0, 1))
    for t in range(2):
        for c in range(2):
            for r in range(4):
                x = SS + 8 * t + 4 * c + r
                a(f"v_add_u32 v{T_}, {(16*t - 16*c - r) & 0xffffffff if 16*t - 16*c - r < -16 else 16*t - 16*c - r}, v{D}"); a(f"v_cmp_gt_u32 vcc, 0x100, v{T_}"); a(f"v_cndmask_b32 v{x}, v{BG}, v{x}, vcc")
    a(f"s_cmp_lg_u32 s{sP}, 0"); a("s_cbranch_scc1 L_exp2")
    for t in range(2):
        for k in range(0, 8, 2): a(f"v_max3_f32 v{MX+t}, v{MX+t}, v{SS+8*t+k}, v{SS+8*t+k+1}")
    a("s_branch L_exnext")
    a.label("L_exp2")
    for k in range(16): a(f"v_sub_f32 v{SS+k}, v{SS+k}, v{MX+(k>>3)}")
    for k in range(16): a(f"v_exp_f32 v{SS+k}, v{SS+k}")
    for k in range(8): a(f"v_cvt_pk_bf16_f32 v{PP+k}, v{SS+2*k}, v{SS+2*k+1}")
    a.all(pv_mf(0, 0) + pv_mf(0, 1))
    a.label("L_exnext")
    a(f"v_add_u32 v{D}, 32, v{D}"); a(f"s_add_u32 s{sI}, s{sI}, 1"); a(f"s_min_u32 s{s}, s{sN}, 8"); a(f"s_cmp_le_u32 s{sI}, s{s}"); a("s_cbranch_scc1 L_exstep")
    for w in (32, 16):
        for t in range(2): a(f"v_mov_b32 v{T_}, v{MX+t}"); a(f"v_permlane{w}_swap_b32 v{MX+t}, v{T_}"); a(f"v_max_f32 v{MX+t}, v{MX+t}, v{T_}")
    a(f"s_add_u32 s{sP}, s{sP}, 1"); a(f"s_cmp_lt_u32 s{sP}, 2"); a("s_cbranch_scc1 L_expass")

def tail_A(a):
    s = sT[1]; FA, FD, WA, QA = 245, 246, 253, 254
    st = lambda r, t, k: f"buffer_store_dwordx4 {vr(r,4)}, v{vL16}, {sr(sWS)}, s{s if t else sKVS} offen offset:{k*1024} sc1"
    a(f"s_add_u32 s{s}, s{sKVS}, 8192"); a("s_waitcnt lgkmcnt(9)")
    for t in (1, 0):
        a.all(epi_qk(1, 2*t+1, CK)); a(st(acc(2, 2*t+1), t, 1)); a.all(epi_v(2*t+1))
        a.all(epi_qk(1, 2*t, CK)); a(st(acc(2, 2*t), t, 0)); v = epi_v(2*t)
        a.all(v[:6]); a(st(vout(0, 2*t), t, 2)); a.all(v[6:]); a(st(vout(1, 2*t), t, 3))
        if t: a("s_waitcnt lgkmcnt(0)")
    a.stamp("epi")
    e = a.skip_unless("eq", sL, 0); a(f"v_readfirstlane_b32 s{sFAST}, v{MD}"); a.label(e)
    a(f"s_and_b32 s{s}, s{sKVS}, 0x7fff"); a(f"s_add_u32 s{s}, s{s}, {OWN}"); a(f"v_add_u32 v{WA}, s{s}, v{vL16}"); assert KV % 32768 == 0
    wr = lambda t: [f"ds_write_b128 v{WA}, {vr(r,4)} offset:{t*8192 + k*1024}" for k, r in enumerate((acc(2, 2*t), acc(2, 2*t+1), vout(0, 2*t), vout(1, 2*t)))]
    p0, p1 = post_l(FA, FD)
    qa = [f"s_xor_b32 s{s+1}, s{sWID}, 2", f"s_lshl_b32 s{s+1}, s{s+1}, 11", f"s_add_u32 s{s+1}, s{s+1}, {QX}", f"v_add_u32 v{QA}, s{s+1}, v{vL16}"]
    a(f"s_cmp_ge_u32 s{sWID}, 2"); a("s_cbranch_scc1 L_tailA3")
    for T in (1, 3):
        if T == 3: a.label("L_tailA3")
        W = wr(0) + (wr(1) if T == 1 else [])
        X = q_scale() + qa + [f"v_mov_b32 v{FA}, s{sKF}"] + p0
        f = {}; spread(f, W, range(0, 16, 2))
        free = [g for g in range(16) if g not in f]; per = -(-len(X) // len(free))
        spread(f, [X[k:k+per] for k in range(0, len(X), per)], free)
        weave(a, g1m(0, QORD) + g1m(1, QORD), f)
        a.stamp("qmm")
        for i in range(2): a.all(epi_qk(0, i, CQ)); a(f"ds_write_b128 v{QA}, {vr(acc(0,i),4)} offset:{i*1024}")
        a.all(epi_qk(0, 2, CQ))
        if T == 3: a(f"v_subrev_u32 v{AD}, {2*8192}, v{WA}")
        a.all(epi_qk(0, 3, CQ))
        a("s_waitcnt lgkmcnt(0)"); a("s_barrier")
        a.stamp("Y")
        local_steps(a, T, 2, True, (min(T, F1AT), ["s_waitcnt vmcnt(0)"] + p1))
        a.stamp("loc")
        a.all(before_Z())
        a("s_barrier")
        a.stamp("Z")
        remote_steps(a, T)
def att_A_loader(a):
    s = sT[1]; F = 180
    a.all(ones())
    for r in range(OO, LL + 8): a(f"v_mov_b32 v{r}, 0")
    a(f"s_lshl_b32 s{s}, s{sU}, 11"); a(f"s_add_u32 s{s}, s{s}, {QX}"); a(f"v_add_u32 v{MI}, s{s}, v{vL16}")
    a(f"s_lshl_b32 s{s}, s{sT32}, 1"); a(f"s_and_b32 s{s+1}, s{sU}, 1"); a(f"s_add_u32 s{s}, s{s}, s{s+1}"); a(f"s_lshl_b32 s{s}, s{s}, 12"); a(f"s_add_u32 s{s}, s{s}, {OWN - 3*8192}"); a(f"v_add_u32 v{AD}, s{s}, v{vL16}")
    qrd = [f"ds_read_b128 {vr(Qr(t),4)}, v{MI} offset:{t*1024}" for t in range(2)]
    a(f"s_cmp_eq_u32 s{sT32}, 0"); a("s_cbranch_scc1 L_attA0")
    a("s_barrier")
    a.stamp("Y")
    a.all(qrd + kv_rd(0, 3*8192, "K") + kv_rd(0, 3*8192, "V")); a("s_waitcnt lgkmcnt(2)")
    woy = [x for st in WOY for x in wo_one(st)]
    local_steps(a, 2, 1, False, (1, woy))
    a.stamp("loc")
    a.all(before_Z()); a("s_barrier")
    a.stamp("Z")
    remote_steps(a, 2)
    a.label("L_attA0")
    if ZPRIO: a(f"s_setprio {ZPRIO}")
    kv_flag_addr(a, vKF, F)
    if PREP: a.flagload(F, vKF)
    a("s_barrier")
    a.stamp("Y")
    a.all(qrd + kv_rd(0, 3*8192, "K") + kv_rd(0, 3*8192, "V"))
    a("s_waitcnt lgkmcnt(2)")
    local_steps(a, 0, 1, False, (0, woy))
    a.stamp("loc")
    e = a.skip_unless("lg", sRB, 0)
    if PREP: a("s_waitcnt vmcnt(0)"); a.flagtest(F, e)
    a.poll(vKF, F); a.label(e)
    a.stamp("epi")
    for x in fetch(F + 4, [0, 1, 2, 3]): a.all(x)
    a.all(before_Z()); a("s_waitcnt vmcnt(8)"); a("s_barrier")
    a.stamp("Z")
    remote_steps(a, 0)

def lane_mask(f): return sum(1 << l for l in range(64) if f(l & 15, l >> 4))
def tail_B(a):
    s = sT[1]; HK, HV, HA, MK, B0 = 244, 240, 253, 232, 236
    KK = lambda i: acc(2, i) if i >= 0 else HK
    a.label("L_tailB")
    a(f"s_lshl_b32 s{s}, s{sL}, 3"); a(f"s_andn2_b32 s{s}, s{s}, 15"); a(f"s_add_u32 s{s}, s{s}, s{sRB}"); a(f"s_lshl_b32 s{s}, s{s}, 4"); a(f"s_add_u32 s{s}, s{s}, s{sJ}"); a(f"s_lshl_b32 s{s}, s{s}, 1")
    a("s_waitcnt lgkmcnt(9)")
    a.all(epi_qk(1, 3, CK))
    a(f"s_and_b32 s{s+1}, s{sWID}, 1"); a(f"s_add_u32 s{s}, s{s}, s{s+1}"); a(f"s_lshl_b32 s{s}, s{s}, 11"); a(f"s_add_u32 s{s}, s{s}, {HB}")
    a.all(epi_v(3))
    HO = VT[3]; a(clean(KK(3))); a(clean(HO, vout(0, 3))); a(f"v_mov_b32 v{HO+1}, v{vout(0,3)+1}"); a(f"v_mov_b32 v{HO+2}, v{vout(1,3)}"); a(f"v_mov_b32 v{HO+3}, v{vout(1,3)+1}")
    a(f"s_lshl_b32 s{s+1}, s{s+1}, 11"); a(f"s_add_u32 s{s+1}, s{s+1}, {HX}"); a(f"v_add_u32 v{HA}, s{s+1}, v{vL16}")
    up, on = a.newlabel("Lup"), a.newlabel("Lon")
    a(f"s_cmp_ge_u32 s{sWID}, 2"); a(f"s_cbranch_scc1 {up}")
    a(f"ds_write_b128 v{HA}, {vr(KK(3),4)}"); a(f"ds_write_b128 v{HA}, {vr(HO,4)} offset:1024")
    a(f"s_sub_u32 s{s}, s{s}, 65536"); a(f"s_cmp_eq_u32 s{sRB}, 0"); a(f"s_cselect_b32 s{sCNT}, {OOB}, s{s}"); a(f"s_cselect_b32 s{s+2}, {BIG}, 0")
    a(f"s_branch {on}")
    a.label(up)
    a(f"buffer_store_dwordx4 {vr(KK(3),4)}, v{vL16}, {sr(sWS)}, s{s} offen sc1"); a(f"buffer_store_dwordx4 {vr(HO,4)}, v{vL16}, {sr(sWS)}, s{s} offen offset:1024 sc1")
    a(f"s_mov_b32 s{s+2}, 0")
    a.label(on)
    a.all(epi_v(2) + epi_qk(1, 2, CK)); a("s_waitcnt lgkmcnt(0)")
    for i in (1, 0): a.all(epi_qk(1, i, CK) + epi_v(i))
    a.stamp("epi")
    X = q_scale() + [f"v_mov_b32 v{B0+k}, s{s+2}" for k in range(4)]
    X += [f"v_mov_b32 v{MK+2}, 0xffff", f"v_mov_b32 v{MK+3}, 0xffff0000", f"v_cndmask_b32 v{MK+3}, v{MK+2}, v{MK+3}, {sr(mB0,2)}", f"v_cndmask_b32 v{MK}, 0, v{MK+3}, {sr(mP0,2)}", f"v_cndmask_b32 v{MK+1}, 0, v{MK+3}, {sr(mP1,2)}",
          f"v_xor_b32 v{MK+2}, v{MK}, v{MK+3}", f"v_xor_b32 v{MK+3}, v{MK+1}, v{MK+3}"]
    X += [f"s_sub_u32 s{s+1}, s{sOA}, 65536"]
    f = {}; spread(f, [X[k:k+2] for k in range(0, len(X), 2)], range(0, 15)); f.setdefault(14, []).append("s_barrier")
    weave(a, g1m(0, QORD) + g1m(1, QORD), f)
    a.stamp("qmm")
    hl = [f"buffer_load_dwordx4 {vr(HK,4)}, v{vL16}, {sr(sWS)}, s{sCNT} offen sc1", f"buffer_load_dwordx4 {vr(HV,4)}, v{vL16}, {sr(sWS)}, s{sCNT} offen offset:1024 sc1"]
    def halo():
        up, on = a.newlabel("Lup"), a.newlabel("Lon")
        a(f"s_cmp_ge_u32 s{sWID}, 2"); a(f"s_cbranch_scc1 {up}"); a.all(hl); a(f"s_branch {on}")
        a.label(up); a(f"ds_read_b128 {vr(HK,4)}, v{HA}"); a(f"ds_read_b128 {vr(HV,4)}, v{HA} offset:1024"); a.label(on)
    for k, i in enumerate((3, 2, 1, 0)):
        if k == HALOAT: halo()
        a.all(epi_qk(0, i, CQ))
    if HALOAT >= 4: halo()
    a.stamp("Y")
    R = lambda i: 120 + 16 * i
    def scores(i): return [M(R(i), KK(i), acc(0, i), "0"), M(R(i) + 4, KK(i - 1), acc(0, i), B0 if i == 0 else "0")]
    def soft(i):
        r = R(i); x, y, m, t = r + 8, r + 9, r + 10, r + 11
        L = [f"v_cndmask_b32 v{r+2*k}, v{r+2*k}, v{r+2*k+1}, {sr(mB0,2)}" for k in range(4)]
        L += [f"v_cndmask_b32 v{x}, v{r}, v{r+4}, {sr(mP0,2)}", f"v_cndmask_b32 v{y}, v{r+2}, v{r+6}, {sr(mP1,2)}", f"v_max_f32 v{m}, v{x}, v{y}"]
        for w in (32, 16): L += [f"v_mov_b32 v{t}, v{m}", f"v_permlane{w}_swap_b32 v{m}, v{t}", f"v_max_f32 v{m}, v{m}, v{t}"]
        L += [f"v_sub_f32 v{x}, v{x}, v{m}", f"v_sub_f32 v{y}, v{y}, v{m}", f"v_exp_f32 v{x}, v{x}", f"v_exp_f32 v{y}, v{y}", f"v_cvt_pk_bf16_f32 v{x}, v{x}, v{x}", f"v_cvt_pk_bf16_f32 v{y}, v{y}, v{y}"]
        L += [f"v_and_b32 v{r+k}, v{MK+k}, v{(x, y)[k & 1]}" for k in range(4)]
        return L
    def prods(i): r = R(i); return [M(r + 4, ONE, r, "0")] + [M(r + 8 + 4 * b, vout(b, i - 1), r, "0") for b in range(2)]
    def fin(i):
        r = R(i)
        return [f"v_rcp_f32 v{r+4}, v{r+4}"] + [f"v_mul_f32 v{r+8+k}, v{r+8+k}, v{r+4}" for k in range(8)] + pack(r, r + 8, 1)
    ost = lambda i: f"buffer_store_dwordx4 {vr(R(i),4)}, v{vL16}, {sr(sWS)}, s{sOA if i >> 1 else s+1} offen offset:{(i & 1)*1024}"
    a.all(scores(3) + scores(2) + scores(1))
    a.all(rr(soft(3), soft(2), soft(1)))
    a.all(prods(3) + prods(2) + prods(1))
    a.all(rr(fin(3), fin(2), fin(1)))
    a.bymode([ost(3), ost(2), ost(1)])
    a.stamp("loc")
    ck, ok, rt = a.newlabel("Lhck"), a.newlabel("Lhok"), a.newlabel("Lhrt")
    a(f"s_mov_b32 s{sT[0]}, 0"); a("s_waitcnt vmcnt(3) lgkmcnt(0)")
    a.label(ck); a.all(poison_test(R(0), [HK, HV])); a(f"s_cbranch_vccnz {rt}"); a.label(ok)
    a.tail += [rt + ":", f"s_add_u32 s{sT[0]}, s{sT[0]}, 1", f"s_cmp_ge_u32 s{sT[0]}, {SPIN}", f"s_cbranch_scc1 {ok}"] + hl + ["s_waitcnt vmcnt(0)", f"s_branch {ck}"]
    a.stamp("Z")
    a.all(scores(0))
    for k in range(4): a(f"v_mov_b32 v{vout(k >> 1, -1) + (k & 1)}, v{HV+k}")
    a.all(soft(0) + prods(0) + fin(0))
    a.bymode([ost(0)])

A0, WF2, OFR, GA, vOB, vCK, vXW, vTG = 24, 56, 104, 206, 214, 216, 240, 241
def gemm2(a):
    s = sT[1]; assert OFR + 16 * NG <= 200
    ofr = lambda g, k: OFR + 16 * (g % NG) + 4 * k
    ld = lambda g, k, so=sGO: f"buffer_load_dwordx4 {vr(ofr(g,k),4)}, v{vOB}, {sr(sWS)}, s{so} offen offset:{k*1024} sc1"
    adv = [f"s_add_u32 s{sGO}, s{sGO}, 4096", f"s_and_b32 s{sGO}, s{sGO}, 0xffff"]
    rd = lambda i: [f"ds_read_b64_tr_b16 {vr(WF2+16*(i%3)+4*cb+2*e,2)}, v{GA + 4*(i >> 4) + cb} offset:{(i & 15)*4096 + e*2048}" for cb in range(4) for e in range(2)]
    def check(g):
        ck, ok = a.newlabel("Lock"), a.newlabel("Look")
        T = tag_test(vCK, [ofr(g, k) for k in range(4)], f"s{sL}")
        a.tail += [ck + ":", f"s_mov_b32 s{sT[0]}, 0", f"s_add_u32 s{s}, s{sJ}, {g}", f"s_and_b32 s{s}, s{s}, 15", f"s_lshl_b32 s{s}, s{s}, 12", ck + "a:"] + [ld(g, k, s) for k in range(4)]
        a.tail += ["s_waitcnt vmcnt(0)"] + T + [f"s_cbranch_vccz {ok}", f"s_add_u32 s{sT[0]}, s{sT[0]}, 1", f"s_cmp_lt_u32 s{sT[0]}, {SPIN}", f"s_cbranch_scc1 {ck}a", f"s_branch {ok}"]
        return T, [f"s_cbranch_vccnz {ck}", ok + ":"]
    a(f"s_and_b32 s{s}, s{sTILE}, 0xffff0000"); a(f"s_add_u32 s{s}, s{s}, {OB}")
    a(f"v_add_u32 v{vOB}, s{s}, v{vL16}"); a(f"s_and_b32 s{sGO}, s{sTILE}, 0xffff")
    for g in range(G2PRE):
        if g: a.all(adv)
        for k in range(4): a(ld(g, k))
        if g == 0:
            a(f"v_lshrrev_b32 v{GA+1}, 5, v{vLANE}"); a(f"v_lshl_add_u32 v{GA}, v{GA+1}, 10, v{vTR}")
            for cb in range(1, 4): a(f"v_xor_b32 v{GA+cb}, {32*cb}, v{GA}")
            a.all(rd(0))
        if g == 1: a.all(rd(1))
    for p in range(16): a(f"v_lshlrev_b32 v{A0+2*p}, 16, v{XRES+p}"); a(f"v_and_b32 v{A0+2*p+1}, 0xffff0000, v{XRES+p}")
    for cb in range(4): a(f"v_add_u32 v{GA+4+cb}, 65536, v{GA+cb}")
    a.all(ones()); c_setup(a, False)
    a(f"s_lshl_b32 s{s}, s{sWID}, 12"); a(f"s_add_u32 s{s}, s{s}, {XB[0]}"); a(f"v_add_u32 v{vXW}, s{s}, v{vL16}")
    a(f"s_waitcnt vmcnt({4*(G2PRE-1)})"); T, B = check(0); a.all(T + ["s_waitcnt lgkmcnt(8)"] + B)
    a.stamp("R")
    nxt = G2PRE; assert 2 <= G2PRE < NG
    for g in range(16):
        mf = []; f = {}
        for h in range(2):
            i = 2 * g + h
            mf += [M(A0 + 16 * t + 4 * cb, WF2 + 16 * (i % 3) + 4 * cb, ofr(g, 2 * h + t), A0 + 16 * t + 4 * cb) for cb in range(4) for t in ((0, 1) if cb % 2 == 0 else (1, 0))]
            if i + 2 < 32: spread(f, rd(i + 2), range(8 * h, 8 * h + 8))
            if i + 1 < 32: f.setdefault(8 * h + 7, []).append(f"s_waitcnt lgkmcnt({8 if i + 2 < 32 else 0})")
            if i in (S0AT, S2AT): f.setdefault(14 if h else 5, []).append("s_barrier")
        if nxt < 16 and nxt + 1 < min(16, g + NG) and g % G2RAMP == 0:
            spread(f, [adv + [ld(nxt, 0)], ld(nxt, 1), ld(nxt, 2), ld(nxt, 3), adv, ld(nxt + 1, 0), ld(nxt + 1, 1), ld(nxt + 1, 2), ld(nxt + 1, 3)], range(9)); nxt += 2
        elif nxt < 16: spread(f, adv + [ld(nxt, k) for k in range(4)], (0, 1, 2, 4, 6, 8)); nxt += 1
        if g < 15:
            T, B = check(g + 1)
            spread(f, [f"s_waitcnt vmcnt({4 * (nxt - g - 2)})"] + T + [B], (9, 10, 11, 12, 13, 15))
        weave(a, mf, f)
    assert 6 <= S0AT <= 9 and 20 <= S2AT <= 25
    a.stamp("g2end")
    if LAST % 2 == 0: a(f"s_cmp_eq_u32 s{sL}, {LAST}"); a("s_cbranch_scc1 L_final")
    a(f"s_bitcmp1_b32 s{sL}, 0"); a("s_cbranch_scc1 L_xodd")
    for ph in range(2):
        if ph: a.label("L_xodd"); a(f"s_cmp_eq_u32 s{sL}, {LAST}"); a("s_cbranch_scc1 L_final")
        L = []
        for fr in (0, 2, 1, 3):
            L += pack(XRES + 4 * fr, A0 + 8 * fr, ph, None if ph else vTG)
            L += [f"buffer_store_dwordx4 {vr(XRES+4*fr,4)}, v{vL16}, {sr(sIO)}, s{sTILE} offen offset:{fr*1024}", f"ds_write_b128 v{vXW}, {vr(XRES+4*fr,4)} offset:{fr*1024}"]
        a.bymode(L)
        for fr in (0, 2, 1, 3): a(f"v_cvt_pk_bf16_f32 v{XRES+4*fr}, v{A0+8*fr}, v{A0+8*fr+1}")
        a.all(stat_mfma()); a(f"s_add_u32 s{sL}, s{sL}, 1"); a("s_waitcnt lgkmcnt(0)"); a("s_branch L_cgo")

def gen(stamps=False):
    a = G(stamps)
    s = sT[1]
    a("s_cmp_ge_u32 s2, 256"); a("s_cbranch_scc1 L_end")
    if stamps: a(f"s_memtime s[{sT0}:{sT0+1}]"); a("s_memrealtime s[80:81]"); a("s_mov_b32 s70, 63"); a("s_mov_b32 s82, 0")
    a("s_load_dwordx16 s[48:63], s[0:1], 0"); a("s_load_dwordx2 s[64:65], s[0:1], 64")
    a("v_lshrrev_b32 v1, 6, v0"); a(f"v_readfirstlane_b32 s{sWID}, v1")
    a(f"v_and_b32 v{vLANE}, 63, v0"); a(f"v_lshlrev_b32 v{vL16}, 4, v{vLANE}")
    if CODEPF:
        l1 = a.skip_unless("eq", sWID, 3)
        a("s_getpc_b64 s[40:41]")
        a.label("L_pc")
        a(f"s_lshr_b32 s{s}, s2, 3"); a(f"s_mul_i32 s{s}, s{s}, {CODEPF * 128}"); a(f"v_lshlrev_b32 v28, 7, v{vLANE}"); a(f"v_add_u32 v28, s{s}, v28")
        a(f"s_mov_b32 s{s}, L_end - L_pc"); a(f"v_min_u32 v28, s{s}, v28")
        a("v_mov_b32 v29, s41"); a("v_add_co_u32 v28, vcc, s40, v28"); a("v_addc_co_u32 v29, vcc, 0, v29, vcc")
        a(f"s_mov_b64 exec, {(1 << CODEPF) - 1}"); a(f"global_load_dword v{vDUM}, v[28:29], off"); a("s_mov_b64 exec, -1")
        a.label(l1)
    a(f"s_and_b32 s{s}, s2, 7"); a(f"s_lshr_b32 s{s+1}, s2, 3"); a(f"s_lshl_b32 s{sRB}, s{s}, 1"); a(f"s_and_b32 s{s}, s{s+1}, 1"); a(f"s_add_u32 s{sRB}, s{sRB}, s{s}")
    a(f"s_lshr_b32 s{sJ}, s{s+1}, 1"); a(f"s_and_b32 s{sU}, s{sWID}, 3")
    a(f"v_lshrrev_b32 v16, 4, v{vLANE}"); a("v_lshlrev_b32 v16, 1, v16"); a(f"v_and_b32 v17, 7, v{vLANE}"); a("v_xor_b32 v16, v16, v17"); a(f"v_lshlrev_b32 v{vCH}, 4, v16")
    def common():
        srd(a, sWS, pWS, WS_SIZE); a(f"v_mov_b32 v28, {NONCE}")
        a(f"buffer_load_dwordx2 v[26:27], v28, {sr(sWS)}, 0 offen sc1")
        srd(a, sWO, pWOA, 2097152)
        a(f"s_mov_b32 s{sL}, 0"); a(f"s_mov_b32 s{sFAST}, 0"); a(f"v_mov_b32 v{vSTAMP}, 0")
        a(f"v_bfe_u32 v28, v{vLANE}, 2, 3"); a(f"v_bfe_u32 v29, v{vLANE}, 3, 2"); a(f"v_and_b32 v30, 3, v{vLANE}")
        a("v_lshlrev_b32 v28, 7, v28"); a("v_lshlrev_b32 v29, 5, v29"); a("v_lshlrev_b32 v30, 3, v30"); a(f"v_add3_u32 v{vTR}, v28, v29, v30")
        a(f"v_and_b32 v28, 15, v{vLANE}"); a(f"v_lshrrev_b32 v29, 4, v{vLANE}"); a("v_lshlrev_b32 v29, 2, v29"); a(f"v_sub_u32 v{vD0}, v28, v29")
        a(f"s_lshl_b32 s{sWP}, s{sU}, 10"); a(f"s_lshl_b32 s{sWR}, s{sJ}, 17"); a(f"s_lshl_b32 s{s}, s{sU}, 14"); a(f"s_lshl_b32 s{s+1}, s{sJ}, 7"); (FJ == 15 or a(f"s_and_b32 s{s+1}, s{s+1}, {FJ << 7}")); a(f"s_add_u32 s{s}, s{s}, s{s+1}")
        a(f"v_lshrrev_b32 v{vWO}, 3, v{vLANE}"); a(f"v_lshlrev_b32 v{vWO}, 11, v{vWO}"); a(f"v_add3_u32 v{vWO}, v{vWO}, v{vCH}, s{s}")
        a(f"s_lshl_b32 s{s}, s{sRB}, 18"); a(f"s_lshl_b32 s{s+1}, s{sJ}, 12"); a(f"s_add_u32 s{s}, s{s}, s{s+1}"); a(f"s_lshl_b32 s{s+1}, s{sU}, 16"); a(f"s_add_u32 s{sTILE}, s{s}, s{s+1}")
        a(f"s_lshl_b32 s{s+1}, s{sT32}, 16"); a(f"s_add_u32 s{s}, s{s}, s{s+1}"); a(f"s_and_b32 s{s+1}, s{sU}, 1"); a(f"s_lshl_b32 s{s+2}, s{s+1}, 11"); a(f"s_add_u32 s{s}, s{s}, s{s+2}"); a(f"s_add_u32 s{sOA}, s{s}, {OB}")
        a(f"s_lshl_b32 s{s}, s{sRB}, 4"); a(f"s_add_u32 s{s}, s{s}, s{sJ}"); a(f"s_lshl_b32 s{s}, s{s}, 2"); a(f"s_and_b32 s{s+2}, s{sU}, 2"); a(f"s_add_u32 s{s}, s{s}, s{s+2}"); a(f"s_lshl_b32 s{s}, s{s}, 1")
        a(f"s_add_u32 s{s}, s{s}, s{s+1}"); a(f"s_lshl_b32 s{s}, s{s}, 12"); a(f"s_add_u32 s{sKVS}, s{s}, {KV}")
        for r in range(4): a(f"v_mov_b32 v{vPO+r}, -1")
        a.all(masks_A())
        a(f"s_lshl_b32 s{s}, s{sJ}, 4"); a(f"s_add_u32 s{s}, s{s}, s{sRB}"); a(f"s_lshl_b32 s{s}, s{s}, 5"); a(f"s_add_u32 s{s}, s{s}, s{sU}"); a(f"s_lshl_b32 s{s}, s{s}, 3"); a(f"s_add_u32 s{sKF}, s{s}, {KVFL}")
    def nonce():
        a(f"v_readfirstlane_b32 s{sN0}, v26"); a(f"v_readfirstlane_b32 s{sN1}, v27")
        a(f"s_add_u32 s{sN0}, s{sN0}, 1"); a(f"s_add_u32 s{sN1}, s{sN1}, 16"); a(f"s_and_b32 s{sN1}, s{sN1}, 0xfffffff0")
        a(f"s_getreg_b32 s{s}, hwreg(HW_REG_XCC_ID, 0, 4)"); a(f"s_or_b32 s{sN1}, s{sN1}, s{s}")
    a(f"s_cmp_lt_u32 s{sWID}, 4"); a("s_cbranch_scc1 L_cstart")
    a(f"s_lshl_b32 s{sMX}, s{sU}, 12"); a(f"s_mul_i32 s{sMW}, s{sU}, 6144")
    setup_w(a, True); setup_x(a, 0)
    a("s_waitcnt lgkmcnt(0)"); xsrd(a, sXS, 0); srd(a, sW, pWA, 6291456); a(f"s_andn2_b32 s{sGO}, s{sRB}, {RG}"); a(f"s_and_b32 s{sH}, s{sRB}, {RG}")
    vm = VM(a)
    if HOT: hot_setup(a, 0, 28); hot_issue(a, 0, HOT0[0], HOT0[1], 28)
    kstage(a, 0, 0); dma_w(a, WB[0]); dma_x(a, 0, 0)
    a(f"s_andn2_b32 s{sT32}, 2, s{sU}")
    common(); vm.add(("n",)); xsrd(a, sIO, 1)
    kstage(a, 0, 1); dma_w(a, WB[1]); vm.add(("w", 1), 6); dma_x(a, 0, 1); vm.add(("x", 1), 4); kstage(a, 0, 2); dma_w(a, WB[2]); vm.add(("w", 2), 6)
    a(f"s_lshr_b32 s{s}, s{sTILE}, 16"); a(f"s_lshl_b32 s{s}, s{s}, 7"); a(f"s_add_u32 s{s}, s{s}, {SFL}"); a(f"v_and_b32 v28, 15, v{vLANE}"); a(f"v_lshl_add_u32 v{vSF}, v28, 3, s{s}")
    a(f"s_add_u32 s{s}, s{sMX}, {XB[0]}"); a(f"v_add_u32 v{vXV}, s{s}, v{vL16}")
    a(f"s_lshl_b32 s{s}, s{sU}, 7"); a(f"s_add_u32 s{s}, s{s}, {TAB}"); a(f"v_lshrrev_b32 v29, 5, v{vLANE}"); a("v_lshl_add_u32 v29, v29, 4, v28"); a(f"v_lshl_add_u32 v{vTW}, v29, 2, s{s}")
    a(f"s_min_u32 s{s}, s{sU}, 2"); a(f"s_lshl_b32 s{s}, s{s}, 8"); a(f"s_add_u32 s{s}, s{s}, {TAB+1024}"); a(f"v_lshrrev_b32 v29, 4, v{vLANE}"); a("v_lshl_add_u32 v29, v28, 2, v29"); a(f"v_lshl_add_u32 v{vCW}, v29, 2, s{s}")
    vm.wait(("n",)); nonce()
    a("s_barrier")
    for l in range(LAST + 1):
        loader(a, l, vm)
        if l % 2 == 0:
            a("s_branch L_attL"); a.label(f"L_between{l}"); vm.q = []
        else:
            vm.wait(("wo", 11)); vm.wait(("p",)); a("s_barrier")
        between(a, l, vm)
    a(f"s_or_b32 s{s}, s2, s{sU}"); a(f"s_cmp_lg_u32 s{s}, 0"); a("s_cbranch_scc1 L_out")
    srd(a, 40, pDBG, 256)
    a("v_mov_b32 v22, 0"); a(f"s_mov_b32 s{s}, 0")
    a.label("L_dbgpoll")
    a(f"buffer_load_dword v23, v22, {sr(40)}, 0 offen sc1"); a("s_waitcnt vmcnt(0)")
    a("v_cmp_gt_u32 vcc, 0x100, v23"); a("s_cbranch_vccz L_dbgok")
    a(f"s_add_u32 s{s}, s{s}, 1"); a(f"s_cmp_lt_u32 s{s}, {SPIN}"); a("s_cbranch_scc1 L_dbgpoll")
    a.label("L_dbgok")
    a(f"v_mov_b32 v22, {NONCE}"); p0, p1 = post_l(22, 24); a.all(p0 + p1)
    a("s_branch L_out")
    a.label("L_attL")
    att_A_loader(a)
    a.label("L_cstart")
    io_addr(a, 24)
    a("s_waitcnt lgkmcnt(0)")
    srd(a, sIO, pX, 4194304)
    for f in range(4): a(f"buffer_load_dwordx4 {vr(XRES+4*f,4)}, v{24 + (f >> 1)}, {sr(sIO)}, 0 offen offset:{(f & 1)*64}")
    a(f"s_or_b32 s{sT32}, s{sU}, 1")
    common(); srd(a, sW, pWA, 6291456)
    for d, val in ((mB0, lane_mask(lambda i, g: i & 1)), (mB1, lane_mask(lambda i, g: i & 2)), (mP0, lane_mask(lambda i, g: 4*g + (i & 1) > i)), (mP1, lane_mask(lambda i, g: 4*g + 2 + (i & 1) > i))):
        a(f"s_mov_b32 s{d}, {val & 0xffffffff}"); a(f"s_mov_b32 s{d+1}, {val >> 32}")
    c_setup(a, True); a.all(ones())
    for r in range(4): a(f"v_mov_b32 v{240+r}, -1")
    a("s_waitcnt vmcnt(0)")
    if not OP0: a.all(o_first())
    nonce(); a.all(stat_mfma()); xsrd(a, sIO, 1)
    for f in range(4): a.all(col_swaps(f, (16, 32)))
    a.label("L_cgo")
    consumer(a)
    tail_A(a)
    a.label("L_afin")
    a.all(pv_mf(0, 1))
    a.stamp("fin")
    finish_A(a)
    if ZPRIO: a("s_setprio 0")
    a(f"s_add_u32 s{sKVS}, s{sKVS}, {8*MB}"); a(f"s_add_u32 s{sKF}, s{sKF}, 65536")
    a("s_waitcnt vmcnt(2)"); a("s_barrier")
    a.stamp("P")
    a(f"s_cmp_lt_u32 s{sWID}, 4"); a("s_cbranch_scc1 L_g2")
    a(f"s_cmp_eq_u32 s{sL}, 0"); a("s_cbranch_scc1 L_between0"); a(f"s_branch L_between{2 if LAST >= 2 else 0}")
    tail_B(a)
    a.stamp("P")
    a.label("L_g2")
    gemm2(a)
    a.label("L_final")
    io_addr(a, 160)
    for f in (0, 2, 1, 3):
        for p in range(4 * f, 4 * f + 4): a(f"v_cvt_pk_bf16_f32 v{XRES+p}, v{A0+2*p}, v{A0+2*p+1}")
    for f in (0, 2, 1, 3): a.all(col_swaps(f, (32,)))
    for f in (0, 1, 2, 3):
        a.all(col_swaps(f, (16,))); a(f"buffer_store_dwordx4 {vr(XRES+4*f,4)}, v{160 + (f >> 1)}, {sr(sIO)}, 0 offen offset:{(f & 1)*64}")
    a.label("L_out")
    a.stamp("end")
    if stamps:
        a("s_waitcnt lgkmcnt(0)"); a("s_mov_b32 m0, s70"); a(f"v_writelane_b32 v{vSTAMP}, s82, m0")
        a("s_memrealtime s[82:83]"); a("s_waitcnt lgkmcnt(0)"); a("v_mov_b32 v7, 0"); a("v_writelane_b32 v7, s80, 0"); a("v_writelane_b32 v7, s82, 1"); a(f"v_writelane_b32 v7, s{80 if RT else sT0}, 2")
        a(f"s_lshl_b32 s{s}, s2, 11"); a(f"s_lshl_b32 s{s+1}, s{sWID}, 8"); a(f"s_add_u32 s{s}, s{s}, s{s+1}"); a(f"s_add_u32 s{s}, s{s}, {STAMP}")
        a(f"v_lshlrev_b32 v16, 2, v{vLANE}"); a(f"buffer_store_dword v{vSTAMP}, v16, {sr(sWS)}, s{s} offen")
        a(f"s_add_u32 s{s}, s{s}, {1 << 20}"); a(f"buffer_store_dword v7, v16, {sr(sWS)}, s{s} offen")
        if TRACE: a(f"s_add_u32 s{s}, s{s}, {1 << 19}"); a(f"buffer_store_dword v5, v16, {sr(sWS)}, s{s} offen")
    a("s_endpgm")
    a.all(x.strip() for x in a.tail)
    a.label("L_end")
    a("s_endpgm")
    body, n = hazard.fix(a.text())
    hdr = open(HERE + "/header3.txt").read().rstrip("\n").split("\n")
    hdr.append("; @launch grid=(256,1,1) block=(512,1,1) lds=163840")
    return kernel_file(hdr, [(KNAME, body, 256, 102 if stamps else 100, 256)]), n

if __name__ == "__main__":
    for x in sys.argv[2:]:
        if "=" in x: k, v = x.split("=", 1); assert k in globals(), k; globals()[k] = eval(v)
    txt, n = gen("stamps" in sys.argv)
    open(sys.argv[1], "w").write(txt)
    print("lines", txt.count("\n"), "nops inserted", n)
```

```python
import sys, os, struct, math
HERE = os.path.dirname(os.path.abspath(__file__)); sys.path.insert(0, HERE + "/../tools")
from asmlib import *
import hazard

KB, MB = 1 << 10, 1 << 20
ST, CSP, SFL, CSFL, NONCE, KVFL = 0, 256 * KB, 768 * KB, 800 * KB, 824 * KB, 832 * KB
OB, XF, KV, HB, STAMP, WS_SIZE = 2 * MB, 10 * MB, 14 * MB, 30 * MB, 70 * MB, 72 * MB
XB = [48 * KB, 64 * KB, 80 * KB]; WB = [136 * KB, 0, 24 * KB]
TAB, HX, SX = 128 * KB, 130 * KB, 134 * KB
QX, OWN, REM = 48 * KB, 64 * KB, 96 * KB
BIG = 0xF149F2CA
QSCALE = struct.unpack("<I", struct.pack("<f", 32 ** -0.5 * math.log2(math.e)))[0]
WSTEP = 64 * 6144
SPIN = 1 << 18
OOB = 0x40000000
RT = 0; SKIP = []; FORCE_EXACT = 0; FORCE_SLOW = 0; DIAG = 0; DZ = {}; NOI = 0; FJ = 15; TRACE = 0
NG = 5; S0AT = 9; S2AT = 20; HOT = 1; HOTD = 4; HOT0 = (0, 5); WOHOT = 14; CODEPF = 15; NF0 = 10; NF1 = 5; NP1 = 2; OI = [3, 4, 5, 6]; OID = 2; NL0 = [11, 11, 12, 12, 14, 14]; NL1 = [8, 9, 10, 11, 13, 14]; NCF0 = 9; NCF1 = 10; APOLL = 1; PZ = 6; ST0 = 5; BAR0 = 6; PREP = 1; HALOAT = 0
WARM = []; SWARM = [(0, 6, 'woa', 0, 8), (0, 7, 'woa', 8, 8), (0, 8, 'woa', 16, 8), (0, 9, 'woa', 24, 8), (1, 8, 'wob', 0, 8), (1, 9, 'wob', 8, 8), (1, 10, 'wob', 16, 8), (1, 11, 'wob', 24, 8)]; TRICKLE = 0; HPAT = 99
WOA = [range(0, 6), range(6, 12), []]; WOB = [[*range(0, 6), *range(16, 20)], [*range(6, 12), *range(20, 24)], range(12, 16)]
HANDA = []; HANDB = []; PXF = ' sc1'
G2PRE = 2; G2RAMP = 2; TO3 = 0; TOA = 0; LPRIO = 0; SUM0 = 1; RD2 = 1; VG = [1, 5, 6]; LATE = 30; F1AT = 1; ZPRIO = 1; RG = 0; RG1 = 0; ROTL = [1]; F2A = 4; WT = 0; WOT = 99; OP0 = 1; WOY = [22, 23, 14, 15]
WSCH = [[['h', 0], [], [1, 2]], [[], ['h', 0], [1, 2]], [['h', 0], [], [1, 2]]]; WP = [None, None, None]; ATAT = [0, 2, 4, 7, 11]; LAST = 3

sW, sWO, sWS, sIO, sXS = 4, 8, 12, 16, 88
sWID, sRB, sJ, sL, sFAST, sN0, sN1 = 3, 20, 21, 22, 23, 24, 25
sT = list(range(26, 48))
pX, pWA, pWOA, pWB, pWOB, pOUT, pDBG, pWS = 48, 50, 52, 56, 58, 60, 62, 64
sT0 = 66
sTILE, sOA, sKVS, sCNT, sU, sXO, sWOF, sMX, sMW = 71, 72, 73, 74, 75, 76, 77, 78, 79
sT32, sWP, sWR, sKF = 84, 85, 86, 87
sH, sGO = 54, 55
mB0, mB1, mP0, mP1 = 92, 94, 96, 98
vL16, vLANE, vTR, vWO, vD0, vSTAMP = 0, 1, 2, 3, 4, 6
XRES = 8
vDUM = 255

def vr(r, n): return f"v[{r}:{r+n-1}]"
def sr(r, n=4): return f"s[{r}:{r+n-1}]"
def M(d, A, B, C): return f"v_mfma_f32_16x16x32_bf16 {vr(d,4)}, {vr(A,4)}, {vr(B,4)}, {C if isinstance(C,str) else vr(C,4)}"
STAMPS = ["g1start", "g1kv", "epi", "qmm", "Y", "loc", "Z", "Z2", "fin", "P", "R", "g2end", "l_a", "l_b", "l_c", "end"]

class G(Asm):
    def __init__(self, stamps):
        super().__init__(); self.stamps = stamps; self.tail = []
    def all(self, L):
        for x in L: self(x)
    def stamp_l(self, name):
        if not self.stamps or SKIP == 'all' or name in SKIP: return []
        return ["s_mov_b32 s69, m0", "s_mov_b32 m0, s70", f"v_writelane_b32 v{vSTAMP}, s82, m0", "s_memrealtime s[82:83]" if RT else "s_memtime s[82:83]",
                f"s_mul_i32 s70, s{sL}, 16", "s_mov_b32 m0, s69"] + [f"s_bitset1_b32 s70, {b}" for b in range(4) if STAMPS.index(name) >> b & 1]
    def stamp(self, name): self.all(self.stamp_l(name))
    def skip_unless(self, cond, sreg, imm):
        l = self.newlabel("Lw")
        self(f"s_cmp_{cond}_u32 s{sreg}, {imm}"); self(f"s_cbranch_scc0 {l}")
        return l
    def bymode(self, L):
        sl, dn = self.newlabel("Lslow"), self.newlabel("Lback")
        self(f"s_cmp_eq_u32 s{sFAST}, 0"); self(f"s_cbranch_scc1 {sl}")
        self.all(L); self.label(dn)
        self.tail += [sl + ":"] + [x + " sc1" if x.startswith("buffer_store") else x for x in L] + [f"s_branch {dn}"]
    def flagtest(self, vt, ok, fail=None):
        self(f"v_xor_b32 v{vt+2}, s{sN0}, v{vt}"); self(f"v_xor_b32 v{vt+3}, s{sN1}, v{vt+1}")
        self(f"v_lshrrev_b32 v{vt+3}, 4, v{vt+3}"); self(f"v_or_b32 v{vt+2}, v{vt+2}, v{vt+3}")
        self(f"v_cmp_ne_u32 vcc, 0, v{vt+2}"); self(f"s_cbranch_vccz {ok}" if ok else f"s_cbranch_vccnz {fail}")
    def flagload(self, vt, vaddr, off=0):
        if off == "atomic":
            self(f"v_mov_b32 v{vt}, 0"); self(f"v_mov_b32 v{vt+1}, 0"); self(f"buffer_atomic_or_x2 {vr(vt,2)}, v{vaddr}, {sr(sWS)}, 0 offen sc0")
        else: self(f"buffer_load_dwordx2 {vr(vt,2)}, v{vaddr}, {sr(sWS)}, 0 offen offset:{off} sc1")
    def poll(self, vaddr, vt, off=0):
        lp, ok = self.newlabel("Lpoll"), self.newlabel("Lok")
        self(f"s_mov_b32 s{sT[0]}, 0")
        self.label(lp)
        self.flagload(vt, vaddr, off); self("s_waitcnt vmcnt(0)")
        self.flagtest(vt, ok)
        self(f"s_add_u32 s{sT[0]}, s{sT[0]}, 1"); self(f"s_cmp_lt_u32 s{sT[0]}, {SPIN}"); self(f"s_cbranch_scc1 {lp}")
        self.label(ok)
def post_l(vaddr, vt, off=0, fl=" sc1"):
    return [f"v_mov_b32 v{vt}, s{sN0}", f"v_mov_b32 v{vt+1}, s{sN1}"], ["s_mov_b64 exec, 1", f"buffer_store_dwordx2 {vr(vt,2)}, v{vaddr}, {sr(sWS)}, 0 offen offset:{off}{fl}", "s_mov_b64 exec, -1"]
def weave(a, mf, fill):
    for m, x in enumerate(mf):
        a(x)
        for y in fill.get(m, ()): a(y)
def spread(fill, L, gaps):
    gaps = list(gaps); assert len(L) <= len(gaps), (len(L), len(gaps))
    for g, x in zip(gaps, L): fill.setdefault(g, []).extend(x if isinstance(x, list) else [x])
def rr(*streams):
    out = []; n = max(map(len, streams))
    for k in range(n): out += [s[k] for s in streams if k < len(s)]
    return out
def poison_test(t, regs):
    L = []; regs = list(regs); cur = regs.pop(0)
    while regs:
        if len(regs) >= 2: L.append(f"v_max3_u32 v{t}, v{cur}, v{regs[0]}, v{regs[1]}"); regs = regs[2:]
        else: L.append(f"v_max_u32 v{t}, v{cur}, v{regs[0]}"); regs = []
        cur = t
    return L + [f"v_cmp_eq_u32 vcc, -1, v{cur}"]
def pack(d, r, t, tmp=None):
    C = [f"v_cvt_pk_bf16_f32 v{d+k}, v{r+2*k}, v{r+2*k+1}" for k in range(4)]; S = "dst_sel:WORD_0 dst_unused:UNUSED_PRESERVE src0_sel:WORD_1 src1_sel:DWORD"
    u = r if tmp is None else tmp
    if t: return ([] if tmp is None else [f"v_mov_b32 v{u}, v{r}"]) + C[:2] + [f"v_or_b32_sdwa v{d}, v{u}, 1 {S}"] + C[2:]
    return [f"v_add_u32 v{u}, 0x10000, v{r}"] + C[:2] + [f"v_and_b32_sdwa v{d}, v{u}, -2 {S}"] + C[2:]
def tag_test(t, d, ph):
    if ph == 0: return [f"v_or3_b32 v{t}, v{d[0]}, v{d[1]}, v{d[2]}", f"v_bitop3_b32 v{t}, v{t}, v{d[3]}, 1 bitop3:0xa8", f"v_cmp_ne_u32 vcc, 0, v{t}"]
    if ph == 1: return [f"v_bitop3_b32 v{t}, v{d[0]}, v{d[1]}, v{d[2]} bitop3:0x80", f"v_bitop3_b32 v{t}, v{t}, v{d[3]}, 1 bitop3:0x80", f"v_cmp_eq_u32 vcc, 0, v{t}"]
    return [f"v_bitop3_b32 v{t}, v{d[0]}, v{d[1]}, {ph} bitop3:0x7e", f"v_bitop3_b32 v{t+1}, v{d[2]}, v{d[3]}, {ph} bitop3:0x7e", f"v_bitop3_b32 v{t}, v{t}, v{t+1}, 1 bitop3:0xa8", f"v_cmp_ne_u32 vcc, 0, v{t}"]
clean = lambda d, s=None: f"v_min_u32 v{d}, -2, v{d if s is None else s}"

def io_addr(a, v):
    s = sT[1]
    a(f"s_lshl_b32 s{s}, s{sRB}, 2"); a(f"s_add_u32 s{s}, s{s}, s{sWID}"); a(f"s_lshl_b32 s{s}, s{s}, 16"); a(f"s_lshl_b32 s{s+1}, s{sJ}, 7"); a(f"s_add_u32 s{s}, s{s}, s{s+1}")
    a(f"v_and_b32 v{v}, 15, v{vLANE}"); a(f"v_lshlrev_b32 v{v}, 11, v{v}"); a(f"v_and_b32 v{v+1}, 48, v{vLANE}")
    a(f"v_add3_u32 v{v}, v{v}, v{v+1}, s{s}"); a(f"v_add_u32 v{v+1}, 32768, v{v}")
def col_swaps(f, order): return [f"v_permlane{w}_swap_b32 v{XRES+4*f+k}, v{XRES+4*f+k+2}" for w in order for k in range(2)]

LX, LW, vHOT, vCS = 8, 12, 18, 20
vSF, vXV, vTW, vCW, vCF, vKF, vPO, vCH = 168, 169, 170, 171, 172, 174, 176, 173
S_, SELA = 24, 64
def setup_w(a, first):
    s = sT[1]
    a(f"v_lshrrev_b32 v{LW}, 3, v{vLANE}")
    if first:
        a(f"v_lshrrev_b32 v{LW+1}, 5, v{vLANE}"); a(f"v_lshl_add_u32 v{LW}, v{LW+1}, 2, v{LW}")
        a(f"s_lshr_b32 s{s}, s{sU}, 1"); a(f"s_lshl_b32 s{s}, s{s}, 3"); a(f"s_and_b32 s{s+1}, s{sU}, 1"); a(f"s_add_u32 s{s}, s{s}, s{s+1}"); a(f"s_mul_i32 s{s}, s{s}, {4*6144}")
    else: a(f"s_mul_i32 s{s}, s{sU}, {16*6144}")
    a(f"v_mul_u32_u24 v{LW}, 6144, v{LW}"); a(f"s_lshl_b32 s{s+1}, s{sJ}, 7"); (FJ == 15 or a(f"s_and_b32 s{s+1}, s{s+1}, {FJ << 7}")); a(f"s_add_u32 s{s}, s{s}, s{s+1}"); a(f"v_add3_u32 v{LW}, v{LW}, v{vCH}, s{s}")
    for k in range(1, 6): a(f"v_add_u32 v{LW+k}, {(k//3)*(16 if first else 8)*6144 + (k%3)*1024}, v{LW}")
def setup_x(a, l):
    s = sT[1]
    a(f"s_lshl_b32 s{s}, s{sRB}, 2"); a(f"s_add_u32 s{s}, s{s}, s{sU}"); a(f"s_lshl_b32 s{s}, s{s}, 16")
    if l == 0:
        a(f"v_lshrrev_b32 v{LX+1}, 4, v{vLANE}"); a(f"v_and_b32 v{LX+2}, 7, v{vLANE}"); a(f"v_xor_b32 v{LX+1}, v{LX+1}, v{LX+2}"); a(f"v_lshlrev_b32 v{LX+1}, 4, v{LX+1}")
        a(f"v_lshrrev_b32 v{LX+2}, 3, v{vLANE}"); a(f"v_lshlrev_b32 v{LX+2}, 11, v{LX+2}"); a(f"v_add3_u32 v{LX}, v{LX+1}, v{LX+2}, s{s}")
        a(f"v_xor_b32 v{LX+1}, 64, v{LX}"); a(f"v_add_u32 v{LX+2}, {2*15360}, v{LX}"); a(f"v_add_u32 v{LX+3}, {3*15360}, v{LX+1}"); a(f"v_add_u32 v{LX+1}, 15360, v{LX+1}")
    elif l == 1: a(f"v_add_u32 v{LX}, s{s}, v{vL16}")
def xsrd(a, d, l):
    srd(a, d, pOUT if l else pX, 4194304)
def kstage(a, l, n, x=True, w=True):
    t = sXO if x else sWOF
    if l in ROTL and n: a(f"s_add_u32 s{t}, s{sGO}, {n}"); a(f"s_cmp_ge_u32 s{t}, 16"); a(f"s_addc_u32 s{t}, s{t}, s{sJ}")
    else: a(f"s_add_u32 s{t}, s{sJ if l else sGO}, {n}")
    a(f"s_and_b32 s{t}, s{t}, 15")
    if w: a(f"s_mul_i32 s{sWOF}, s{t}, {WSTEP}")
    if x: a(f"s_lshl_b32 s{sXO}, s{t}, {12 if l else 7}")
def dma_w(a, base, so=sWOF):
    for i in range(2):
        a(f"s_add_u32 m0, s{sMW}, {base + i*3072}")
        for seg in range(3): a(f"buffer_load_dwordx4 v{LW+i*3+seg}, {sr(sW)}, s{so} offen offset:{seg*1024} lds")
def dma_x(a, l, n):
    a(f"s_add_u32 m0, s{sMX}, {XB[n % 3]}")
    for k in range(4): a(f"buffer_load_dwordx4 v{LX + (0 if l else k)}, {sr(sIO if l else sXS)}, s{sXO} offen offset:{k*1024} sc1 lds")
def hot_line(a, v, q, base):
    s = sT[4]
    a(f"s_lshr_b32 s{s}, s{base}, 7"); a(f"s_sub_u32 s{s}, 3, s{s}"); a(f"s_and_b32 s{s}, s{s}, 7"); a(f"s_lshl_b32 s{s}, s{s}, 7")
    a(f"v_and_b32 v{v}, 1, v{q}"); a(f"v_lshlrev_b32 v{v}, 10, v{v}"); a(f"v_lshrrev_b32 v{q}, 1, v{q}"); a(f"v_lshlrev_b32 v{q}, 11, v{q}")
    a(f"v_add3_u32 v{v}, v{v}, v{q}, s{s}")
def hot_setup(a, l, t):
    s = sT[1]
    a(f"s_lshr_b32 s{s}, s2, 3"); a(f"s_mul_i32 s{s}, s{s}, 12"); a(f"s_mul_i32 s{s+1}, s{sU}, 3"); a(f"s_add_u32 s{s}, s{s}, s{s+1}")
    a(f"v_mul_u32_u24 v{vHOT+1}, 21846, v{vLANE}"); a(f"v_lshrrev_b32 v{vHOT+1}, 16, v{vHOT+1}")
    a(f"v_mul_u32_u24 v{t}, 3, v{vHOT+1}"); a(f"v_sub_u32 v{t}, v{vLANE}, v{t}"); a(f"v_add_u32 v{t}, s{s}, v{t}")
    hot_line(a, vHOT, t, sW)
    if l and l not in ROTL: a(f"v_bfe_u32 v{t}, v{vHOT}, 7, 4"); a(f"v_add_u32 v{vHOT+1}, v{vHOT+1}, v{t}")
    else: a(f"s_and_b32 s{s}, s{sRB}, {14 & ~(RG1 if l else RG)}"); a(f"v_add_u32 v{vHOT+1}, s{s}, v{vHOT+1}")
def hot_issue(a, l, first, count, t):
    s = sT[1]
    a(f"v_add_u32 v{t}, {first}, v{vHOT+1}")
    if l in ROTL: a(f"v_lshrrev_b32 v{t+1}, 4, v{t}"); a(f"v_lshrrev_b32 v{t+2}, 7, v{vHOT}"); a(f"v_add3_u32 v{t}, v{t}, v{t+1}, v{t+2}")
    a(f"v_and_b32 v{t}, 15, v{t}")
    a(f"s_mov_b32 s{s}, {WSTEP}"); a(f"v_mad_u32_u24 v{t}, v{t}, s{s}, v{vHOT}")
    a(f"s_mov_b64 exec, {(1 << (3 * count)) - 1}")
    a(f"buffer_load_dword v{vDUM}, v{t}, {sr(sW)}, 0 offen")
    a("s_mov_b64 exec, -1")
def hot_slab(t, sd, v):
    s = sT[1]; per = 6
    t(f"s_lshr_b32 s{s}, s2, 3"); t(f"s_lshl_b32 s{s}, s{s}, 2"); t(f"s_add_u32 s{s}, s{s}, s{sU}")
    t(f"s_lshr_b32 s{s+1}, s{s}, 5"); t(f"s_and_b32 s{s}, s{s}, 31"); t(f"s_mul_i32 s{s}, s{s}, {per*2048}")
    t(f"s_lshr_b32 s{s+2}, s{sd}, 7"); t(f"s_sub_u32 s{s+2}, 3, s{s+2}"); t(f"s_and_b32 s{s+2}, s{s+2}, 7"); t(f"s_and_b32 s{s+3}, s{s+1}, 1"); t(f"s_lshl_b32 s{s+3}, s{s+3}, 3"); t(f"s_add_u32 s{s+2}, s{s+2}, s{s+3}")
    t(f"s_lshr_b32 s{s+1}, s{s+1}, 1"); t(f"s_and_b32 s{s+3}, s{sRB}, 14"); t(f"s_add_u32 s{s+1}, s{s+1}, s{s+3}")
    t(f"s_add_u32 s{s+1}, s{s+1}, s{s+2}"); t(f"s_and_b32 s{s+1}, s{s+1}, 15")
    t(f"s_mul_i32 s{s+1}, s{s+1}, {WSTEP}"); t(f"s_add_u32 s{s}, s{s}, s{s+1}"); t(f"s_lshl_b32 s{s+2}, s{s+2}, 7"); t(f"s_add_u32 s{s}, s{s}, s{s+2}")
    t(f"v_lshlrev_b32 v{v}, 11, v{vLANE}")
    t(f"s_mov_b64 exec, {(1 << per) - 1}"); t(f"buffer_load_dword v{vDUM}, v{v}, {sr(sd)}, s{s} offen"); t("s_mov_b64 exec, -1")
def wo_one(step):
    s = sT[10]
    return [f"s_add_u32 m0, s{sWP}, {step*4096}", f"s_add_u32 s{s}, s{sWR}, {step*65536}", f"s_and_b32 s{s}, s{s}, 0x1fffff", f"buffer_load_dwordx4 v{vWO}, {sr(sWO)}, s{s} offen lds"]

class VM:
    def __init__(self, a): self.a = a; self.q = []
    def add(self, tag, n=1): self.q += [tag] * n
    def wait(self, tag):
        if tag not in self.q: return
        last = max(i for i, t in enumerate(self.q) if t == tag)
        y = self.q[last + 1:]; self.q = y
        n = sum(1 for t in y if t[0] != "if"); c = sorted({t[1] for t in y if t[0] == "if"})
        assert n + 6 <= 63
        if c:
            a = self.a; l0, l1 = a.newlabel("Lvm"), a.newlabel("Lvm"); assert c == list(range(c[0], c[-1] + 1))
            a(f"s_sub_u32 s{sT[1]}, s{sH}, {c[0]}"); a(f"s_cmp_lt_u32 s{sT[1]}, {len(c)}"); a(f"s_cbranch_scc1 {l0}")
            a(f"s_waitcnt vmcnt({n})"); a.label(l0); a(f"s_waitcnt vmcnt({n + 6})")
        else: self.a(f"s_waitcnt vmcnt({n})")
    def wait_wo(self):
        w = [t for t in self.q if t[0] == "wo"]
        if w: self.wait(w[-1])
    def wo(self, steps):
        for st in steps: self.a.all(wo_one(st)); self.add(("wo", st))

def slab_sums(a, base, parts="rmw"):
    s = sT[1]; F, D, A = S_, 48, 60
    if "r" in parts:
        a(f"v_lshrrev_b32 v{A}, 5, v{vLANE}"); a(f"v_mul_u32_u24 v{A}, 3072, v{A}"); a(f"s_add_u32 s{s}, s{sMW}, {base}"); a(f"v_add3_u32 v{A}, v{A}, v{vTR}, s{s}")
        for cb in range(1, 4): a(f"v_xor_b32 v{A+cb}, {32*cb}, v{A}")
        for seg in range(3):
            for cb in range(4): a(f"ds_read_b64_tr_b16 {vr(F+8*seg+2*cb,2)}, v{A+cb} offset:{seg*1024}")
    if "m" in parts:
        a(f"v_bfe_u32 v{D}, v{vLANE}, 2, 2"); a(f"v_lshlrev_b32 v{D}, v{D}, 1")
        for cb in range(4):
            a(f"v_bfe_i32 v{SELA+2*cb}, v{D}, {cb}, 1"); a(f"v_and_b32 v{SELA+2*cb}, 0x3f803f80, v{SELA+2*cb}"); a(f"v_mov_b32 v{SELA+2*cb+1}, v{SELA+2*cb}")
        a("s_waitcnt lgkmcnt(0)")
        for h in range(2):
            for seg in range(3): a(M(D + 4 * seg, SELA + 4 * h, F + 8 * seg + 4 * h, D + 4 * seg if h else "0"))
    if "w" in parts:
        a(f"s_mul_i32 s{s}, s{sU}, 768"); a(f"s_add_u32 s{s}, s{s}, {HX}"); a(f"v_lshl_add_u32 v{A}, v{vLANE}, 2, s{s}")
        for seg in range(3): a(f"ds_write_b32 v{A}, v{D+4*seg} offset:{seg*256}")
        a("s_waitcnt lgkmcnt(0)")
def cs_off(a, d, l, unit, base):
    a(f"s_lshl_b32 s{d}, s{sJ}, 2"); a(f"s_add_u32 s{d}, s{d}, s{sU}"); a(f"s_mul_i32 s{d}, s{d}, {unit}"); a(f"s_add_u32 s{d}, s{d}, {base + l*64*unit}")
def slab_publish(a, l):
    s = sT[1]; F = S_
    a(f"s_min_u32 s{s}, s{sU}, 2"); a(f"s_lshl_b32 s{s}, s{s}, 8"); a(f"s_add_u32 s{s}, s{s}, {HX}"); a(f"v_lshl_add_u32 v{F}, v{vLANE}, 2, s{s}")
    for k in range(4): a(f"ds_read_b32 v{F+1+k}, v{F} offset:{k*768}")
    cs_off(a, s, l, 4096, CSP); a(f"s_lshl_b32 s{s+1}, s{sRB}, 8"); a(f"s_add_u32 s{s}, s{s}, s{s+1}"); a(f"v_lshlrev_b32 v{F}, 2, v{vLANE}")
    a("s_waitcnt lgkmcnt(0)")
    a(f"v_add_f32 v{F+1}, v{F+1}, v{F+2}"); a(f"v_add_f32 v{F+3}, v{F+3}, v{F+4}"); a(f"v_add_f32 v{F+1}, v{F+1}, v{F+3}")
    a(f"buffer_store_dword v{F+1}, v{F}, {sr(sWS)}, s{s} offen sc1")
def slab_post(a, l):
    s = sT[1]; F = S_ + 20
    cs_off(a, s, l, 128, CSFL); a(f"v_and_b32 v{vCF}, 15, v{vLANE}"); a(f"v_lshl_add_u32 v{vCF}, v{vCF}, 3, s{s}")
    a(f"s_lshl_b32 s{s+1}, s{sRB}, 3"); a(f"s_add_u32 s{s}, s{s}, s{s+1}"); a(f"v_mov_b32 v{F+2}, s{s}")
    p0, p1 = post_l(F + 2, F); a.all(p0 + p1)

def chunks(a, L, k):
    L = [x.strip() for x in L]
    return [(lambda part: lambda: a.all(part))(L[i:i + k]) for i in range(0, len(L), k)]
def hand(a, vm, l, what, PXF=''):
    s = sT[1]
    if what[1] == "x" and l >= LAST or what[0] == "p" and l: return []
    sd = sIO if what[1] == "x" else sWS; off = 0 if what[1] == "x" else OB
    def st(k):
        a(f"s_add_u32 s{s}, s{sTILE}, {off}"); (a.all if PXF else a.bymode)([f"buffer_store_dwordx4 {vr(vPO,4)}, v{vL16}, {sr(sd)}, s{s} offen offset:{k*1024}{PXF}"]); vm.add(("p",))
    def touch():
        a(f"s_add_u32 s{s}, s{sTILE}, {off}"); a(f"v_lshlrev_b32 v{S_+22}, 3, v{vL16}")
        a("s_mov_b32 exec_hi, 0"); a(f"buffer_load_dword v{vDUM}, v{S_+22}, {sr(sd)}, s{s} offen sc1"); a("s_mov_b64 exec, -1"); vm.add(("hot",))
    return [touch] if what[0] == "t" else [(lambda k: lambda: st(k))(k) for k in range(4)]
def halo_fill(a, k):
    s = sT[1]
    a(f"s_lshl_b32 s{s}, s{sRB}, 4"); a(f"s_add_u32 s{s}, s{s}, s{sJ}"); a(f"s_lshl_b32 s{s}, s{s}, 2"); a(f"s_add_u32 s{s}, s{s}, s{sU}"); a(f"s_lshl_b32 s{s}, s{s}, 10"); a(f"s_add_u32 s{s}, s{s}, {HB + k * MB}")
    a(f"buffer_store_dwordx4 {vr(vPO,4)}, v{vL16}, {sr(sWS)}, s{s} offen sc1")
def swarm(what, lo, cnt):
    s = sT[1]; p = {"woa": pWOA, "wob": pWOB, "wb": pWB}[what]
    return [f"s_lshl_b32 s{s}, s2, 2", f"s_add_u32 s{s}, s{s}, s{sU}", f"s_mul_i32 s{s}, s{s}, {6144 if what == 'wb' else 2048}", "s_nop 0", f"s_add_u32 s44, s{p}, s{s}", f"s_addc_u32 s45, s{p+1}, 0"] + [f"s_load_dword s46, s[44:45], {k*64}" for k in range(lo, lo + cnt)]
def loader(a, l, vm):
    S, G = S_, S_ + 24
    s = sT[1]; A = l % 2 == 0
    NR = RG1 + 1 if l else RG; NS, NP = NR + 1, NR + 2
    if SUM0: assert RG == RG1 == 0; NR, NS, NP = (-1, -1, 0) if l else (0, 0, 1)
    NF = NF0 if l == 0 else NF1; NPOST = (max(OI) + OID if l == 0 else NP1); NL = NL0 if l == 0 else NL1; assert 2 <= NPOST < NF
    NCF = NCF0 if l == 0 else NCF1
    if LPRIO: a(f"s_setprio {LPRIO}")
    for n in range(17):
        if n == 16 and LPRIO: a("s_setprio 0")
        if n <= 13: kstage(a, l, n + 2, w=n > 0); a(f"s_add_u32 m0, s{sMX}, {XB[(n + 2) % 3]}")
        if n:
            vm.wait(("x", n)); vm.wait(("w", n))
            if n == 15: a("s_waitcnt lgkmcnt(0)")
            if l == 0 and n in DZ and DZ[n] > 0: a(f"s_sleep {DZ[n]}")
            if l == 0 and n in DZ and DZ[n] < 0:
                lp = a.newlabel("Ldz"); a(f"s_mov_b32 s{s}, s{sJ}"); a.label(lp); a(f"s_sleep {-DZ[n]}"); a(f"s_sub_u32 s{s}, s{s}, 1"); a(f"s_cbranch_scc0 {lp}")
            a("s_barrier")
            if a.stamps and TRACE:
                if n > 1: a(f"v_writelane_b32 v5, s100, {l*16 + n - 1}")
                a("s_memrealtime s[100:101]" if RT else "s_memtime s[100:101]")
            if n == 1: a.stamp("l_c")
        D = []; X = []; late = []
        if n <= 13:
            t = G_(a); dma_x(t, l, n + 2); D += [([x], ("x", n + 2)) for x in t.lines[1:]]
            if n:
                t = G_(a); dma_w(t, WB[(n + 2) % 3]); L = t.lines
                D += [(x, ("w", n + 2)) for x in (L[0:2], L[2:3], L[3:4], L[4:6], L[6:7], L[7:8])]
        wo = []
        if not A and TRICKLE and 14 - TRICKLE <= n < 14: wo = [18 + n]
        if n >= 14: wo = (WOA if A else WOB)[n - 14]
        if n == 16 and not A: wo = list(wo) + list(range(24, 32 - TRICKLE))
        D += [(wo_one(st), ("wo", st)) for st in wo]
        if n == 1:
            X += [lambda: a.all([f"s_lshl_b32 s{s}, s{sU}, 8", f"s_add_u32 s{s}, s{s}, {SX}", f"v_add_u32 v{S+4}, s{s}, v{vL16}", f"ds_read_b128 {vr(S,4)}, v{S+4}"]), lambda: None]
            def st():
                a(f"s_lshr_b32 s{s}, s{sTILE}, 4"); a("s_waitcnt lgkmcnt(0)"); a("s_mov_b64 exec, 0xffff")
                a.bymode([f"buffer_store_dwordx4 {vr(S,4)}, v{vL16}, {sr(sWS)}, s{s} offen"]); a("s_mov_b64 exec, -1"); vm.add(("p",))
            X.append(st)
        if l == 0 and n in OI and not NOI: X += hand(a, vm, l, "po", " sc1")[OI.index(n) * 4 // len(OI):(OI.index(n) + 1) * 4 // len(OI)]
        if n == NPOST:
            def post():
                p0, p1 = post_l(S + 22, S + 20, fl="")
                a(f"s_lshr_b32 s{s}, s{sTILE}, 9"); a(f"s_add_u32 s{s}, s{s}, {SFL + l*8192}"); a(f"v_mov_b32 v{S+22}, s{s}"); a.all(p0); vm.wait(("p",))
                a(p1[0]); a.bymode([p1[1]]); a(p1[2]); vm.add(("hot",))
            X.append(post)
        if n == NF: X.append(lambda: (a.flagload(S, vSF), vm.add(("F",))))
        if l < 2 and n == NCF: X.append(lambda: (a.flagload(G + 16, vCF), vm.add(("CF",))))
        if n == NF + 1:
            def chk():
                vm.wait(("F",)); ok = a.newlabel("Lsok"); a.flagtest(S, ok); a.poll(vSF, S); a.label(ok)
            def mode():
                a(f"v_cmp_ne_u32 vcc, s{sN1}, v{S+1}"); a("s_cmp_eq_u64 vcc, 0"); a(f"s_cselect_b32 s{sFAST}, {0 if FORCE_SLOW else 1}, 0")
                a(f"v_mov_b32 v{S+18}, s{sFAST}"); a(f"v_mov_b32 v{S+19}, {TAB+1792}"); a(f"ds_write_b32 v{S+19}, v{S+18}")
            X += [chk] + ([mode] if l == 0 else [])
        for i in [i for i in range(4) if NL[i] == n]:
            assert n > NF
            def sl(i=i):
                a(f"s_lshr_b32 s{s}, s{sTILE}, 16"); a(f"s_lshl_b32 s{s}, s{s}, 12"); assert ST == 0
                a(f"buffer_load_dwordx4 {vr(S+4*i,4)}, v{vL16}, {sr(sWS)}, s{s} offen offset:{i*1024} sc1"); vm.add(("stats",))
            X.append(sl)
        if n == NL[4]:
            L = [f"v_add_f32 v{S+i}, v{S+i}, v{S+8+i}" for i in range(8)] + [f"v_add_f32 v{S+i}, v{S+i}, v{S+4+i}" for i in range(4)]
            L += [f"v_permlane32_swap_b32 v{S}, v{S+2}", f"v_permlane32_swap_b32 v{S+1}, v{S+3}",
                  f"v_add_f32 v{S}, v{S}, v{S+2}", f"v_add_f32 v{S+1}, v{S+1}, v{S+3}", f"v_mov_b32 v{S+2}, v{S}", f"v_mov_b32 v{S+3}, v{S+1}"]
            X += [lambda: vm.wait(("stats",))] + chunks(a, L, 3)
        if n == NL[5]:
            L = [f"v_permlane16_swap_b32 v{S}, v{S+2}", f"v_permlane16_swap_b32 v{S+1}, v{S+3}", f"v_add_f32 v{S}, v{S}, v{S+2}", f"v_add_f32 v{S+1}, v{S+1}, v{S+3}",
                 f"v_mul_f32 v{S}, 0xba800000, v{S}", f"v_mul_f32 v{S+1}, 0x3a800000, v{S+1}",
                 f"v_fma_f32 v{S+1}, -v{S}, v{S}, v{S+1}", f"v_max_f32 v{S+1}, 0, v{S+1}", f"v_add_f32 v{S+1}, 0x3727c5ac, v{S+1}", f"v_rsq_f32 v{S+1}, v{S+1}", f"v_mul_f32 v{S}, v{S}, v{S+1}",
                 f"ds_write_b32 v{vTW}, v{S+1}", f"ds_write_b32 v{vTW}, v{S} offset:512"] + ([f"ds_write_b32 v{vCW}, v{vCS + (l & 1)}"] if l >= 2 else [])
            X += chunks(a, L, 2); assert n <= 14
        def piece(f, tag, k=4):
            t = G_(a); f(t); L = t.lines
            X.extend(chunks(a, L[:-3], k) + [lambda: (a.all(L[-3:]), vm.add(tag))])
        if HOT and n == WOHOT:
            def f(a):
                a(f"s_lshr_b32 s{s}, s2, 3"); a(f"s_lshl_b32 s{s}, s{s}, 6"); a(f"s_lshl_b32 s{s+1}, s{sU}, 4"); a(f"s_add_u32 s{s}, s{s}, s{s+1}")
                a(f"v_add_u32 v{S+20}, s{s}, v{vLANE}"); hot_line(a, S + 21, S + 20, sWO)
                a("s_mov_b64 exec, 0xffff"); a(f"buffer_load_dword v{vDUM}, v{S+21}, {sr(sWO)}, 0 offen"); a("s_mov_b64 exec, -1")
            piece(f, ("hot",))
        if HOT and n % 4 == 0 and n + HOTD + 1 <= 16: piece(lambda t: hot_issue(t, l, n + HOTD + 1, 4, S + 21), ("hot",))
        if (l, n) in WARM:
            def f(a):
                a(f"s_lshl_b32 s{s}, s2, 2"); a(f"s_add_u32 s{s}, s{s}, s{sU}"); a(f"s_lshl_b32 s{s}, s{s}, 11"); a(f"v_lshlrev_b32 v{S+20}, 7, v{vLANE}")
                a("s_mov_b64 exec, 0xffff"); a(f"buffer_load_dword v{vDUM}, v{S+20}, {sr(sWO)}, s{s} offen"); a("s_mov_b64 exec, -1")
            piece(f, ("hot",))
        if l == 0 and n in (HPAT, HPAT + 1): piece(lambda t: halo_fill(t, n - HPAT), ("hp",))
        for what, at in (HANDA if A else HANDB):
            if at == n: assert n > NF + 1 or PXF; X += hand(a, vm, l, what, PXF)
        if l < 2 and n <= NR:
            def f():
                e = a.skip_unless("eq", sH, n); t = G_(a); slab_sums(t, WB[n % 3], "r"); a.all(shift(t.lines, 56)); a.label(e)
            X.append(f); late.append(lambda: a("s_waitcnt lgkmcnt(0)"))
        if l < 2 and n == NS: t = G_(a); slab_sums(t, 0, "mw"); X += chunks(a, shift(t.lines, 56), 4)
        for ll, nn, what, lo, cnt in SWARM:
            if (ll, nn) == (l, n): X += chunks(a, swarm(what, lo, cnt), 2)
        if A and n == WOT:
            def f(a):
                a(f"s_and_b32 s{s}, s{sRB}, 1"); a(f"s_lshl_b32 s{s}, s{s}, 2"); a(f"s_add_u32 s{s}, s{s}, s{sU}"); a(f"s_cmp_ge_u32 s{s}, 1"); a(f"s_addc_u32 s{s+1}, s{s}, 6"); a(f"s_cmp_ge_u32 s{s}, 4"); a(f"s_addc_u32 s{s}, s{s+1}, s{sJ}")
                a(f"s_and_b32 s{s}, s{s}, 15"); a(f"s_lshl_b32 s{s}, s{s}, 10"); a(f"s_add_u32 s{s}, s{s}, s{sJ}"); a(f"s_lshl_b32 s{s}, s{s}, 7"); a(f"v_lshlrev_b32 v{S+20}, 11, v{vLANE}")
                a(f"buffer_load_dword v{vDUM}, v{S+20}, {sr(sWO)}, s{s} offen")
            piece(f, ("hot",), 99)
        if l < 2 and n == NP:
            def f(t): u = G_(a); slab_publish(u, l); t.all(shift(u.lines, 56))
            piece(f, ("cs",))
        if l < 2 and n == NP + 2: X.append(lambda: vm.wait(("cs",))); piece(lambda t: slab_post(t, l), ("hot",))
        if l < 2 and n == NCF + 1:
            def chk():
                vm.wait(("CF",)); ok = a.newlabel("Lcsok"); a.flagtest(G + 16, ok); a.poll(vCF, G + 16); a.label(ok)
            X += [chk, lambda: cs_off(a, s + 4, l, 4096, CSP)]
            X += [(lambda i: lambda: (a(f"buffer_load_dwordx4 {vr(G+4*i,4)}, v{vL16}, {sr(sWS)}, s{s+4} offen offset:{i*1024} sc1"), vm.add(("G",))))(i) for i in range(4)]
        if l < 2 and n == NCF + 3:
            L = [f"v_add_f32 v{G+i}, v{G+i}, v{G+8+i}" for i in range(8)] + [f"v_add_f32 v{G+i}, v{G+i}, v{G+4+i}" for i in range(4)]
            L += [f"v_permlane32_swap_b32 v{G}, v{G+2}", f"v_permlane32_swap_b32 v{G+1}, v{G+3}", f"v_add_f32 v{G}, v{G}, v{G+2}", f"v_add_f32 v{G+1}, v{G+1}, v{G+3}",
                  f"v_permlane16_swap_b32 v{G}, v{G+1}", f"v_add_f32 v{vCS+l}, v{G}, v{G+1}", f"ds_write_b32 v{vCW}, v{vCS+l}"]
            X += [lambda: vm.wait(("G",))] + chunks(a, L, 3)
        V = []
        if l and n + 1 <= NF + 3:
            m = n + 1; ok, rt = a.newlabel("Lxok"), a.newlabel("Lxrt")
            rd = [f"ds_read_b32 v{S+16+k}, v{vXV} offset:{(m % 3)*16384 + k*1024}" for k in range(4)]
            if RD2 == 2: rd = [f"ds_read_b64 {vr(72+2*k,2)}, v{vXV} offset:{(m % 3)*16384 + k*1024}" for k in range(4)]
            if RD2 == 1: rd = [f"ds_read2st64_b32 {vr(S+16+2*k,2)}, v{vXV} offset0:{(m % 3)*64 + 8*k} offset1:{(m % 3)*64 + 8*k + 4}" for k in range(2)]
            T = tag_test(S + 16, range(72, 80, 2) if RD2 == 2 else range(S + 16, S + 20), (l - 1) & 1)
            V = [lambda: (vm.wait(("x", m)), a.all(rd)), lambda: a.all(["s_waitcnt lgkmcnt(0)"] + T), lambda: (a(f"s_cbranch_vccnz {rt}"), a.label(ok))]
            t = G_(a); t.label(rt); t(f"s_mov_b32 s{sT[0]}, 0"); kstage(t, l, m, w=False); t.label(rt + "a"); dma_x(t, l, m); t("s_waitcnt vmcnt(0)"); t.all(rd + ["s_waitcnt lgkmcnt(0)"] + T)
            t(f"s_cbranch_vccz {ok}"); t(f"s_add_u32 s{sT[0]}, s{sT[0]}, 1"); t(f"s_cmp_lt_u32 s{sT[0]}, {SPIN}"); t(f"s_cbranch_scc1 {rt}a"); t(f"s_branch {ok}"); a.tail += t.lines
        gaps = [[] for _ in range(max(1, len(D)))]
        vg = VG if V and n else []
        for g, f in zip(vg, V): gaps[g].append(f)
        free = [g for g in range(len(gaps)) if g not in vg[1:]]; free = free[:-1] or free
        for k, f in enumerate(X): gaps[free[k * len(free) // len(X)]].append(f)
        for k, g in enumerate(gaps):
            if k < len(D): a.all(D[k][0]); vm.add(D[k][1])
            for f in g: f()
        for f in late + ([] if vg else V): f()
def G_(a):
    t = G(a.stamps); t.newlabel = a.newlabel; t.tail = a.tail
    return t
def shift(lines, d):
    import re
    def one(m): n = int(m.group(1)); return f"v{n + d}" if 24 <= n < 72 else m.group(0)
    def rng(m): p, q = int(m.group(1)), int(m.group(2)); return f"v[{p+d}:{q+d}]" if 24 <= p < 72 else m.group(0)
    return [re.sub(r"\bv(\d+)\b", one, re.sub(r"\bv\[(\d+):(\d+)\]", rng, x)).strip() for x in lines]

def between(a, l, vm):
    s = sT[1]; A = l % 2 == 0
    if A: vm.wo(range(LATE, 32))
    if l == LAST:
        if TO3:
            for f in hand(a, vm, l, "to"): f()
        vm.wait_wo(); a("s_barrier"); a("s_barrier"); return
    n = l + 1; assert l or PZ or HPAT < 15 or any('hp' in x for x in WSCH[0])
    a(f"s_mov_b32 s{sL}, {n}")
    p = (pWB, pWOB) if n & 1 else (pWA, pWOA)
    a(f"s_mov_b32 s{sW}, s{p[0]}"); a(f"s_mov_b32 s{sW+1}, s{p[0]+1}")
    if l == 0:
        setup_w(a, False); setup_x(a, 1); assert 1 in ROTL
        a(f"s_andn2_b32 s{sGO}, s{sRB}, {RG1}"); a(f"s_cmp_eq_u32 s{sGO}, 15"); a(f"s_cselect_b32 s{sGO}, 0, s{sGO}")
        a(f"s_and_b32 s{sH}, s{sRB}, {RG1}"); a(f"s_add_u32 s{sH}, s{sH}, 1"); a(f"s_cmp_eq_u32 s{sRB}, 15"); a(f"s_cselect_b32 s{sH}, 0, s{sH}")
    a(f"v_add_u32 v{vSF}, 8192, v{vSF}")
    if HOT: hot_setup(a, n, S_)
    def batch(k):
        for ll, nn, what, lo, cnt in SWARM:
            if (ll, nn) == (l, 17 + k): a.all(swarm(what, lo, cnt))
        for st in WSCH[l][k]:
            if st == "hp": halo_fill(a, 0); halo_fill(a, 1); vm.add(("hp",), 2); continue
            if st in ("tx", "to"):
                for f in hand(a, vm, l, st): f()
                continue
            if st == "h":
                if HOT: hot_issue(a, n, int(n in ROTL), HOTD + 1, S_); vm.add(("hot",))
                continue
            assert st <= k
            kstage(a, n, st, x=False); t = G_(a); dma_w(t, WB[st])
            for x in t.lines:
                if "buffer" in x and WP[l] is not None: a(f"s_waitcnt vmcnt({WP[l]})")
                a(x)
            vm.add(("w", st), 6)
    batch(0)
    if not A: vm.wait_wo()
    a.stamp("l_a")
    a("s_barrier")
    batch(1)
    vm.wait_wo()
    a(f"s_mov_b32 s{sWO}, s{p[1]}"); a(f"s_mov_b32 s{sWO+1}, s{p[1]+1}")
    a("s_barrier")
    batch(2)
    if l == 0 and SUM0:
        vm.wait(("w", 0)); vm.wait(("w", 1)); a(f"s_cmp_eq_u32 s{sH}, 0"); a(f"s_cselect_b32 s{s+5}, {WB[0]}, {WB[1]}"); slab_sums(a, f"s{s+5}")
    vm.wait(("w", 0))
    kstage(a, n, 1, w=False)
    a.stamp("l_b")
    a("s_barrier")
    dma_x(a, n, 1); vm.add(("x", 1), 4)

ACC, FR, AX, AW = 24, 120, 200, 202
def acc(q, i): return ACC + 32 * (q >> 1) + 8 * i + 4 * (q & 1) if q < 4 else ACC + 64 + 16 * (q & 1) + 4 * i
xf = lambda p, i: FR + 40 * p + 4 * i
wf = lambda p, q: FR + 40 * p + 16 + 4 * q
snake = lambda qs: [(q, i if k % 2 == 0 else 3 - i) for k, q in enumerate(qs) for i in range(4)]
VORD = [(4 + (b ^ (i & 1)), i) for i in range(4) for b in range(2)]
ORD = snake([0, 1, 2, 3]) + VORD; KVORD = snake([2, 3]) + VORD; QORD = snake([0, 1])
def g1m(p, order, init=False):
    return [M(acc(q, i), *((wf(p, q), xf(p, i)) if q < 4 else (xf(p, i), wf(p, q))), "0" if init else acc(q, i)) for q, i in order]
def g1r(p, n, ks, qs=range(6)):
    slot = n % 3
    rx = lambda i: f"ds_read_b128 {vr(xf(p,i),4)}, v{AX+ks} offset:{slot*16384 + i*2048}"
    rw = lambda q: [f"ds_read_b64_tr_b16 {vr(wf(p,q)+2*e,2)}, v{AW + (q & 1) + (0 if slot else 2)} offset:{(WB[slot] if slot else 0) + (4*ks + 2*e)*3072 + (q >> 1)*1024}" for e in range(2)]
    qs = list(qs)
    return [rx(0)] + rw(qs[0]) + [rx(1), rx(2), rx(3)] + [x for q in qs[1:] for x in rw(q)]
def stage(a, n, h0=None, h1=None, first=False, bar=1):
    f0 = {k: [x] for k, x in enumerate(g1r(1, n, 1))}
    if first:
        for m, need in ((1, 4), (2, 5), (3, 6), (4, 8), (8, 10), (12, 12), (16, 16)): f0[m - 1].append(f"s_waitcnt lgkmcnt({min(15, 16 - need + m)})")
    else: f0[7].append("s_waitcnt lgkmcnt(8)")
    f0[23] = ["s_waitcnt lgkmcnt(4)"]
    f1 = {bar + 1 + k: [x] for k, x in enumerate(g1r(0, n + 1, 0))}
    f1[bar - 1] = ["s_waitcnt lgkmcnt(0)"]; f1[bar] = ["s_barrier"]
    f1.setdefault(max(22, bar + 17), []).append("s_waitcnt lgkmcnt(4)")
    for f, h in ((f0, h0), (f1, h1)):
        for g, L in (h or {}).items(): f.setdefault(g, []).extend(L)
    weave(a, g1m(0, ORD, first), f0); weave(a, g1m(1, ORD), f1)
AB, CK, CQ, CV, TA, MD = 206, 214, 192, 230, 248, 252
VT = {3: 232, 2: 240, 1: 144, 0: 152}; TM = 184
SD, SQ, SFA = 206, 230, 236
BD, ONE = 222, 226
def c_setup(a, first):
    s = sT[1]
    a(f"s_lshr_b32 s{s}, s{sWID}, 1"); a(f"s_lshl_b32 s{s}, s{s}, 13"); a(f"s_add_u32 s{s}, s{s}, {XB[0]}")
    if not first: a(f"v_add_u32 v{AX}, s{s}, v{vL16}"); a(f"v_add_u32 v{AX+1}, 1024, v{AX}"); return
    a(f"v_and_b32 v{AX}, 15, v{vLANE}"); a(f"v_bfe_u32 v{AX+1}, v{vLANE}, 1, 3"); a(f"v_lshrrev_b32 v{AW}, 4, v{vLANE}"); a(f"v_xor_b32 v{AX+1}, v{AX+1}, v{AW}")
    a(f"v_lshlrev_b32 v{AX}, 7, v{AX}"); a(f"v_lshlrev_b32 v{AX+1}, 4, v{AX+1}"); a(f"v_add3_u32 v{AX}, v{AX}, v{AX+1}, s{s}"); a(f"v_xor_b32 v{AX+1}, 64, v{AX}")
    a(f"s_and_b32 s{s+1}, s{sWID}, 1"); a(f"s_lshl_b32 s{s+2}, s{s+1}, 6"); a(f"v_xor_b32 v{AW}, s{s+2}, v{vTR}")
    a(f"v_lshrrev_b32 v{AW+1}, 5, v{vLANE}"); a(f"v_mul_u32_u24 v{AW+1}, 3072, v{AW+1}"); a(f"v_add_u32 v{AW}, v{AW}, v{AW+1}"); a(f"v_xor_b32 v{AW+1}, 32, v{AW}")
    for k in range(2): a(f"v_add_u32 v{AW+2+k}, {WB[0]}, v{AW+k}")
    a(f"s_lshr_b32 s{s}, s{sWID}, 1"); a(f"s_lshl_b32 s{s}, s{s}, 8"); a(f"s_add_u32 s{s}, s{s}, {TAB}"); a(f"s_lshl_b32 s{s+1}, s{s+1}, 7"); a(f"s_add_u32 s{s+1}, s{s+1}, {TAB+1024}")
    a(f"v_and_b32 v{TA+3}, 15, v{vLANE}"); a(f"v_and_b32 v{TA+2}, 48, v{vLANE}")
    a(f"v_lshl_add_u32 v{TA}, v{TA+3}, 2, s{s}"); a(f"v_add_u32 v{TA+1}, s{s}, v{TA+2}"); a(f"v_add_u32 v{TA+2}, s{s+1}, v{TA+2}"); a(f"v_lshl_add_u32 v{TA+3}, v{TA+3}, 2, s{s+1}")
def stat_mfma():
    L = []
    for ks in range(2):
        for t in range(2):
            x = XRES + 8 * t + 4 * ks
            L += [M(SD + 8 * t, ONE, x, SD + 8 * t if ks else "0"), M(SD + 8 * t + 4, x, x, SD + 8 * t + 4 if ks else "0")]
    return L
def epi_qk(seg, i, cs):
    r = acc(2 * seg, i); ab = AB + 2 * i; L = []
    for p in range(4):
        t = TM + 2 * p
        L += [f"v_pk_mul_f32 {vr(t,2)}, {vr(cs+2*p,2)}, {vr(ab,2)} op_sel:[0,1] op_sel_hi:[1,1]", f"v_pk_fma_f32 {vr(t,2)}, {vr(r+2*p,2)}, {vr(ab,2)}, {vr(t,2)} op_sel_hi:[1,0,1]",
              f"v_cvt_pk_bf16_f32 v{r+p}, v{t}, v{t+1}"]
    return L
vout = lambda b, i: acc(4 + b, 0) + 8 + 2 * i
def epi_v(i):
    L = []
    for b in range(2):
        for p in (1, 0):
            t = TM + 2 * (2 * b + p); r = acc(4 + b, i) + 2 * p
            L += [f"v_pk_mul_f32 {vr(t,2)}, {vr(VT[i]+4+2*p,2)}, {vr(CV,2)} op_sel:[0,{b}] op_sel_hi:[1,{b}]", f"v_pk_fma_f32 {vr(t,2)}, {vr(r,2)}, {vr(VT[i]+2*p,2)}, {vr(t,2)}",
                  f"v_cvt_pk_bf16_f32 v{vout(b,i)+p}, v{t}, v{t+1}"]
    return L
def consumer(a):
    s = sT[1]
    a("s_barrier")
    a.stamp("g1start")
    a.all(g1r(0, 0, 0)); a("s_waitcnt lgkmcnt(13)")
    ex = []
    for t in range(2):
        d = SD + 8 * t + 4
        ex += [f"v_cndmask_b32 v{d}, v{d}, v{d+1}, {sr(mB0,2)}", f"v_cndmask_b32 v{d+2}, v{d+2}, v{d+3}, {sr(mB0,2)}", f"v_mov_b32 v{SQ+2*t}, v{d-4}", f"v_cndmask_b32 v{SQ+2*t+1}, v{d}, v{d+2}, {sr(mB1,2)}"]
    ex += [f"v_and_b32 v{SFA}, 0xf0, v{vL16}", f"s_lshl_b32 s{s}, s{sWID}, 8", f"s_add_u32 s{s}, s{s}, {SX}", f"v_add_u32 v{SFA}, s{s}, v{SFA}"]
    h0 = {}; spread(h0, [ex[k:k+2] for k in range(0, len(ex), 2)], range(16, 23))
    h1 = {1: ["s_mov_b32 exec_lo, 0x00f0000f", "s_mov_b32 exec_hi, 0xf0000f00", f"ds_write_b128 v{SFA}, {vr(SQ,4)}", "s_mov_b64 exec, -1"], 3: [f"s_mov_b32 s{sCNT}, 0"]}
    stage(a, 0, h0, h1, first=True, bar=BAR0); assert BAR0 >= 4
    stage(a, 1, {22: ["s_waitcnt vmcnt(0)"]})
    a(".p2align 3")
    a.label("L_cloop")
    stage(a, 2); stage(a, 3); stage(a, 4, None, {19: [f"s_add_u32 s{sCNT}, s{sCNT}, 1"], 20: [f"s_cmp_lt_u32 s{sCNT}, 4"], 23: ["s_cbranch_scc1 L_cloop"]})
    stage(a, 14, {17: [f"v_mov_b32 v{MD}, {TAB+1792}"]})
    f = {k: [x] for k, x in enumerate(g1r(1, 15, 1, [2, 3, 4, 5, 0, 1]))}
    f[7].append("s_waitcnt lgkmcnt(8)"); f[15].append("s_waitcnt lgkmcnt(8)")
    weave(a, g1m(0, KVORD), f)
    ab = lambda i: f"ds_read2_b32 {vr(AB+2*i,2)}, v{TA} offset0:{16*i} offset1:{128+16*i}"
    vt = lambda i: [f"ds_read_b128 {vr(VT[i]+4*k,4)}, v{TA+1} offset:{k*512 + i*64}" for k in range(2)]
    cs = lambda d, seg: [f"ds_read_b128 {vr(d+4*b,4)}, v{TA+2} offset:{seg*256 + b*64}" for b in range(2)]
    tr = [ab(3)] + cs(CK, 1) + [f"ds_read2_b32 {vr(CV,2)}, v{TA+3} offset0:128 offset1:144"] + vt(3) + [ab(2)] + vt(2) + [ab(1)] + vt(1) + [ab(0)] + vt(0) + cs(CQ, 0) + [f"ds_read_b32 v{MD}, v{MD}"]
    f = {k: [x] for k, x in enumerate(tr[:15])}; f[15] = tr[15:]
    f[4].append("s_waitcnt lgkmcnt(5)"); f[5].append("s_barrier")
    f[12].append(f"s_bitcmp1_b32 s{sL}, 0")
    weave(a, g1m(1, KVORD), f)
    a.stamp("g1kv")
    a("s_cbranch_scc1 L_tailB")

def q_scale(): return [f"s_mov_b32 s{sT[9]}, {QSCALE}"] + [f"v_mul_f32 v{AB+k}, s{sT[9]}, v{AB+k}" for k in range(8)]
Qr = lambda t: acc(0, 2 + t)
Kr = lambda par, c: acc(2, 2 * (1 - par) + c)
Vr = lambda par, b: vout(b, 2 * (1 - par))
SS, PP, OO, LL, BO, AD, MI = 120, 136, 144, 160, 236, 244, 245
def masks_A():
    L = []
    for r in range(4): L += [f"v_subrev_u32 v{BD+r}, {r}, v{vD0}", f"v_ashrrev_i32 v{BD+r}, 31, v{BD+r}", f"v_and_b32 v{BD+r}, {BIG}, v{BD+r}"]
    return L
ones = lambda val="0x3f803f80": [f"v_mov_b32 v{ONE+k}, {val}" for k in range(4)]
def blocks(kind, t):
    if kind == "diag": return [(0, BD)] if t == 0 else [(0, "0"), (1, BD)]
    if kind == "old": return [(0, BO), (1, "0")] if t == 0 else [(1, BO)]
    return [(0, "0"), (1, "0")]
def s_mf(kind, par, t): return [M(SS + 8 * t + 4 * c, Kr(par, c), Qr(t), C) for c, C in blocks(kind, t)]
def pv_mf(par, t, init=False):
    return [M(OO + 8 * t + 4 * b, Vr(par, b), PP + 4 * t, "0" if init else OO + 8 * t + 4 * b) for b in range(2)] + [M(LL + 4 * t, ONE, PP + 4 * t, "0" if init else LL + 4 * t)]
def kv_rd(par, off, what):
    R = Kr if what == "K" else Vr; o = off + (0 if what == "K" else 2048)
    return [f"ds_read_b128 {vr(R(par,k),4)}, v{AD} offset:{o + k*1024}" for k in range(2)]
def half(a, kind, t, nxt, pv, rd=(), top=(), mid=(), early=False):
    valu = []; cs = [c for c, _ in blocks(kind, t)]
    for c in cs:
        s = SS + 8 * t + 4 * c; p = PP + 4 * t + 2 * c
        valu += [f"v_exp_f32 v{s}, v{s}", f"v_exp_f32 v{s+1}, v{s+1}", f"v_exp_f32 v{s+2}, v{s+2}", f"v_cvt_pk_bf16_f32 v{p}, v{s}, v{s+1}", f"v_exp_f32 v{s+3}, v{s+3}", None, f"v_cvt_pk_bf16_f32 v{p+1}, v{s+2}, v{s+3}"]
    if len(cs) == 2: valu[5] = valu.pop(7)
    else: z = PP + 4 * t + 2 * (1 - cs[0]); valu[5] = f"v_mov_b32 v{z}, 0"; valu.insert(2, f"v_mov_b32 v{z+1}, 0")
    valu = [x for x in valu if x]
    mf = list(nxt) + list(pv); a.all(top)
    at = ATAT if len(valu) > 8 else [0, 1, 3, 4, 5]
    ins = {}
    for k, x in enumerate(mf): ins.setdefault(at[k], []).append(x)
    rd = list(rd)
    for k in range(len(rd)): ins.setdefault(at[k if early else max(0, len(mf) - len(rd) + k)], []).append(rd[k])
    for k, x in enumerate(mid): ins.setdefault(at[min(len(mf) - 1, (2 + k) if early else k)], []).extend(x)
    for k, x in enumerate(valu): a.all(ins.get(k, [])); a(x)
def local_steps(a, T, have, init, hook=None):
    off = lambda s: (3 - s) * 8192
    kind = lambda s: "diag" if s == 0 else "full"
    a.all(s_mf("diag", 0, 0))
    for s in range(T + 1):
        par = s & 1; more = have <= s + 1 <= T
        half(a, kind(s), 0, s_mf(kind(s), par, 1), pv_mf(par ^ 1, 1, init and s == 1) if s else [], kv_rd(par ^ 1, off(s + 1), "K") if more else [], early=True)
        half(a, kind(s), 1, s_mf("full", par ^ 1, 0) if s < T else [], pv_mf(par, 0, init and s == 0), kv_rd(par ^ 1, off(s + 1), "V") if more else [], top=["s_waitcnt lgkmcnt(0)"] if s + 1 >= have else [])
        if hook and s == hook[0]: a.all(hook[1])
RTILE = [3, 2, 1, 0, 3, 2, 1, 0]
def fetch(F, steps):
    s = sT[1]; back = None; out = []
    for n in steps:
        L = []
        if back != 1 + (n >> 2):
            back = 1 + (n >> 2)
            L += [f"s_and_b32 s{s}, s{sKVS}, {~0x6000 & 0xffffffff}", f"s_sub_u32 s{s}, s{s}, {back << 19}", f"s_cmp_lt_u32 s{sRB}, {back}", f"s_cselect_b32 s{s}, {OOB}, s{s}",
                  f"v_add_u32 v{F}, s{s}, v{vL16}", f"s_and_b32 s{s+1}, s{sKVS}, 4096"]
        L += [f"s_add_u32 m0, s{s+1}, {REM + n*8192}", f"s_mov_b32 s{s}, {RTILE[n]*8192}"]
        for k in range(4): out.append(L + [f"buffer_load_dwordx4 v{F}, {sr(sWS)}, s{s} offen offset:{k*1024} sc1 lds"]); L = []
    return out
def before_Z():
    s = sT[1]
    return [f"s_and_b32 s{s}, s{sKVS}, 4096", f"s_add_u32 s{s}, s{s}, {REM}", f"v_add_u32 v{AD}, s{s}, v{vL16}"] + [f"v_xor_b32 v{BO+r}, {BIG}, v{BD+r}" for r in range(4)]
def w_touch(k, v):
    s = sT[1]
    return [f"s_mov_b32 s40, s{pWB}", f"s_mov_b32 s41, s{pWB+1}", "s_mov_b32 s42, 6291456", "s_mov_b32 s43, 0x00020000",
            f"s_and_b32 s{s}, s{sRB}, 1", f"s_lshl_b32 s{s}, s{s}, 2", f"s_add_u32 s{s}, s{s}, s{sU}", f"s_mul_i32 s{s}, s{s}, 36", f"s_mul_i32 s{s+1}, s{sJ}, 192", f"s_add_u32 s{s}, s{s}, s{s+1}", f"s_add_u32 s{s}, s{s}, {288*k}",
            f"v_add_u32 v{v}, s{s}, v{vLANE}", f"v_subrev_u32 v{v+1}, 3072, v{v}", f"v_min_u32 v{v}, v{v}, v{v+1}", f"v_lshlrev_b32 v{v}, 11, v{v}", f"s_lshl_b32 s{s}, s{sJ}, 7",
            "s_mov_b32 exec_hi, 15", f"buffer_load_dword v{vDUM}, v{v}, s[40:43], s{s} offen", "s_mov_b64 exec, -1"]
def o_touch(v):
    s = sT[1]
    return [f"s_add_u32 s{s}, s{sTILE}, {OB}", f"v_lshlrev_b32 v{v}, 3, v{vL16}", "s_mov_b32 exec_hi, 0", f"buffer_load_dword v{vDUM}, v{v}, {sr(sWS)}, s{s} offen sc1", "s_mov_b64 exec, -1"]
def remote_steps(a, T):
    R = 8 - T; vm = VM(a); par = lambda r: (T + 1 + r) & 1; kind = lambda r: "old" if r == R - 1 else "full"
    X = {}
    if T >= 2:
        F = fetch(MI, [T + 2, T + 4]); wo = lambda L: [(wo_one(st), ("wo", st)) for st in L]
        X[-1] = [(x, ("kv",)) for x in F[:F2A]]
        def deal(L, h0, h1):
            for k, x in enumerate(L): X.setdefault(h0 + k * (h1 - h0) // len(L), []).append(x)
        if F2A < 8: deal([(x, ("kv",)) for x in F[F2A:]], 0, 2)
        early = {st for L in WOA + [WOY] for st in L}
        deal(wo([st for st in range(0, 26) if st not in early]), 2, 6); deal(wo(range(26, LATE)) + [(w_touch(k, MI), ("t",)) for k in range(WT)] + [(o_touch(MI), ("t",))] * TOA, 6, 9); assert 28 <= LATE <= 30
    if PZ and T % 2 == 0:
        assert PZ >= 6
        for k in range(3):
            t = G_(a); e = t.skip_unless("eq", sL, 0)
            if k < 2:
                for f in hand(t, VM(t), 0, "px", " sc1")[2*k:2*k+2]: f()
            else: halo_fill(t, 0); halo_fill(t, 1)
            t.label(e); X.setdefault(PZ + k, []).append(([x.strip() for x in t.lines], ("t",)))
    def ex(h):
        for x, tag in X.get(h, []): vm.add(tag)
        return [x for x, _ in X.get(h, [])]
    a.all(kv_rd(par(0), 0, "K") + kv_rd(par(0), 0, "V"))
    for x in ex(-1): a.all(x)
    a("s_waitcnt lgkmcnt(2)"); a.all(s_mf("full", par(0), 0))
    for r in range(R):
        p = par(r); more = r + 1 < R
        if r == 1:
            if T == 0: a("s_waitcnt vmcnt(0)")
            a("s_barrier"); a.stamp("end")
        if r == 3:
            vm.wait(("kv",)); a("s_barrier"); a.stamp("Z2")
        half(a, kind(r), 0, s_mf(kind(r), p, 1), pv_mf(p ^ 1, 1), kv_rd(p ^ 1, (r + 1) * 8192, "K") if more else [], mid=ex(2 * r), early=True)
        if r in (0, 4): e = a.skip_unless("eq", sRB, r >> 2); a.all(ones("0")); a.label(e)
        half(a, kind(r), 1, s_mf(kind(r + 1), p ^ 1, 0) if more else [], pv_mf(p, 0), kv_rd(p ^ 1, (r + 1) * 8192, "V") if more else [], mid=ex(2 * r + 1), top=["s_waitcnt lgkmcnt(0)"])
    assert par(R - 1) == 0
    a("s_branch L_afin")
def finish_A(a):
    s = sT[1]; R = MI
    fin = lambda t: [f"v_rcp_f32 v{R+t}, v{LL+4*t}"] + [f"v_mul_f32 v{OO+8*t+k}, v{OO+8*t+k}, v{R+t}" for k in range(8)] + pack(OO + 8*t, OO + 8*t, 0, R + 2)
    a.all(fin(0)); a(M(SS, ONE, OO, "0")); a.all(fin(1)); a(M(SS, ONE, OO + 8, SS))
    a(f"v_max_f32 v{R}, v{LL}, v{LL+4}"); a(f"v_min_f32 v{R+1}, v{LL}, v{LL+4}")
    a(f"v_cmp_nge_f32 vcc, 0x5d800000, v{R}"); a(f"s_mov_b64 {sr(s+1,2)}, vcc"); a(f"v_cmp_nle_f32 vcc, 0x21800000, v{R+1}"); a(f"s_or_b64 {sr(s+1,2)}, vcc, {sr(s+1,2)}")
    a(f"v_mov_b32 v{R}, 0x207"); a(f"v_cmp_class_f32 vcc, v{SS}, v{R}"); a(f"s_or_b64 vcc, vcc, {sr(s+1,2)}")
    if FORCE_EXACT: a("s_mov_b64 vcc, -1")
    a("s_cbranch_vccnz L_exact")
    a.label("L_ostore")
    if PZ: a("s_waitcnt vmcnt(0)")
    a.bymode([f"buffer_store_dwordx4 {vr(OO+8*t,4)}, v{vL16}, {sr(sWS)}, s{sOA} offen offset:{t*1024}" for t in range(2)])
    t = G_(a); exact_A(t); t.all(fin(0) + fin(1)); t("s_branch L_ostore"); a.tail += t.lines
def kv_flag_addr(a, v, t):
    s = sT[1]
    a(f"s_and_b32 s{s}, s{sKF}, 0xfffff00f"); a(f"s_sub_u32 s{s}, s{s}, 256"); a(f"v_and_b32 v{t}, 16, v{vL16}"); a(f"v_add_u32 v{t}, s{s}, v{t}"); assert KVFL % 4096 == 0
    a(f"v_bfe_u32 v{v}, v{vLANE}, 1, 1"); a(f"v_sub_u32 v{v}, s{sRB}, v{v}"); a(f"v_max_i32 v{v}, 1, v{v}"); a(f"v_lshl_add_u32 v{v}, v{v}, 8, v{t}")
def exact_A(a):
    s = sT[1]; D, MX, BG, T_ = MI + 2, MI, 168 + 12, 168 + 13
    sN, sI, sP = sT[12], sT[13], sT[11]
    a.label("L_exact")
    a(f"s_lshl_b32 s{sN}, s{sRB}, 2"); a(f"s_add_u32 s{sN}, s{sN}, s{sT32}")
    a(f"s_mov_b32 s{sP}, 0"); a.all(ones()); a(f"v_mov_b32 v{BG}, {BIG}"); a(f"v_mov_b32 v{MX}, {BIG}"); a(f"v_mov_b32 v{MX+1}, {BIG}")
    if DIAG: srd(a, 40, pDBG, 256); a(f"v_mov_b32 v{T_}, 4"); a(f"v_mov_b32 v{D}, 1"); a("s_mov_b64 exec, 1"); a(f"buffer_atomic_add v{D}, v{T_}, {sr(40)}, 0 offen"); a("s_mov_b64 exec, -1")
    for r in range(OO, LL + 8): a(f"v_mov_b32 v{r}, 0")
    a.label("L_expass")
    a(f"s_mov_b32 s{sI}, 0"); a(f"v_mov_b32 v{D}, v{vD0}")
    a.label("L_exstep")
    a(f"s_sub_u32 s{s}, s{sN}, s{sI}"); a(f"s_lshr_b32 s{s+1}, s{s}, 2"); a(f"s_lshl_b32 s{s+1}, s{s+1}, 19"); a(f"s_and_b32 s{s}, s{s}, 3"); a(f"s_lshl_b32 s{s}, s{s}, 13"); a(f"s_add_u32 s{s}, s{s}, s{s+1}")
    a(f"s_lshl_b32 s{s+1}, s{sJ}, 15"); a(f"s_add_u32 s{s}, s{s}, s{s+1}"); a(f"s_and_b32 s{s+1}, s{sWID}, 1"); a(f"s_lshl_b32 s{s+1}, s{s+1}, 12"); a(f"s_add_u32 s{s}, s{s}, s{s+1}"); a(f"s_add_u32 s{s}, s{s}, {KV}")
    a(f"s_lshl_b32 s{s+1}, s{sL}, 22"); a(f"s_add_u32 s{s}, s{s}, s{s+1}")
    for k, d in enumerate((Kr(0, 0), Kr(0, 1), Vr(0, 0), Vr(0, 1))): a(f"buffer_load_dwordx4 {vr(d,4)}, v{vL16}, {sr(sWS)}, s{s} offen offset:{k*1024} sc1")
    a("s_waitcnt vmcnt(0)")
    a.all(s_mf("full", 0, 0) + s_mf("full", 0, 1))
    for t in range(2):
        for c in range(2):
            for r in range(4):
                x = SS + 8 * t + 4 * c + r
                a(f"v_add_u32 v{T_}, {(16*t - 16*c - r) & 0xffffffff if 16*t - 16*c - r < -16 else 16*t - 16*c - r}, v{D}"); a(f"v_cmp_gt_u32 vcc, 0x100, v{T_}"); a(f"v_cndmask_b32 v{x}, v{BG}, v{x}, vcc")
    a(f"s_cmp_lg_u32 s{sP}, 0"); a("s_cbranch_scc1 L_exp2")
    for t in range(2):
        for k in range(0, 8, 2): a(f"v_max3_f32 v{MX+t}, v{MX+t}, v{SS+8*t+k}, v{SS+8*t+k+1}")
    a("s_branch L_exnext")
    a.label("L_exp2")
    for k in range(16): a(f"v_sub_f32 v{SS+k}, v{SS+k}, v{MX+(k>>3)}")
    for k in range(16): a(f"v_exp_f32 v{SS+k}, v{SS+k}")
    for k in range(8): a(f"v_cvt_pk_bf16_f32 v{PP+k}, v{SS+2*k}, v{SS+2*k+1}")
    a.all(pv_mf(0, 0) + pv_mf(0, 1))
    a.label("L_exnext")
    a(f"v_add_u32 v{D}, 32, v{D}"); a(f"s_add_u32 s{sI}, s{sI}, 1"); a(f"s_min_u32 s{s}, s{sN}, 8"); a(f"s_cmp_le_u32 s{sI}, s{s}"); a("s_cbranch_scc1 L_exstep")
    for w in (32, 16):
        for t in range(2): a(f"v_mov_b32 v{T_}, v{MX+t}"); a(f"v_permlane{w}_swap_b32 v{MX+t}, v{T_}"); a(f"v_max_f32 v{MX+t}, v{MX+t}, v{T_}")
    a(f"s_add_u32 s{sP}, s{sP}, 1"); a(f"s_cmp_lt_u32 s{sP}, 2"); a("s_cbranch_scc1 L_expass")

def tail_A(a):
    s = sT[1]; FA, FD, WA, QA = 245, 246, 253, 254
    st = lambda r, t, k: f"buffer_store_dwordx4 {vr(r,4)}, v{vL16}, {sr(sWS)}, s{s if t else sKVS} offen offset:{k*1024} sc1"
    a(f"s_add_u32 s{s}, s{sKVS}, 8192"); a("s_waitcnt lgkmcnt(9)")
    for t in (1, 0):
        a.all(epi_qk(1, 2*t+1, CK)); a(st(acc(2, 2*t+1), t, 1)); a.all(epi_v(2*t+1))
        a.all(epi_qk(1, 2*t, CK)); a(st(acc(2, 2*t), t, 0)); v = epi_v(2*t)
        a.all(v[:6]); a(st(vout(0, 2*t), t, 2)); a.all(v[6:]); a(st(vout(1, 2*t), t, 3))
        if t: a("s_waitcnt lgkmcnt(0)")
    a.stamp("epi")
    e = a.skip_unless("eq", sL, 0); a(f"v_readfirstlane_b32 s{sFAST}, v{MD}"); a.label(e)
    a(f"s_and_b32 s{s}, s{sKVS}, 0x7fff"); a(f"s_add_u32 s{s}, s{s}, {OWN}"); a(f"v_add_u32 v{WA}, s{s}, v{vL16}"); assert KV % 32768 == 0
    wr = lambda t: [f"ds_write_b128 v{WA}, {vr(r,4)} offset:{t*8192 + k*1024}" for k, r in enumerate((acc(2, 2*t), acc(2, 2*t+1), vout(0, 2*t), vout(1, 2*t)))]
    p0, p1 = post_l(FA, FD)
    qa = [f"s_xor_b32 s{s+1}, s{sWID}, 2", f"s_lshl_b32 s{s+1}, s{s+1}, 11", f"s_add_u32 s{s+1}, s{s+1}, {QX}", f"v_add_u32 v{QA}, s{s+1}, v{vL16}"]
    a(f"s_cmp_ge_u32 s{sWID}, 2"); a("s_cbranch_scc1 L_tailA3")
    for T in (1, 3):
        if T == 3: a.label("L_tailA3")
        W = wr(0) + (wr(1) if T == 1 else [])
        X = q_scale() + qa + [f"v_mov_b32 v{FA}, s{sKF}"] + p0
        f = {}; spread(f, W, range(0, 16, 2))
        free = [g for g in range(16) if g not in f]; per = -(-len(X) // len(free))
        spread(f, [X[k:k+per] for k in range(0, len(X), per)], free)
        weave(a, g1m(0, QORD) + g1m(1, QORD), f)
        a.stamp("qmm")
        for i in range(2): a.all(epi_qk(0, i, CQ)); a(f"ds_write_b128 v{QA}, {vr(acc(0,i),4)} offset:{i*1024}")
        a.all(epi_qk(0, 2, CQ))
        if T == 3: a(f"v_subrev_u32 v{AD}, {2*8192}, v{WA}")
        a.all(epi_qk(0, 3, CQ))
        a("s_waitcnt lgkmcnt(0)"); a("s_barrier")
        a.stamp("Y")
        local_steps(a, T, 2, True, (min(T, F1AT), ["s_waitcnt vmcnt(0)"] + p1))
        a.stamp("loc")
        a.all(before_Z())
        a("s_barrier")
        a.stamp("Z")
        remote_steps(a, T)
def att_A_loader(a):
    s = sT[1]; F = 180
    a.all(ones())
    for r in range(OO, LL + 8): a(f"v_mov_b32 v{r}, 0")
    a(f"s_lshl_b32 s{s}, s{sU}, 11"); a(f"s_add_u32 s{s}, s{s}, {QX}"); a(f"v_add_u32 v{MI}, s{s}, v{vL16}")
    a(f"s_lshl_b32 s{s}, s{sT32}, 1"); a(f"s_and_b32 s{s+1}, s{sU}, 1"); a(f"s_add_u32 s{s}, s{s}, s{s+1}"); a(f"s_lshl_b32 s{s}, s{s}, 12"); a(f"s_add_u32 s{s}, s{s}, {OWN - 3*8192}"); a(f"v_add_u32 v{AD}, s{s}, v{vL16}")
    qrd = [f"ds_read_b128 {vr(Qr(t),4)}, v{MI} offset:{t*1024}" for t in range(2)]
    a(f"s_cmp_eq_u32 s{sT32}, 0"); a("s_cbranch_scc1 L_attA0")
    a("s_barrier")
    a.stamp("Y")
    a.all(qrd + kv_rd(0, 3*8192, "K") + kv_rd(0, 3*8192, "V")); a("s_waitcnt lgkmcnt(2)")
    woy = [x for st in WOY for x in wo_one(st)]
    local_steps(a, 2, 1, False, (1, woy))
    a.stamp("loc")
    a.all(before_Z()); a("s_barrier")
    a.stamp("Z")
    remote_steps(a, 2)
    a.label("L_attA0")
    if ZPRIO: a(f"s_setprio {ZPRIO}")
    kv_flag_addr(a, vKF, F)
    KP = "atomic" if APOLL else 0; ex4 = (lambda on: a(f"s_mov_b64 exec, {15 if on else -1}")) if APOLL else (lambda on: None)
    if PREP: ex4(1); a.flagload(F + 2, vKF, KP); ex4(0)
    a("s_barrier")
    a.stamp("Y")
    a.all(qrd + kv_rd(0, 3*8192, "K") + kv_rd(0, 3*8192, "V"))
    a("s_waitcnt lgkmcnt(2)")
    local_steps(a, 0, 1, False)
    a.stamp("loc")
    ex4(1); a.flagload(F, vKF, KP); ex4(0); a.all(woy)
    e = a.skip_unless("lg", sRB, 0)
    ex4(1); a(f"s_waitcnt vmcnt({len(WOY)})"); a.flagtest(F, e)
    a.poll(vKF, F, KP); a.label(e); ex4(0)
    a.stamp("epi")
    for x in fetch(F + 4, [0, 1, 2, 3]): a.all(x)
    a.all(before_Z()); a("s_waitcnt vmcnt(8)"); a("s_barrier")
    a.stamp("Z")
    remote_steps(a, 0)

def lane_mask(f): return sum(1 << l for l in range(64) if f(l & 15, l >> 4))
def tail_B(a):
    s = sT[1]; HK, HV, HA, MK, B0 = 244, 240, 253, 232, 236
    KK = lambda i: acc(2, i) if i >= 0 else HK
    a.label("L_tailB")
    a(f"s_lshl_b32 s{s}, s{sL}, 3"); a(f"s_andn2_b32 s{s}, s{s}, 15"); a(f"s_add_u32 s{s}, s{s}, s{sRB}"); a(f"s_lshl_b32 s{s}, s{s}, 4"); a(f"s_add_u32 s{s}, s{s}, s{sJ}"); a(f"s_lshl_b32 s{s}, s{s}, 1")
    a("s_waitcnt lgkmcnt(9)")
    a.all(epi_qk(1, 3, CK))
    a(f"s_and_b32 s{s+1}, s{sWID}, 1"); a(f"s_add_u32 s{s}, s{s}, s{s+1}"); a(f"s_lshl_b32 s{s}, s{s}, 11"); a(f"s_add_u32 s{s}, s{s}, {HB}")
    a.all(epi_v(3))
    HO = VT[3]; a(clean(KK(3))); a(clean(HO, vout(0, 3))); a(f"v_mov_b32 v{HO+1}, v{vout(0,3)+1}"); a(f"v_mov_b32 v{HO+2}, v{vout(1,3)}"); a(f"v_mov_b32 v{HO+3}, v{vout(1,3)+1}")
    a(f"s_lshl_b32 s{s+1}, s{s+1}, 11"); a(f"s_add_u32 s{s+1}, s{s+1}, {HX}"); a(f"v_add_u32 v{HA}, s{s+1}, v{vL16}")
    up, on = a.newlabel("Lup"), a.newlabel("Lon")
    a(f"s_cmp_ge_u32 s{sWID}, 2"); a(f"s_cbranch_scc1 {up}")
    a(f"ds_write_b128 v{HA}, {vr(KK(3),4)}"); a(f"ds_write_b128 v{HA}, {vr(HO,4)} offset:1024")
    a(f"s_sub_u32 s{s}, s{s}, 65536"); a(f"s_cmp_eq_u32 s{sRB}, 0"); a(f"s_cselect_b32 s{sCNT}, {OOB}, s{s}"); a(f"s_cselect_b32 s{s+2}, {BIG}, 0")
    a(f"s_branch {on}")
    a.label(up)
    a(f"buffer_store_dwordx4 {vr(KK(3),4)}, v{vL16}, {sr(sWS)}, s{s} offen sc1"); a(f"buffer_store_dwordx4 {vr(HO,4)}, v{vL16}, {sr(sWS)}, s{s} offen offset:1024 sc1")
    a(f"s_mov_b32 s{s+2}, 0")
    a.label(on)
    a.all(epi_v(2) + epi_qk(1, 2, CK)); a("s_waitcnt lgkmcnt(0)")
    for i in (1, 0): a.all(epi_qk(1, i, CK) + epi_v(i))
    a.stamp("epi")
    X = q_scale() + [f"v_mov_b32 v{B0+k}, s{s+2}" for k in range(4)]
    X += [f"v_mov_b32 v{MK+2}, 0xffff", f"v_mov_b32 v{MK+3}, 0xffff0000", f"v_cndmask_b32 v{MK+3}, v{MK+2}, v{MK+3}, {sr(mB0,2)}", f"v_cndmask_b32 v{MK}, 0, v{MK+3}, {sr(mP0,2)}", f"v_cndmask_b32 v{MK+1}, 0, v{MK+3}, {sr(mP1,2)}",
          f"v_xor_b32 v{MK+2}, v{MK}, v{MK+3}", f"v_xor_b32 v{MK+3}, v{MK+1}, v{MK+3}"]
    X += [f"s_sub_u32 s{s+1}, s{sOA}, 65536"]
    f = {}; spread(f, [X[k:k+2] for k in range(0, len(X), 2)], range(0, 15)); f.setdefault(14, []).append("s_barrier")
    weave(a, g1m(0, QORD) + g1m(1, QORD), f)
    a.stamp("qmm")
    hl = [f"buffer_load_dwordx4 {vr(HK,4)}, v{vL16}, {sr(sWS)}, s{sCNT} offen sc1", f"buffer_load_dwordx4 {vr(HV,4)}, v{vL16}, {sr(sWS)}, s{sCNT} offen offset:1024 sc1"]
    def halo():
        up, on = a.newlabel("Lup"), a.newlabel("Lon")
        a(f"s_cmp_ge_u32 s{sWID}, 2"); a(f"s_cbranch_scc1 {up}"); a.all(hl); a(f"s_branch {on}")
        a.label(up); a(f"ds_read_b128 {vr(HK,4)}, v{HA}"); a(f"ds_read_b128 {vr(HV,4)}, v{HA} offset:1024"); a.label(on)
    for k, i in enumerate((3, 2, 1, 0)):
        if k == HALOAT: halo()
        a.all(epi_qk(0, i, CQ))
    if HALOAT >= 4: halo()
    a.stamp("Y")
    R = lambda i: 120 + 16 * i
    def scores(i): return [M(R(i), KK(i), acc(0, i), "0"), M(R(i) + 4, KK(i - 1), acc(0, i), B0 if i == 0 else "0")]
    def soft(i):
        r = R(i); x, y, m, t = r + 8, r + 9, r + 10, r + 11
        L = [f"v_cndmask_b32 v{r+2*k}, v{r+2*k}, v{r+2*k+1}, {sr(mB0,2)}" for k in range(4)]
        L += [f"v_cndmask_b32 v{x}, v{r}, v{r+4}, {sr(mP0,2)}", f"v_cndmask_b32 v{y}, v{r+2}, v{r+6}, {sr(mP1,2)}", f"v_max_f32 v{m}, v{x}, v{y}"]
        for w in (32, 16): L += [f"v_mov_b32 v{t}, v{m}", f"v_permlane{w}_swap_b32 v{m}, v{t}", f"v_max_f32 v{m}, v{m}, v{t}"]
        L += [f"v_sub_f32 v{x}, v{x}, v{m}", f"v_sub_f32 v{y}, v{y}, v{m}", f"v_exp_f32 v{x}, v{x}", f"v_exp_f32 v{y}, v{y}", f"v_cvt_pk_bf16_f32 v{x}, v{x}, v{x}", f"v_cvt_pk_bf16_f32 v{y}, v{y}, v{y}"]
        L += [f"v_and_b32 v{r+k}, v{MK+k}, v{(x, y)[k & 1]}" for k in range(4)]
        return L
    def prods(i): r = R(i); return [M(r + 4, ONE, r, "0")] + [M(r + 8 + 4 * b, vout(b, i - 1), r, "0") for b in range(2)]
    def fin(i):
        r = R(i)
        return [f"v_rcp_f32 v{r+4}, v{r+4}"] + [f"v_mul_f32 v{r+8+k}, v{r+8+k}, v{r+4}" for k in range(8)] + pack(r, r + 8, 1)
    ost = lambda i: f"buffer_store_dwordx4 {vr(R(i),4)}, v{vL16}, {sr(sWS)}, s{sOA if i >> 1 else s+1} offen offset:{(i & 1)*1024}"
    a.all(scores(3) + scores(2) + scores(1))
    a.all(rr(soft(3), soft(2), soft(1)))
    a.all(prods(3) + prods(2) + prods(1))
    a.all(rr(fin(3), fin(2), fin(1)))
    a.bymode([ost(3), ost(2), ost(1)])
    a.stamp("loc")
    ck, ok, rt = a.newlabel("Lhck"), a.newlabel("Lhok"), a.newlabel("Lhrt")
    a(f"s_mov_b32 s{sT[0]}, 0"); a("s_waitcnt vmcnt(3) lgkmcnt(0)")
    a.label(ck); a.all(poison_test(R(0), [HK, HV])); a(f"s_cbranch_vccnz {rt}"); a.label(ok)
    a.tail += [rt + ":", f"s_add_u32 s{sT[0]}, s{sT[0]}, 1", f"s_cmp_ge_u32 s{sT[0]}, {SPIN}", f"s_cbranch_scc1 {ok}"] + hl + ["s_waitcnt vmcnt(0)", f"s_branch {ck}"]
    a.stamp("Z")
    a.all(scores(0))
    for k in range(4): a(f"v_mov_b32 v{vout(k >> 1, -1) + (k & 1)}, v{HV+k}")
    a.all(soft(0) + prods(0) + fin(0))
    a.bymode([ost(0)])

A0, WF2, OFR, GA, vOB, vCK, vXW, vTG = 24, 56, 104, 206, 214, 216, 240, 241
def gemm2(a):
    s = sT[1]; assert OFR + 16 * NG <= 200
    ofr = lambda g, k: OFR + 16 * (g % NG) + 4 * k
    ld = lambda g, k, so=sGO: f"buffer_load_dwordx4 {vr(ofr(g,k),4)}, v{vOB}, {sr(sWS)}, s{so} offen offset:{k*1024} sc1"
    adv = [f"s_add_u32 s{sGO}, s{sGO}, 4096", f"s_and_b32 s{sGO}, s{sGO}, 0xffff"]
    rd = lambda i: [f"ds_read_b64_tr_b16 {vr(WF2+16*(i%3)+4*cb+2*e,2)}, v{GA + 4*(i >> 4) + cb} offset:{(i & 15)*4096 + e*2048}" for cb in range(4) for e in range(2)]
    def check(g):
        ck, ok = a.newlabel("Lock"), a.newlabel("Look")
        T = tag_test(vCK, [ofr(g, k) for k in range(4)], f"s{sL}")
        a.tail += [ck + ":", f"s_mov_b32 s{sT[0]}, 0", f"s_add_u32 s{s}, s{sJ}, {g}", f"s_and_b32 s{s}, s{s}, 15", f"s_lshl_b32 s{s}, s{s}, 12", ck + "a:"] + [ld(g, k, s) for k in range(4)]
        a.tail += ["s_waitcnt vmcnt(0)"] + T + [f"s_cbranch_vccz {ok}", f"s_add_u32 s{sT[0]}, s{sT[0]}, 1", f"s_cmp_lt_u32 s{sT[0]}, {SPIN}", f"s_cbranch_scc1 {ck}a", f"s_branch {ok}"]
        return T, [f"s_cbranch_vccnz {ck}", ok + ":"]
    a(f"s_and_b32 s{s}, s{sTILE}, 0xffff0000"); a(f"s_add_u32 s{s}, s{s}, {OB}")
    a(f"v_add_u32 v{vOB}, s{s}, v{vL16}"); a(f"s_and_b32 s{sGO}, s{sTILE}, 0xffff")
    for g in range(G2PRE):
        if g: a.all(adv)
        for k in range(4): a(ld(g, k))
        if g == 0:
            a(f"v_lshrrev_b32 v{GA+1}, 5, v{vLANE}"); a(f"v_lshl_add_u32 v{GA}, v{GA+1}, 10, v{vTR}")
            for cb in range(1, 4): a(f"v_xor_b32 v{GA+cb}, {32*cb}, v{GA}")
            a.all(rd(0))
        if g == 1: a.all(rd(1))
    for p in range(16): a(f"v_lshlrev_b32 v{A0+2*p}, 16, v{XRES+p}"); a(f"v_and_b32 v{A0+2*p+1}, 0xffff0000, v{XRES+p}")
    for cb in range(4): a(f"v_add_u32 v{GA+4+cb}, 65536, v{GA+cb}")
    a.all(ones()); c_setup(a, False)
    a(f"s_lshl_b32 s{s}, s{sWID}, 12"); a(f"s_add_u32 s{s}, s{s}, {XB[0]}"); a(f"v_add_u32 v{vXW}, s{s}, v{vL16}")
    a(f"s_waitcnt vmcnt({4*(G2PRE-1)})"); T, B = check(0); a.all(T + ["s_waitcnt lgkmcnt(8)"] + B)
    a.stamp("R")
    nxt = G2PRE; assert 2 <= G2PRE < NG
    for g in range(16):
        mf = []; f = {}
        for h in range(2):
            i = 2 * g + h
            mf += [M(A0 + 16 * t + 4 * cb, WF2 + 16 * (i % 3) + 4 * cb, ofr(g, 2 * h + t), A0 + 16 * t + 4 * cb) for cb in range(4) for t in ((0, 1) if cb % 2 == 0 else (1, 0))]
            if i + 2 < 32: spread(f, rd(i + 2), range(8 * h, 8 * h + 8))
            if i + 1 < 32: f.setdefault(8 * h + 7, []).append(f"s_waitcnt lgkmcnt({8 if i + 2 < 32 else 0})")
            if i in (S0AT, S2AT): f.setdefault(14 if h else 5, []).append("s_barrier")
        if nxt < 16 and nxt + 1 < min(16, g + NG) and g % G2RAMP == 0:
            spread(f, [adv + [ld(nxt, 0)], ld(nxt, 1), ld(nxt, 2), ld(nxt, 3), adv, ld(nxt + 1, 0), ld(nxt + 1, 1), ld(nxt + 1, 2), ld(nxt + 1, 3)], range(9)); nxt += 2
        elif nxt < 16: spread(f, adv + [ld(nxt, k) for k in range(4)], (0, 1, 2, 4, 6, 8)); nxt += 1
        if g < 15:
            T, B = check(g + 1)
            spread(f, [f"s_waitcnt vmcnt({4 * (nxt - g - 2)})"] + T + [B], (9, 10, 11, 12, 13, 15))
        weave(a, mf, f)
    assert 6 <= S0AT <= 9 and 20 <= S2AT <= 25
    a.stamp("g2end")
    if LAST % 2 == 0: a(f"s_cmp_eq_u32 s{sL}, {LAST}"); a("s_cbranch_scc1 L_final")
    a(f"s_bitcmp1_b32 s{sL}, 0"); a("s_cbranch_scc1 L_xodd")
    for ph in range(2):
        if ph: a.label("L_xodd"); a(f"s_cmp_eq_u32 s{sL}, {LAST}"); a("s_cbranch_scc1 L_final")
        L = []
        for fr in (0, 2, 1, 3):
            L += pack(XRES + 4 * fr, A0 + 8 * fr, ph, None if ph else vTG)
            L += [f"buffer_store_dwordx4 {vr(XRES+4*fr,4)}, v{vL16}, {sr(sIO)}, s{sTILE} offen offset:{fr*1024}", f"ds_write_b128 v{vXW}, {vr(XRES+4*fr,4)} offset:{fr*1024}"]
        a.bymode(L)
        for fr in (0, 2, 1, 3): a(f"v_cvt_pk_bf16_f32 v{XRES+4*fr}, v{A0+8*fr}, v{A0+8*fr+1}")
        a.all(stat_mfma()); a(f"s_add_u32 s{sL}, s{sL}, 1"); a("s_waitcnt lgkmcnt(0)"); a("s_branch L_cgo")

def gen(stamps=False):
    a = G(stamps)
    s = sT[1]
    a("s_cmp_ge_u32 s2, 256"); a("s_cbranch_scc1 L_end")
    if stamps: a(f"s_memtime s[{sT0}:{sT0+1}]"); a("s_memrealtime s[80:81]"); a("s_mov_b32 s70, 63"); a("s_mov_b32 s82, 0")
    a("s_load_dwordx16 s[48:63], s[0:1], 0"); a("s_load_dwordx2 s[64:65], s[0:1], 64")
    a("v_lshrrev_b32 v1, 6, v0"); a(f"v_readfirstlane_b32 s{sWID}, v1")
    a(f"v_and_b32 v{vLANE}, 63, v0"); a(f"v_lshlrev_b32 v{vL16}, 4, v{vLANE}")
    if CODEPF:
        l1 = a.skip_unless("eq", sWID, 3)
        a("s_getpc_b64 s[40:41]")
        a.label("L_pc")
        a(f"s_lshr_b32 s{s}, s2, 3"); a(f"s_mul_i32 s{s}, s{s}, {CODEPF * 128}"); a(f"v_lshlrev_b32 v28, 7, v{vLANE}"); a(f"v_add_u32 v28, s{s}, v28")
        a(f"s_mov_b32 s{s}, L_end - L_pc"); a(f"v_min_u32 v28, s{s}, v28")
        a("v_mov_b32 v29, s41"); a("v_add_co_u32 v28, vcc, s40, v28"); a("v_addc_co_u32 v29, vcc, 0, v29, vcc")
        a(f"s_mov_b64 exec, {(1 << CODEPF) - 1}"); a(f"global_load_dword v{vDUM}, v[28:29], off"); a("s_mov_b64 exec, -1")
        a.label(l1)
    a(f"s_and_b32 s{s}, s2, 7"); a(f"s_lshr_b32 s{s+1}, s2, 3"); a(f"s_lshl_b32 s{sRB}, s{s}, 1"); a(f"s_and_b32 s{s}, s{s+1}, 1"); a(f"s_add_u32 s{sRB}, s{sRB}, s{s}")
    a(f"s_lshr_b32 s{sJ}, s{s+1}, 1"); a(f"s_and_b32 s{sU}, s{sWID}, 3")
    a(f"v_lshrrev_b32 v16, 4, v{vLANE}"); a("v_lshlrev_b32 v16, 1, v16"); a(f"v_and_b32 v17, 7, v{vLANE}"); a("v_xor_b32 v16, v16, v17"); a(f"v_lshlrev_b32 v{vCH}, 4, v16")
    def common():
        srd(a, sWS, pWS, WS_SIZE); a(f"v_mov_b32 v28, {NONCE}")
        a(f"buffer_load_dwordx2 v[26:27], v28, {sr(sWS)}, 0 offen sc1")
        srd(a, sWO, pWOA, 2097152)
        a(f"s_mov_b32 s{sL}, 0"); a(f"s_mov_b32 s{sFAST}, 0"); a(f"v_mov_b32 v{vSTAMP}, 0")
        a(f"v_bfe_u32 v28, v{vLANE}, 2, 3"); a(f"v_bfe_u32 v29, v{vLANE}, 3, 2"); a(f"v_and_b32 v30, 3, v{vLANE}")
        a("v_lshlrev_b32 v28, 7, v28"); a("v_lshlrev_b32 v29, 5, v29"); a("v_lshlrev_b32 v30, 3, v30"); a(f"v_add3_u32 v{vTR}, v28, v29, v30")
        a(f"v_and_b32 v28, 15, v{vLANE}"); a(f"v_lshrrev_b32 v29, 4, v{vLANE}"); a("v_lshlrev_b32 v29, 2, v29"); a(f"v_sub_u32 v{vD0}, v28, v29")
        a(f"s_lshl_b32 s{sWP}, s{sU}, 10"); a(f"s_lshl_b32 s{sWR}, s{sJ}, 17"); a(f"s_lshl_b32 s{s}, s{sU}, 14"); a(f"s_lshl_b32 s{s+1}, s{sJ}, 7"); (FJ == 15 or a(f"s_and_b32 s{s+1}, s{s+1}, {FJ << 7}")); a(f"s_add_u32 s{s}, s{s}, s{s+1}")
        a(f"v_lshrrev_b32 v{vWO}, 3, v{vLANE}"); a(f"v_lshlrev_b32 v{vWO}, 11, v{vWO}"); a(f"v_add3_u32 v{vWO}, v{vWO}, v{vCH}, s{s}")
        a(f"s_lshl_b32 s{s}, s{sRB}, 18"); a(f"s_lshl_b32 s{s+1}, s{sJ}, 12"); a(f"s_add_u32 s{s}, s{s}, s{s+1}"); a(f"s_lshl_b32 s{s+1}, s{sU}, 16"); a(f"s_add_u32 s{sTILE}, s{s}, s{s+1}")
        a(f"s_lshl_b32 s{s+1}, s{sT32}, 16"); a(f"s_add_u32 s{s}, s{s}, s{s+1}"); a(f"s_and_b32 s{s+1}, s{sU}, 1"); a(f"s_lshl_b32 s{s+2}, s{s+1}, 11"); a(f"s_add_u32 s{s}, s{s}, s{s+2}"); a(f"s_add_u32 s{sOA}, s{s}, {OB}")
        a(f"s_lshl_b32 s{s}, s{sRB}, 4"); a(f"s_add_u32 s{s}, s{s}, s{sJ}"); a(f"s_lshl_b32 s{s}, s{s}, 2"); a(f"s_and_b32 s{s+2}, s{sU}, 2"); a(f"s_add_u32 s{s}, s{s}, s{s+2}"); a(f"s_lshl_b32 s{s}, s{s}, 1")
        a(f"s_add_u32 s{s}, s{s}, s{s+1}"); a(f"s_lshl_b32 s{s}, s{s}, 12"); a(f"s_add_u32 s{sKVS}, s{s}, {KV}")
        for r in range(4): a(f"v_mov_b32 v{vPO+r}, -1")
        a.all(masks_A())
        a(f"s_lshl_b32 s{s}, s{sJ}, 4"); a(f"s_add_u32 s{s}, s{s}, s{sRB}"); a(f"s_lshl_b32 s{s}, s{s}, 5"); a(f"s_add_u32 s{s}, s{s}, s{sU}"); a(f"s_lshl_b32 s{s}, s{s}, 3"); a(f"s_add_u32 s{sKF}, s{s}, {KVFL}")
    def nonce():
        a(f"v_readfirstlane_b32 s{sN0}, v26"); a(f"v_readfirstlane_b32 s{sN1}, v27")
        a(f"s_add_u32 s{sN0}, s{sN0}, 1"); a(f"s_add_u32 s{sN1}, s{sN1}, 16"); a(f"s_and_b32 s{sN1}, s{sN1}, 0xfffffff0")
        a(f"s_getreg_b32 s{s}, hwreg(HW_REG_XCC_ID, 0, 4)"); a(f"s_or_b32 s{sN1}, s{sN1}, s{s}")
    a(f"s_cmp_lt_u32 s{sWID}, 4"); a("s_cbranch_scc1 L_cstart")
    a(f"s_lshl_b32 s{sMX}, s{sU}, 12"); a(f"s_mul_i32 s{sMW}, s{sU}, 6144")
    setup_w(a, True); setup_x(a, 0)
    a("s_waitcnt lgkmcnt(0)"); xsrd(a, sXS, 0); srd(a, sW, pWA, 6291456); a(f"s_andn2_b32 s{sGO}, s{sRB}, {RG}"); a(f"s_and_b32 s{sH}, s{sRB}, {RG}")
    vm = VM(a)
    if HOT: hot_setup(a, 0, 28); hot_issue(a, 0, HOT0[0], HOT0[1], 28)
    kstage(a, 0, 0); dma_w(a, WB[0]); dma_x(a, 0, 0)
    a(f"s_andn2_b32 s{sT32}, 2, s{sU}")
    common(); vm.add(("n",)); xsrd(a, sIO, 1)
    a(f"s_lshr_b32 s{s}, s{sTILE}, 16"); a(f"s_lshl_b32 s{s}, s{s}, 7"); a(f"s_add_u32 s{s}, s{s}, {SFL}"); a(f"v_and_b32 v28, 15, v{vLANE}"); a(f"v_lshl_add_u32 v{vSF}, v28, 3, s{s}")
    a(f"s_add_u32 s{s}, s{sMX}, {XB[0]}"); a(f"v_add_u32 v{vXV}, s{s}, v{vL16}")
    a(f"s_lshl_b32 s{s}, s{sU}, 7"); a(f"s_add_u32 s{s}, s{s}, {TAB}"); a(f"v_lshrrev_b32 v29, 5, v{vLANE}"); a("v_lshl_add_u32 v29, v29, 4, v28"); a(f"v_lshl_add_u32 v{vTW}, v29, 2, s{s}")
    a(f"s_min_u32 s{s}, s{sU}, 2"); a(f"s_lshl_b32 s{s}, s{s}, 8"); a(f"s_add_u32 s{s}, s{s}, {TAB+1024}"); a(f"v_lshrrev_b32 v29, 4, v{vLANE}"); a("v_lshl_add_u32 v29, v28, 2, v29"); a(f"v_lshl_add_u32 v{vCW}, v29, 2, s{s}")
    first = [lambda: (kstage(a, 0, 1), dma_x(a, 0, 1), vm.add(("x", 1), 4)), lambda: (dma_w(a, WB[1]), vm.add(("w", 1), 6)), lambda: (kstage(a, 0, 2), dma_w(a, WB[2]), vm.add(("w", 2), 6))]
    if ST0 & 4: first[0], first[1] = lambda: (kstage(a, 0, 1), dma_w(a, WB[1]), vm.add(("w", 1), 6)), lambda: (dma_x(a, 0, 1), vm.add(("x", 1), 4))
    for f in first[:ST0 & 3]: f()
    a.stamp("l_a"); vm.wait(("n",)); nonce(); a.stamp("l_b")
    a("s_barrier")
    for f in first[ST0 & 3:]: f()
    for l in range(LAST + 1):
        loader(a, l, vm)
        if l % 2 == 0:
            a("s_branch L_attL"); a.label(f"L_between{l}"); vm.q = []
        else:
            vm.wait(("wo", 11)); vm.wait(("p",)); a("s_barrier")
        between(a, l, vm)
    assert LAST >= 1; a(f"s_or_b32 s{s}, s2, s{sU}"); a(f"s_cmp_lg_u32 s{s}, 0"); a("s_cbranch_scc1 L_out")
    a(f"v_mov_b32 v22, {NONCE}"); p0, p1 = post_l(22, 24); a.all(p0 + p1)
    a("s_branch L_out")
    a.label("L_attL")
    att_A_loader(a)
    a.label("L_cstart")
    io_addr(a, 24)
    a("s_waitcnt lgkmcnt(0)")
    srd(a, sIO, pX, 4194304)
    for f in range(4): a(f"buffer_load_dwordx4 {vr(XRES+4*f,4)}, v{24 + (f >> 1)}, {sr(sIO)}, 0 offen offset:{(f & 1)*64}")
    a(f"s_or_b32 s{sT32}, s{sU}, 1")
    common(); srd(a, sW, pWA, 6291456)
    for d, val in ((mB0, lane_mask(lambda i, g: i & 1)), (mB1, lane_mask(lambda i, g: i & 2)), (mP0, lane_mask(lambda i, g: 4*g + (i & 1) > i)), (mP1, lane_mask(lambda i, g: 4*g + 2 + (i & 1) > i))):
        a(f"s_mov_b32 s{d}, {val & 0xffffffff}"); a(f"s_mov_b32 s{d+1}, {val >> 32}")
    c_setup(a, True); a.all(ones())
    a.stamp("l_c"); a("s_waitcnt vmcnt(0)"); a.stamp("l_b")
    nonce(); a.all(stat_mfma()); xsrd(a, sIO, 1)
    for f in range(4): a.all(col_swaps(f, (16, 32)))
    a.label("L_cgo")
    consumer(a)
    tail_A(a)
    a.label("L_afin")
    a.all(pv_mf(0, 1))
    a.stamp("fin")
    finish_A(a)
    if ZPRIO: a("s_setprio 0")
    a(f"s_add_u32 s{sKVS}, s{sKVS}, {8*MB}"); a(f"s_add_u32 s{sKF}, s{sKF}, 65536")
    if not PZ: a("s_waitcnt vmcnt(2)")
    a("s_barrier")
    a.stamp("P")
    a(f"s_cmp_lt_u32 s{sWID}, 4"); a("s_cbranch_scc1 L_g2")
    a(f"s_cmp_eq_u32 s{sL}, 0"); a("s_cbranch_scc1 L_between0"); a(f"s_branch L_between{2 if LAST >= 2 else 0}")
    tail_B(a)
    a.stamp("P")
    a.label("L_g2")
    gemm2(a)
    a.label("L_final")
    io_addr(a, 160)
    for f in (0, 2, 1, 3):
        for p in range(4 * f, 4 * f + 4): a(f"v_cvt_pk_bf16_f32 v{XRES+p}, v{A0+2*p}, v{A0+2*p+1}")
    for f in (0, 2, 1, 3): a.all(col_swaps(f, (32,)))
    for f in (0, 1, 2, 3):
        a.all(col_swaps(f, (16,))); a(f"buffer_store_dwordx4 {vr(XRES+4*f,4)}, v{160 + (f >> 1)}, {sr(sIO)}, 0 offen offset:{(f & 1)*64}")
    a.label("L_out")
    a.stamp("end")
    if stamps:
        a("s_waitcnt lgkmcnt(0)"); a("s_mov_b32 m0, s70"); a(f"v_writelane_b32 v{vSTAMP}, s82, m0")
        a("s_memrealtime s[82:83]"); a("s_waitcnt lgkmcnt(0)"); a("v_mov_b32 v7, 0"); a("v_writelane_b32 v7, s80, 0"); a("v_writelane_b32 v7, s82, 1"); a(f"v_writelane_b32 v7, s{80 if RT else sT0}, 2")
        a(f"s_lshl_b32 s{s}, s2, 11"); a(f"s_lshl_b32 s{s+1}, s{sWID}, 8"); a(f"s_add_u32 s{s}, s{s}, s{s+1}"); a(f"s_add_u32 s{s}, s{s}, {STAMP}")
        a(f"v_lshlrev_b32 v16, 2, v{vLANE}"); a(f"buffer_store_dword v{vSTAMP}, v16, {sr(sWS)}, s{s} offen")
        a(f"s_add_u32 s{s}, s{s}, {1 << 20}"); a(f"buffer_store_dword v7, v16, {sr(sWS)}, s{s} offen")
        if TRACE: a(f"s_add_u32 s{s}, s{s}, {1 << 19}"); a(f"buffer_store_dword v5, v16, {sr(sWS)}, s{s} offen")
    a("s_endpgm")
    a.all(x.strip() for x in a.tail)
    a.label("L_end")
    a("s_endpgm")
    body, n = hazard.fix(a.text())
    hdr = open(HERE + "/header3.txt").read().rstrip("\n").split("\n")
    hdr.append("; @launch grid=(256,1,1) block=(512,1,1) lds=163840")
    return kernel_file(hdr, [(KNAME, body, 256, 102 if stamps else 100, 256)]), n

if __name__ == "__main__":
    for x in sys.argv[2:]:
        if "=" in x: k, v = x.split("=", 1); assert k in globals(), k; globals()[k] = eval(v)
    txt, n = gen("stamps" in sys.argv)
    open(sys.argv[1], "w").write(txt)
    print("lines", txt.count("\n"), "nops inserted", n)
```

```python
import sys, os, struct, math
HERE = os.path.dirname(os.path.abspath(__file__)); sys.path.insert(0, HERE + "/../tools")
from asmlib import *
import hazard

KB, MB = 1 << 10, 1 << 20
ST, CSP, SFL, CSFL, NONCE = 0, 256 * KB, 768 * KB, 800 * KB, 824 * KB
OB, KV, STAMP, WS_SIZE = 2 * MB, 80 * MB, 70 * MB, 160 * MB
HB, KF = 128 * KB, 144 * KB
XB = [48 * KB, 64 * KB, 80 * KB]; WB = [136 * KB, 0, 24 * KB]
TAB, HX, SX = 128 * KB, 130 * KB, 134 * KB
QX, OWN, REM = 48 * KB, 64 * KB, 96 * KB
BIG = 0xF149F2CA
QSCALE = struct.unpack("<I", struct.pack("<f", 32 ** -0.5 * math.log2(math.e)))[0]
WSTEP = 64 * 6144
SPIN = 1 << 18
OOB = 0x40000000
RT = 0; SKIP = []; FORCE_EXACT = 0; FORCE_SLOW = 0; DIAG = 0; POL = 3; PN = 2; PORD = 1; PVM = 5; DZ = {}; NOI = 0; FJ = 15; TRACE = 0
NG = 5; S0AT = 9; S2AT = 20; HOT = 1; HOTD = 4; HOT0 = (0, 5); WOHOT = 14; CODEPF = 15; NF0 = 10; NF1 = 5; NP1 = 2; OI = [3, 4, 5, 6]; OID = 2; NL0 = [11, 11, 12, 12, 14, 14]; NL1 = [8, 9, 10, 11, 13, 14]; NCF0 = 9; NCF1 = 10; APOLL = 1; PZ = 6; ST0 = 5; BAR0 = 6; PREP = 1; HALOAT = 0
WARM = []; SWARM = [(0, 6, 'woa', 0, 8), (0, 7, 'woa', 8, 8), (0, 8, 'woa', 16, 8), (0, 9, 'woa', 24, 8), (1, 8, 'wob', 0, 8), (1, 9, 'wob', 8, 8), (1, 10, 'wob', 16, 8), (1, 11, 'wob', 24, 8)]; TRICKLE = 0; HPAT = 99
WOA = [range(0, 6), range(6, 12), []]; WOB = [[*range(0, 6), *range(16, 20)], [*range(6, 12), *range(20, 24)], range(12, 16)]
HANDA = []; HANDB = []; PXF = ' sc1'
G2PRE = 2; G2RAMP = 2; TO3 = 0; TOA = 0; LPRIO = 0; SUM0 = 0; RD2 = 1; VG = [1, 5, 6]; LATE = 30; F1AT = 1; ZPRIO = 1; RG = 1; RG1 = 1; ROTL = [1]; F2A = 4; WT = 0; WOT = 99; OP0 = 1; WOY = [22, 23, 14, 15]
WSCH = [[['h', 0], [], [1, 2]], [[], ['h', 0], [1, 2]], [['h', 0], [], [1, 2]]]; WP = [None, None, None]; ATAT = [0, 2, 4, 7, 11]; LAST = 3

sW, sWO, sWS, sIO, sXS = 4, 8, 12, 16, 88
sWID, sRB, sJ, sL, sFAST, sN0, sN1 = 3, 20, 21, 22, 23, 24, 25
sT = list(range(26, 48))
pX, pWA, pWOA, pWB, pWOB, pOUT, pDBG, pWS = 48, 50, 52, 56, 58, 60, 62, 64
sT0 = 66
sTILE, sOA, sKVS, sCNT, sU, sXO, sWOF, sMX, sMW = 71, 72, 73, 74, 75, 76, 77, 78, 79
sT32, sWP, sWR = 84, 85, 86
sNB, sLO = [sKVS, 87, 34], 33
sH, sGO = 54, 55
mB0, mB1, mP0, mP1 = 92, 94, 96, 98
vL16, vLANE, vTR, vWO, vD0, vSTAMP = 0, 1, 2, 3, 4, 6
XRES = 8
vDUM = 255

def vr(r, n): return f"v[{r}:{r+n-1}]"
def sr(r, n=4): return f"s[{r}:{r+n-1}]"
def M(d, A, B, C): return f"v_mfma_f32_16x16x32_bf16 {vr(d,4)}, {vr(A,4)}, {vr(B,4)}, {C if isinstance(C,str) else vr(C,4)}"
STAMPS = ["g1start", "g1kv", "epi", "qmm", "Y", "loc", "Z", "Z2", "fin", "P", "R", "g2end", "l_a", "l_b", "l_c", "end"]

class G(Asm):
    def __init__(self, stamps):
        super().__init__(); self.stamps = stamps; self.tail = []
    def all(self, L):
        for x in L: self(x)
    def stamp_l(self, name):
        if not self.stamps or SKIP == 'all' or name in SKIP: return []
        return ["s_mov_b32 s69, m0", "s_mov_b32 m0, s70", f"v_writelane_b32 v{vSTAMP}, s82, m0", "s_memrealtime s[82:83]" if RT else "s_memtime s[82:83]",
                f"s_mul_i32 s70, s{sL}, 16", "s_mov_b32 m0, s69"] + [f"s_bitset1_b32 s70, {b}" for b in range(4) if STAMPS.index(name) >> b & 1]
    def stamp(self, name): self.all(self.stamp_l(name))
    def skip_unless(self, cond, sreg, imm):
        l = self.newlabel("Lw")
        self(f"s_cmp_{cond}_u32 s{sreg}, {imm}"); self(f"s_cbranch_scc0 {l}")
        return l
    def bymode(self, L):
        sl, dn = self.newlabel("Lslow"), self.newlabel("Lback")
        self(f"s_cmp_eq_u32 s{sFAST}, 0"); self(f"s_cbranch_scc1 {sl}")
        self.all(L); self.label(dn)
        self.tail += [sl + ":"] + [x + " sc1" if x.startswith("buffer_store") else x for x in L] + [f"s_branch {dn}"]
    def flagtest(self, vt, ok, fail=None):
        self(f"v_xor_b32 v{vt+2}, s{sN0}, v{vt}"); self(f"v_xor_b32 v{vt+3}, s{sN1}, v{vt+1}")
        self(f"v_lshrrev_b32 v{vt+3}, 5, v{vt+3}"); self(f"v_or_b32 v{vt+2}, v{vt+2}, v{vt+3}")
        self(f"v_cmp_ne_u32 vcc, 0, v{vt+2}"); self(f"s_cbranch_vccz {ok}" if ok else f"s_cbranch_vccnz {fail}")
    def flagload(self, vt, vaddr, off=0):
        if off == "atomic":
            self(f"v_mov_b32 v{vt}, 0"); self(f"v_mov_b32 v{vt+1}, 0"); self(f"buffer_atomic_or_x2 {vr(vt,2)}, v{vaddr}, {sr(sWS)}, 0 offen sc0")
        else: self(f"buffer_load_dwordx2 {vr(vt,2)}, v{vaddr}, {sr(sWS)}, 0 offen offset:{off} sc1")
    def poll(self, vaddr, vt, off=0):
        lp, ok = self.newlabel("Lpoll"), self.newlabel("Lok")
        self(f"s_mov_b32 s{sT[0]}, 0")
        self.label(lp)
        self.flagload(vt, vaddr, off); self("s_waitcnt vmcnt(0)")
        self.flagtest(vt, ok)
        self(f"s_add_u32 s{sT[0]}, s{sT[0]}, 1"); self(f"s_cmp_lt_u32 s{sT[0]}, {SPIN}"); self(f"s_cbranch_scc1 {lp}")
        self.label(ok)
def post_l(vaddr, vt, off=0, fl=" sc1"):
    return [f"v_mov_b32 v{vt}, s{sN0}", f"v_mov_b32 v{vt+1}, s{sN1}"], ["s_mov_b64 exec, 1", f"buffer_store_dwordx2 {vr(vt,2)}, v{vaddr}, {sr(sWS)}, 0 offen offset:{off}{fl}", "s_mov_b64 exec, -1"]
def weave(a, mf, fill):
    for m, x in enumerate(mf):
        a(x)
        for y in fill.get(m, ()): a(y)
def spread(fill, L, gaps):
    gaps = list(gaps); assert len(L) <= len(gaps), (len(L), len(gaps))
    for g, x in zip(gaps, L): fill.setdefault(g, []).extend(x if isinstance(x, list) else [x])
def rr(*streams):
    out = []; n = max(map(len, streams))
    for k in range(n): out += [s[k] for s in streams if k < len(s)]
    return out
def poison_test(t, regs):
    L = []; regs = list(regs); cur = regs.pop(0)
    while regs:
        if len(regs) >= 2: L.append(f"v_max3_u32 v{t}, v{cur}, v{regs[0]}, v{regs[1]}"); regs = regs[2:]
        else: L.append(f"v_max_u32 v{t}, v{cur}, v{regs[0]}"); regs = []
        cur = t
    return L + [f"v_cmp_eq_u32 vcc, -1, v{cur}"]
def pack(d, r, t, tmp=None):
    C = [f"v_cvt_pk_bf16_f32 v{d+k}, v{r+2*k}, v{r+2*k+1}" for k in range(4)]; S = "dst_sel:WORD_0 dst_unused:UNUSED_PRESERVE src0_sel:WORD_1 src1_sel:DWORD"
    u = r if tmp is None else tmp
    if t: return ([] if tmp is None else [f"v_mov_b32 v{u}, v{r}"]) + C[:2] + [f"v_or_b32_sdwa v{d}, v{u}, 1 {S}"] + C[2:]
    return [f"v_add_u32 v{u}, 0x10000, v{r}"] + C[:2] + [f"v_and_b32_sdwa v{d}, v{u}, -2 {S}"] + C[2:]
def tag_test(t, d, ph):
    if ph == 0: return [f"v_or3_b32 v{t}, v{d[0]}, v{d[1]}, v{d[2]}", f"v_bitop3_b32 v{t}, v{t}, v{d[3]}, 1 bitop3:0xa8", f"v_cmp_ne_u32 vcc, 0, v{t}"]
    if ph == 1: return [f"v_bitop3_b32 v{t}, v{d[0]}, v{d[1]}, v{d[2]} bitop3:0x80", f"v_bitop3_b32 v{t}, v{t}, v{d[3]}, 1 bitop3:0x80", f"v_cmp_eq_u32 vcc, 0, v{t}"]
    return [f"v_bitop3_b32 v{t}, v{d[0]}, v{d[1]}, {ph} bitop3:0x7e", f"v_bitop3_b32 v{t+1}, v{d[2]}, v{d[3]}, {ph} bitop3:0x7e", f"v_bitop3_b32 v{t}, v{t}, v{t+1}, 1 bitop3:0xa8", f"v_cmp_ne_u32 vcc, 0, v{t}"]
clean = lambda d, s=None: f"v_min_u32 v{d}, -2, v{d if s is None else s}"

def io_addr(a, v):
    s = sT[1]
    a(f"s_lshl_b32 s{s}, s{sRB}, 2"); a(f"s_add_u32 s{s}, s{s}, s{sWID}"); a(f"s_lshl_b32 s{s}, s{s}, 16"); a(f"s_lshl_b32 s{s+1}, s{sJ}, 7"); a(f"s_add_u32 s{s}, s{s}, s{s+1}")
    a(f"v_and_b32 v{v}, 15, v{vLANE}"); a(f"v_lshlrev_b32 v{v}, 11, v{v}"); a(f"v_and_b32 v{v+1}, 48, v{vLANE}")
    a(f"v_add3_u32 v{v}, v{v}, v{v+1}, s{s}"); a(f"v_add_u32 v{v+1}, 32768, v{v}")
def col_swaps(f, order): return [f"v_permlane{w}_swap_b32 v{XRES+4*f+k}, v{XRES+4*f+k+2}" for w in order for k in range(2)]

LX, LW, vHOT, vCS = 8, 12, 18, 20
vSF, vXV, vTW, vCW, vCF, vKF, vPO, vCH = 168, 169, 170, 171, 172, 174, 176, 173
S_, SELA = 24, 64
def setup_w(a, first):
    s = sT[1]
    a(f"v_lshrrev_b32 v{LW}, 3, v{vLANE}")
    if first:
        a(f"v_lshrrev_b32 v{LW+1}, 5, v{vLANE}"); a(f"v_lshl_add_u32 v{LW}, v{LW+1}, 2, v{LW}")
        a(f"s_lshr_b32 s{s}, s{sU}, 1"); a(f"s_lshl_b32 s{s}, s{s}, 3"); a(f"s_and_b32 s{s+1}, s{sU}, 1"); a(f"s_add_u32 s{s}, s{s}, s{s+1}"); a(f"s_mul_i32 s{s}, s{s}, {4*6144}")
    else: a(f"s_mul_i32 s{s}, s{sU}, {16*6144}")
    a(f"v_mul_u32_u24 v{LW}, 6144, v{LW}"); a(f"s_lshl_b32 s{s+1}, s{sJ}, 7"); (FJ == 15 or a(f"s_and_b32 s{s+1}, s{s+1}, {FJ << 7}")); a(f"s_add_u32 s{s}, s{s}, s{s+1}"); a(f"v_add3_u32 v{LW}, v{LW}, v{vCH}, s{s}")
    for k in range(1, 6): a(f"v_add_u32 v{LW+k}, {(k//3)*(16 if first else 8)*6144 + (k%3)*1024}, v{LW}")
def setup_x(a, l):
    s = sT[1]
    a(f"s_lshl_b32 s{s}, s{sRB}, 2"); a(f"s_add_u32 s{s}, s{s}, s{sU}"); a(f"s_lshl_b32 s{s}, s{s}, 16")
    if l == 0:
        a(f"v_lshrrev_b32 v{LX+1}, 4, v{vLANE}"); a(f"v_and_b32 v{LX+2}, 7, v{vLANE}"); a(f"v_xor_b32 v{LX+1}, v{LX+1}, v{LX+2}"); a(f"v_lshlrev_b32 v{LX+1}, 4, v{LX+1}")
        a(f"v_lshrrev_b32 v{LX+2}, 3, v{vLANE}"); a(f"v_lshlrev_b32 v{LX+2}, 11, v{LX+2}"); a(f"v_add3_u32 v{LX}, v{LX+1}, v{LX+2}, s{s}")
        a(f"v_xor_b32 v{LX+1}, 64, v{LX}"); a(f"v_add_u32 v{LX+2}, {2*15360}, v{LX}"); a(f"v_add_u32 v{LX+3}, {3*15360}, v{LX+1}"); a(f"v_add_u32 v{LX+1}, 15360, v{LX+1}")
    elif l == 1: a(f"v_add_u32 v{LX}, s{s}, v{vL16}")
def xsrd(a, d, l):
    srd(a, d, pOUT if l else pX, 4194304)
def kstage(a, l, n, x=True, w=True):
    t = sXO if x else sWOF
    if l in ROTL and n: a(f"s_add_u32 s{t}, s{sGO}, {n}"); a(f"s_cmp_ge_u32 s{t}, 16"); a(f"s_addc_u32 s{t}, s{t}, s{sJ}")
    else: a(f"s_add_u32 s{t}, s{sJ if l else sGO}, {n}")
    a(f"s_and_b32 s{t}, s{t}, 15")
    if w: a(f"s_mul_i32 s{sWOF}, s{t}, {WSTEP}")
    if x: a(f"s_lshl_b32 s{sXO}, s{t}, {12 if l else 7}")
def dma_w(a, base, so=sWOF):
    for i in range(2):
        a(f"s_add_u32 m0, s{sMW}, {base + i*3072}")
        for seg in range(3): a(f"buffer_load_dwordx4 v{LW+i*3+seg}, {sr(sW)}, s{so} offen offset:{seg*1024} lds")
def dma_x(a, l, n):
    a(f"s_add_u32 m0, s{sMX}, {XB[n % 3]}")
    for k in range(4): a(f"buffer_load_dwordx4 v{LX + (0 if l else k)}, {sr(sIO if l else sXS)}, s{sXO} offen offset:{k*1024} sc1 lds")
def hot_line(a, v, q, base):
    s = sT[4]
    a(f"s_lshr_b32 s{s}, s{base}, 7"); a(f"s_sub_u32 s{s}, 3, s{s}"); a(f"s_and_b32 s{s}, s{s}, 7"); a(f"s_lshl_b32 s{s}, s{s}, 7")
    a(f"v_and_b32 v{v}, 1, v{q}"); a(f"v_lshlrev_b32 v{v}, 10, v{v}"); a(f"v_lshrrev_b32 v{q}, 1, v{q}"); a(f"v_lshlrev_b32 v{q}, 11, v{q}")
    a(f"v_add3_u32 v{v}, v{v}, v{q}, s{s}")
def hot_setup(a, l, t):
    s = sT[1]
    a(f"s_lshr_b32 s{s}, s2, 3"); a(f"s_mul_i32 s{s}, s{s}, 12"); a(f"s_mul_i32 s{s+1}, s{sU}, 3"); a(f"s_add_u32 s{s}, s{s}, s{s+1}")
    a(f"v_mul_u32_u24 v{vHOT+1}, 21846, v{vLANE}"); a(f"v_lshrrev_b32 v{vHOT+1}, 16, v{vHOT+1}")
    a(f"v_mul_u32_u24 v{t}, 3, v{vHOT+1}"); a(f"v_sub_u32 v{t}, v{vLANE}, v{t}"); a(f"v_add_u32 v{t}, s{s}, v{t}")
    hot_line(a, vHOT, t, sW)
    if l and l not in ROTL: a(f"v_bfe_u32 v{t}, v{vHOT}, 7, 4"); a(f"v_add_u32 v{vHOT+1}, v{vHOT+1}, v{t}")
    else: a(f"s_and_b32 s{s}, s{sRB}, {14 & ~(RG1 if l else RG)}"); a(f"v_add_u32 v{vHOT+1}, s{s}, v{vHOT+1}")
def hot_issue(a, l, first, count, t):
    s = sT[1]
    a(f"v_add_u32 v{t}, {first}, v{vHOT+1}")
    if l in ROTL: a(f"v_lshrrev_b32 v{t+1}, 4, v{t}"); a(f"v_lshrrev_b32 v{t+2}, 7, v{vHOT}"); a(f"v_add3_u32 v{t}, v{t}, v{t+1}, v{t+2}")
    a(f"v_and_b32 v{t}, 15, v{t}")
    a(f"s_mov_b32 s{s}, {WSTEP}"); a(f"v_mad_u32_u24 v{t}, v{t}, s{s}, v{vHOT}")
    a(f"s_mov_b64 exec, {(1 << (3 * count)) - 1}")
    a(f"buffer_load_dword v{vDUM}, v{t}, {sr(sW)}, 0 offen")
    a("s_mov_b64 exec, -1")
def hot_slab(t, sd, v):
    s = sT[1]; per = 6
    t(f"s_lshr_b32 s{s}, s2, 3"); t(f"s_lshl_b32 s{s}, s{s}, 2"); t(f"s_add_u32 s{s}, s{s}, s{sU}")
    t(f"s_lshr_b32 s{s+1}, s{s}, 5"); t(f"s_and_b32 s{s}, s{s}, 31"); t(f"s_mul_i32 s{s}, s{s}, {per*2048}")
    t(f"s_lshr_b32 s{s+2}, s{sd}, 7"); t(f"s_sub_u32 s{s+2}, 3, s{s+2}"); t(f"s_and_b32 s{s+2}, s{s+2}, 7"); t(f"s_and_b32 s{s+3}, s{s+1}, 1"); t(f"s_lshl_b32 s{s+3}, s{s+3}, 3"); t(f"s_add_u32 s{s+2}, s{s+2}, s{s+3}")
    t(f"s_lshr_b32 s{s+1}, s{s+1}, 1"); t(f"s_and_b32 s{s+3}, s{sRB}, 14"); t(f"s_add_u32 s{s+1}, s{s+1}, s{s+3}")
    t(f"s_add_u32 s{s+1}, s{s+1}, s{s+2}"); t(f"s_and_b32 s{s+1}, s{s+1}, 15")
    t(f"s_mul_i32 s{s+1}, s{s+1}, {WSTEP}"); t(f"s_add_u32 s{s}, s{s}, s{s+1}"); t(f"s_lshl_b32 s{s+2}, s{s+2}, 7"); t(f"s_add_u32 s{s}, s{s}, s{s+2}")
    t(f"v_lshlrev_b32 v{v}, 11, v{vLANE}")
    t(f"s_mov_b64 exec, {(1 << per) - 1}"); t(f"buffer_load_dword v{vDUM}, v{v}, {sr(sd)}, s{s} offen"); t("s_mov_b64 exec, -1")
def wo_one(step):
    s = sT[10]
    return [f"s_add_u32 m0, s{sWP}, {step*4096}", f"s_add_u32 s{s}, s{sWR}, {step*65536}", f"s_and_b32 s{s}, s{s}, 0x1fffff", f"buffer_load_dwordx4 v{vWO}, {sr(sWO)}, s{s} offen lds"]

class VM:
    def __init__(self, a): self.a = a; self.q = []
    def add(self, tag, n=1): self.q += [tag] * n
    def wait(self, tag):
        if tag not in self.q: return
        last = max(i for i, t in enumerate(self.q) if t == tag)
        y = self.q[last + 1:]; self.q = y
        n = sum(1 for t in y if t[0] != "if"); c = sorted({t[1] for t in y if t[0] == "if"})
        assert n + 6 <= 63
        if c:
            a = self.a; l0, l1 = a.newlabel("Lvm"), a.newlabel("Lvm"); assert c == list(range(c[0], c[-1] + 1))
            a(f"s_sub_u32 s{sT[1]}, s{sH}, {c[0]}"); a(f"s_cmp_lt_u32 s{sT[1]}, {len(c)}"); a(f"s_cbranch_scc1 {l0}")
            a(f"s_waitcnt vmcnt({n})"); a.label(l0); a(f"s_waitcnt vmcnt({n + 6})")
        else: self.a(f"s_waitcnt vmcnt({n})")
    def wait_wo(self):
        w = [t for t in self.q if t[0] == "wo"]
        if w: self.wait(w[-1])
    def wo(self, steps):
        for st in steps: self.a.all(wo_one(st)); self.add(("wo", st))

def slab_sums(a, base, parts="rmw"):
    s = sT[1]; F, D, A = S_, 48, 60
    if "r" in parts:
        a(f"v_lshrrev_b32 v{A}, 5, v{vLANE}"); a(f"v_mul_u32_u24 v{A}, 3072, v{A}"); a(f"s_add_u32 s{s}, s{sMW}, {base}"); a(f"v_add3_u32 v{A}, v{A}, v{vTR}, s{s}")
        for cb in range(1, 4): a(f"v_xor_b32 v{A+cb}, {32*cb}, v{A}")
        for seg in range(3):
            for cb in range(4): a(f"ds_read_b64_tr_b16 {vr(F+8*seg+2*cb,2)}, v{A+cb} offset:{seg*1024}")
    if "m" in parts:
        a(f"v_bfe_u32 v{D}, v{vLANE}, 2, 2"); a(f"v_lshlrev_b32 v{D}, v{D}, 1")
        for cb in range(4):
            a(f"v_bfe_i32 v{SELA+2*cb}, v{D}, {cb}, 1"); a(f"v_and_b32 v{SELA+2*cb}, 0x3f803f80, v{SELA+2*cb}"); a(f"v_mov_b32 v{SELA+2*cb+1}, v{SELA+2*cb}")
        a("s_waitcnt lgkmcnt(0)")
        for h in range(2):
            for seg in range(3): a(M(D + 4 * seg, SELA + 4 * h, F + 8 * seg + 4 * h, D + 4 * seg if h else "0"))
    if "w" in parts:
        a(f"s_mul_i32 s{s}, s{sU}, 768"); a(f"s_add_u32 s{s}, s{s}, {HX}"); a(f"v_lshl_add_u32 v{A}, v{vLANE}, 2, s{s}")
        for seg in range(3): a(f"ds_write_b32 v{A}, v{D+4*seg} offset:{seg*256}")
        a("s_waitcnt lgkmcnt(0)")
def cs_off(a, d, l, unit, base):
    a(f"s_lshl_b32 s{d}, s{sJ}, 2"); a(f"s_add_u32 s{d}, s{d}, s{sU}"); a(f"s_mul_i32 s{d}, s{d}, {unit}"); a(f"s_add_u32 s{d}, s{d}, {base + l*64*unit}")
def slab_publish(a, l):
    s = sT[1]; F = S_
    a(f"s_min_u32 s{s}, s{sU}, 2"); a(f"s_lshl_b32 s{s}, s{s}, 8"); a(f"s_add_u32 s{s}, s{s}, {HX}"); a(f"v_lshl_add_u32 v{F}, v{vLANE}, 2, s{s}")
    for k in range(4): a(f"ds_read_b32 v{F+1+k}, v{F} offset:{k*768}")
    cs_off(a, s, l, 4096, CSP); a(f"s_lshl_b32 s{s+1}, s{sRB}, 8"); a(f"s_add_u32 s{s}, s{s}, s{s+1}"); a(f"v_lshlrev_b32 v{F}, 2, v{vLANE}")
    a("s_waitcnt lgkmcnt(0)")
    a(f"v_add_f32 v{F+1}, v{F+1}, v{F+2}"); a(f"v_add_f32 v{F+3}, v{F+3}, v{F+4}"); a(f"v_add_f32 v{F+1}, v{F+1}, v{F+3}")
    a(f"buffer_store_dword v{F+1}, v{F}, {sr(sWS)}, s{s} offen sc1")
def halves(w):
    s = sT[1]
    return [x for b in range(3) for x in (f"s_lshr_b32 s{s}, s{w}, {2-b}", f"s_and_b32 s{s}, s{s}, 8192", f"s_add_u32 s{sNB[b]}, s{sNB[b]}, s{s}")]
def slab_post(a, l):
    s = sT[1]; F = S_ + 20
    cs_off(a, s, l, 128, CSFL); a(f"v_and_b32 v{vCF}, 15, v{vLANE}"); a(f"v_lshl_add_u32 v{vCF}, v{vCF}, 3, s{s}")
    a(f"s_lshl_b32 s{s+1}, s{sRB}, 3"); a(f"s_add_u32 s{s}, s{s}, s{s+1}"); a(f"v_mov_b32 v{F+2}, s{s}")
    p0, p1 = post_l(F + 2, F); a.all(p0)
    if l == 0 and POL == 3: a(f"v_or_b32 v{F+1}, v{F+1}, v{vCS+2}")
    a.all(p1)

def chunks(a, L, k):
    L = [x.strip() for x in L]
    return [(lambda part: lambda: a.all(part))(L[i:i + k]) for i in range(0, len(L), k)]
def hand(a, vm, l, what, PXF=''):
    s = sT[1]
    if what[1] == "x" and l >= LAST or what[0] == "p" and l: return []
    sd = sIO if what[1] == "x" else sWS; off = 0 if what[1] == "x" else OB
    def st(k):
        a(f"s_add_u32 s{s}, s{sTILE}, {off}"); (a.all if PXF else a.bymode)([f"buffer_store_dwordx4 {vr(vPO,4)}, v{vL16}, {sr(sd)}, s{s} offen offset:{k*1024}{PXF}"]); vm.add(("p",))
    def touch():
        a(f"s_add_u32 s{s}, s{sTILE}, {off}"); a(f"v_lshlrev_b32 v{S_+22}, 3, v{vL16}")
        a("s_mov_b32 exec_hi, 0"); a(f"buffer_load_dword v{vDUM}, v{S_+22}, {sr(sd)}, s{s} offen sc1"); a("s_mov_b64 exec, -1"); vm.add(("hot",))
    return [touch] if what[0] == "t" else [(lambda k: lambda: st(k))(k) for k in range(4)]
def halo_fill(a, k):
    s = sT[1]
    a(f"s_add_u32 s{s}, s{sWP}, {HB + k * 4096}"); a(f"s_add_u32 s{s}, s{s}, s{sNB[0]}")
    a(f"buffer_store_dwordx4 {vr(vPO,4)}, v{vL16}, {sr(sWS)}, s{s} offen sc1")
def swarm(what, lo, cnt):
    s = sT[1]; p = {"woa": pWOA, "wob": pWOB, "wb": pWB}[what]
    return [f"s_lshl_b32 s{s}, s2, 2", f"s_add_u32 s{s}, s{s}, s{sU}", f"s_mul_i32 s{s}, s{s}, {6144 if what == 'wb' else 2048}", "s_nop 0", f"s_add_u32 s44, s{p}, s{s}", f"s_addc_u32 s45, s{p+1}, 0"] + [f"s_load_dword s46, s[44:45], {k*64}" for k in range(lo, lo + cnt)]
def loader(a, l, vm):
    S, G = S_, S_ + 24
    s = sT[1]; A = l % 2 == 0
    NR = RG1 + 1 if l else RG; NS, NP = NR + 1, NR + 2
    if SUM0: assert RG == RG1 == 0; NR, NS, NP = (-1, -1, 0) if l else (0, 0, 1)
    NF = NF0 if l == 0 else NF1; NPOST = (max(OI) + OID if l == 0 else NP1); NL = NL0 if l == 0 else NL1; assert 2 <= NPOST < NF
    NCF = NCF0 if l == 0 else NCF1
    if LPRIO: a(f"s_setprio {LPRIO}")
    for n in range(17):
        if n == 16 and LPRIO: a("s_setprio 0")
        if n <= 13: kstage(a, l, n + 2, w=n > 0); a(f"s_add_u32 m0, s{sMX}, {XB[(n + 2) % 3]}")
        if n:
            vm.wait(("x", n)); vm.wait(("w", n))
            if n == 15 or n == 14 and l == 0: a("s_waitcnt lgkmcnt(0)")
            if l == 0 and n in DZ and DZ[n] > 0: a(f"s_sleep {DZ[n]}")
            if l == 0 and n in DZ and DZ[n] < 0:
                lp = a.newlabel("Ldz"); a(f"s_mov_b32 s{s}, s{sJ}"); a.label(lp); a(f"s_sleep {-DZ[n]}"); a(f"s_sub_u32 s{s}, s{s}, 1"); a(f"s_cbranch_scc0 {lp}")
            a("s_barrier")
            if a.stamps and TRACE:
                if n > 1: a(f"v_writelane_b32 v5, s100, {l*16 + n - 1}")
                a("s_memrealtime s[100:101]" if RT else "s_memtime s[100:101]")
            if n == 1: a.stamp("l_c")
        D = []; X = []; late = []
        if n <= 13:
            t = G_(a); dma_x(t, l, n + 2); D += [([x], ("x", n + 2)) for x in t.lines[1:]]
            if n:
                t = G_(a); dma_w(t, WB[(n + 2) % 3]); L = t.lines
                D += [(x, ("w", n + 2)) for x in (L[0:2], L[2:3], L[3:4], L[4:6], L[6:7], L[7:8])]
        wo = []
        if not A and TRICKLE and 14 - TRICKLE <= n < 14: wo = [18 + n]
        if n >= 14: wo = (WOA if A else WOB)[n - 14]
        if n == 16 and not A: wo = list(wo) + list(range(24, 32 - TRICKLE))
        D += [(wo_one(st), ("wo", st)) for st in wo]
        if n == 0 and l == 0 and POL == 3: X.append(lambda: a.all([f"v_mov_b32 v{vCS+2}, {TAB+1824}", f"ds_read_b128 v[72:75], v{vCS+2}", f"ds_read_b128 v[76:79], v{vCS+2} offset:16"]))
        if n == 2 and l == 0 and POL == 3: X += chunks(a, ["v_min3_u32 v72, v72, v73, v74", "v_min3_u32 v76, v76, v77, v78", "v_min_u32 v72, v72, v75", "v_min_u32 v76, v76, v79", "v_sub_u32 v72, v76, v72", "v_lshrrev_b32 v72, 31, v72", f"v_lshlrev_b32 v{vCS+2}, 4, v72"], 2); assert NP + 2 > 2
        if n == 1:
            X += [lambda: a.all([f"s_lshl_b32 s{s}, s{sU}, 8", f"s_add_u32 s{s}, s{s}, {SX}", f"v_add_u32 v{S+4}, s{s}, v{vL16}", f"ds_read_b128 {vr(S,4)}, v{S+4}"]), lambda: None]
            def st():
                a(f"s_lshr_b32 s{s}, s{sTILE}, 4"); a("s_waitcnt lgkmcnt(0)"); a("s_mov_b64 exec, 0xffff")
                a.bymode([f"buffer_store_dwordx4 {vr(S,4)}, v{vL16}, {sr(sWS)}, s{s} offen"]); a("s_mov_b64 exec, -1"); vm.add(("p",))
            X.append(st)
        if l == 0 and n in OI and not NOI: X += hand(a, vm, l, "po", " sc1")[OI.index(n) * 4 // len(OI):(OI.index(n) + 1) * 4 // len(OI)]
        if n == NPOST:
            def post():
                p0, p1 = post_l(S + 22, S + 20, fl="")
                a(f"s_lshr_b32 s{s}, s{sTILE}, 9"); a(f"s_add_u32 s{s}, s{s}, {SFL + l*8192}"); a(f"v_mov_b32 v{S+22}, s{s}"); a.all(p0); vm.wait(("p",))
                a(p1[0]); a.bymode([p1[1]]); a(p1[2]); vm.add(("hot",))
            X.append(post)
        if n == NF: X.append(lambda: (a.flagload(S, vSF), vm.add(("F",))))
        if l < 2 and n == NCF: X.append(lambda: (a.flagload(G + 16, vCF), vm.add(("CF",))))
        if n == NF + 1:
            def chk():
                vm.wait(("F",)); ok = a.newlabel("Lsok"); a.flagtest(S, ok); a.poll(vSF, S); a.label(ok)
            def mode():
                a(f"v_cmp_ne_u32 vcc, s{sN1}, v{S+1}"); a("s_cmp_eq_u64 vcc, 0"); a(f"s_cselect_b32 s{sFAST}, {0 if FORCE_SLOW else 1}, 0")
                a(f"s_or_b32 s{s}, s{sFAST}, s47" if POL == 3 else f"s_mov_b32 s{s}, s{sFAST}"); assert NCF < NF <= 12
                a(f"v_mov_b32 v{S+18}, s{s}"); a(f"v_mov_b32 v{S+19}, {TAB+1792}"); a(f"ds_write_b32 v{S+19}, v{S+18}")
            X += [chk] + ([mode] if l == 0 else [])
        for i in [i for i in range(4) if NL[i] == n]:
            assert n > NF
            def sl(i=i):
                a(f"s_lshr_b32 s{s}, s{sTILE}, 16"); a(f"s_lshl_b32 s{s}, s{s}, 12"); assert ST == 0
                a(f"buffer_load_dwordx4 {vr(S+4*i,4)}, v{vL16}, {sr(sWS)}, s{s} offen offset:{i*1024} sc1"); vm.add(("stats",))
            X.append(sl)
        if n == NL[4]:
            L = [f"v_add_f32 v{S+i}, v{S+i}, v{S+8+i}" for i in range(8)] + [f"v_add_f32 v{S+i}, v{S+i}, v{S+4+i}" for i in range(4)]
            L += [f"v_permlane32_swap_b32 v{S}, v{S+2}", f"v_permlane32_swap_b32 v{S+1}, v{S+3}",
                  f"v_add_f32 v{S}, v{S}, v{S+2}", f"v_add_f32 v{S+1}, v{S+1}, v{S+3}", f"v_mov_b32 v{S+2}, v{S}", f"v_mov_b32 v{S+3}, v{S+1}"]
            X += [lambda: vm.wait(("stats",))] + chunks(a, L, 3)
        if n == NL[5]:
            L = [f"v_permlane16_swap_b32 v{S}, v{S+2}", f"v_permlane16_swap_b32 v{S+1}, v{S+3}", f"v_add_f32 v{S}, v{S}, v{S+2}", f"v_add_f32 v{S+1}, v{S+1}, v{S+3}",
                 f"v_mul_f32 v{S}, 0xba800000, v{S}", f"v_mul_f32 v{S+1}, 0x3a800000, v{S+1}",
                 f"v_fma_f32 v{S+1}, -v{S}, v{S}, v{S+1}", f"v_max_f32 v{S+1}, 0, v{S+1}", f"v_add_f32 v{S+1}, 0x3727c5ac, v{S+1}", f"v_rsq_f32 v{S+1}, v{S+1}", f"v_mul_f32 v{S}, v{S}, v{S+1}",
                 f"ds_write_b32 v{vTW}, v{S+1}", f"ds_write_b32 v{vTW}, v{S} offset:512"] + ([f"ds_write_b32 v{vCW}, v{vCS + (l & 1)}"] if l >= 2 else [])
            X += chunks(a, L, 2); assert n <= 14
        def piece(f, tag, k=4):
            t = G_(a); f(t); L = t.lines
            X.extend(chunks(a, L[:-3], k) + [lambda: (a.all(L[-3:]), vm.add(tag))])
        if HOT and n == WOHOT:
            def f(a):
                a(f"s_lshr_b32 s{s}, s2, 3"); a(f"s_lshl_b32 s{s}, s{s}, 6"); a(f"s_lshl_b32 s{s+1}, s{sU}, 4"); a(f"s_add_u32 s{s}, s{s}, s{s+1}")
                a(f"v_add_u32 v{S+20}, s{s}, v{vLANE}"); hot_line(a, S + 21, S + 20, sWO)
                a("s_mov_b64 exec, 0xffff"); a(f"buffer_load_dword v{vDUM}, v{S+21}, {sr(sWO)}, 0 offen"); a("s_mov_b64 exec, -1")
            piece(f, ("hot",))
        if HOT and n % 4 == 0 and n + HOTD + 1 <= 16: piece(lambda t: hot_issue(t, l, n + HOTD + 1, 4, S + 21), ("hot",))
        if (l, n) in WARM:
            def f(a):
                a(f"s_lshl_b32 s{s}, s2, 2"); a(f"s_add_u32 s{s}, s{s}, s{sU}"); a(f"s_lshl_b32 s{s}, s{s}, 11"); a(f"v_lshlrev_b32 v{S+20}, 7, v{vLANE}")
                a("s_mov_b64 exec, 0xffff"); a(f"buffer_load_dword v{vDUM}, v{S+20}, {sr(sWO)}, s{s} offen"); a("s_mov_b64 exec, -1")
            piece(f, ("hot",))
        if l == 0 and n in (HPAT, HPAT + 1): piece(lambda t: halo_fill(t, n - HPAT), ("hp",))
        for what, at in (HANDA if A else HANDB):
            if at == n: assert n > NF + 1 or PXF; X += hand(a, vm, l, what, PXF)
        if l < 2 and n <= NR:
            def f():
                e = a.skip_unless("eq", sH, n); t = G_(a); slab_sums(t, WB[n % 3], "r"); a.all(shift(t.lines, 56)); a.label(e)
            X.append(f); late.append(lambda: a("s_waitcnt lgkmcnt(0)"))
        if l < 2 and n == NS: t = G_(a); slab_sums(t, 0, "mw"); X += chunks(a, shift(t.lines, 56), 4)
        for ll, nn, what, lo, cnt in SWARM:
            if (ll, nn) == (l, n): X += chunks(a, swarm(what, lo, cnt), 2)
        if A and n == WOT:
            def f(a):
                a(f"s_and_b32 s{s}, s{sRB}, 1"); a(f"s_lshl_b32 s{s}, s{s}, 2"); a(f"s_add_u32 s{s}, s{s}, s{sU}"); a(f"s_cmp_ge_u32 s{s}, 1"); a(f"s_addc_u32 s{s+1}, s{s}, 6"); a(f"s_cmp_ge_u32 s{s}, 4"); a(f"s_addc_u32 s{s}, s{s+1}, s{sJ}")
                a(f"s_and_b32 s{s}, s{s}, 15"); a(f"s_lshl_b32 s{s}, s{s}, 10"); a(f"s_add_u32 s{s}, s{s}, s{sJ}"); a(f"s_lshl_b32 s{s}, s{s}, 7"); a(f"v_lshlrev_b32 v{S+20}, 11, v{vLANE}")
                a(f"buffer_load_dword v{vDUM}, v{S+20}, {sr(sWO)}, s{s} offen")
            piece(f, ("hot",), 99)
        if l < 2 and n == NP:
            def f(t): u = G_(a); slab_publish(u, l); t.all(shift(u.lines, 56))
            piece(f, ("cs",))
        if l < 2 and n == NP + 2: X.append(lambda: vm.wait(("cs",))); piece(lambda t: slab_post(t, l), ("hot",))
        if l < 2 and n == NCF + 1:
            def chk():
                vm.wait(("CF",)); ok = a.newlabel("Lcsok"); a.flagtest(G + 16, ok); a.poll(vCF, G + 16); a.label(ok)
            X += [chk, lambda: cs_off(a, s + 4, l, 4096, CSP)]
            if l == 0 and POL == 3:
                X.append(lambda: a.all([f"v_and_b32 v{G+18}, 16, v{G+17}", f"v_cmp_ne_u32 vcc, 0, v{G+18}", "s_lshl_b32 s47, vcc_lo, 15", f"s_lshr_b32 s47, s47, s{sRB}", "s_and_b32 s47, s47, 0xe000"] + halves(47)))
            X += [(lambda i: lambda: (a(f"buffer_load_dwordx4 {vr(G+4*i,4)}, v{vL16}, {sr(sWS)}, s{s+4} offen offset:{i*1024} sc1"), vm.add(("G",))))(i) for i in range(4)]
        if l < 2 and n == NCF + 3:
            L = [f"v_add_f32 v{G+i}, v{G+i}, v{G+8+i}" for i in range(8)] + [f"v_add_f32 v{G+i}, v{G+i}, v{G+4+i}" for i in range(4)]
            L += [f"v_permlane32_swap_b32 v{G}, v{G+2}", f"v_permlane32_swap_b32 v{G+1}, v{G+3}", f"v_add_f32 v{G}, v{G}, v{G+2}", f"v_add_f32 v{G+1}, v{G+1}, v{G+3}",
                  f"v_permlane16_swap_b32 v{G}, v{G+1}", f"v_add_f32 v{vCS+l}, v{G}, v{G+1}", f"ds_write_b32 v{vCW}, v{vCS+l}"]
            X += [lambda: vm.wait(("G",))] + chunks(a, L, 3)
        V = []
        if l and n + 1 <= NF + 3:
            m = n + 1; ok, rt = a.newlabel("Lxok"), a.newlabel("Lxrt")
            rd = [f"ds_read_b32 v{S+16+k}, v{vXV} offset:{(m % 3)*16384 + k*1024}" for k in range(4)]
            if RD2 == 2: rd = [f"ds_read_b64 {vr(72+2*k,2)}, v{vXV} offset:{(m % 3)*16384 + k*1024}" for k in range(4)]
            if RD2 == 1: rd = [f"ds_read2st64_b32 {vr(S+16+2*k,2)}, v{vXV} offset0:{(m % 3)*64 + 8*k} offset1:{(m % 3)*64 + 8*k + 4}" for k in range(2)]
            T = tag_test(S + 16, range(72, 80, 2) if RD2 == 2 else range(S + 16, S + 20), (l - 1) & 1)
            V = [lambda: (vm.wait(("x", m)), a.all(rd)), lambda: a.all(["s_waitcnt lgkmcnt(0)"] + T), lambda: (a(f"s_cbranch_vccnz {rt}"), a.label(ok))]
            t = G_(a); t.label(rt); t(f"s_mov_b32 s{sT[0]}, 0"); kstage(t, l, m, w=False); t.label(rt + "a"); (DIAG and t(f"v_add_u32 v7, {1 << (16 * (m > 1))}, v7")); dma_x(t, l, m); t("s_waitcnt vmcnt(0)"); t.all(rd + ["s_waitcnt lgkmcnt(0)"] + T)
            t(f"s_cbranch_vccz {ok}"); t(f"s_add_u32 s{sT[0]}, s{sT[0]}, 1"); t(f"s_cmp_lt_u32 s{sT[0]}, {SPIN}"); t(f"s_cbranch_scc1 {rt}a"); t(f"s_branch {ok}"); a.tail += t.lines
        gaps = [[] for _ in range(max(1, len(D)))]
        vg = VG if V and n else []
        for g, f in zip(vg, V): gaps[g].append(f)
        free = [g for g in range(len(gaps)) if g not in vg[1:]]; free = free[:-1] or free
        for k, f in enumerate(X): gaps[free[k * len(free) // len(X)]].append(f)
        for k, g in enumerate(gaps):
            if k < len(D): a.all(D[k][0]); vm.add(D[k][1])
            for f in g: f()
        for f in late + ([] if vg else V): f()
def G_(a):
    t = G(a.stamps); t.newlabel = a.newlabel; t.tail = a.tail
    return t
def shift(lines, d):
    import re
    def one(m): n = int(m.group(1)); return f"v{n + d}" if 24 <= n < 72 else m.group(0)
    def rng(m): p, q = int(m.group(1)), int(m.group(2)); return f"v[{p+d}:{q+d}]" if 24 <= p < 72 else m.group(0)
    return [re.sub(r"\bv(\d+)\b", one, re.sub(r"\bv\[(\d+):(\d+)\]", rng, x)).strip() for x in lines]

def between(a, l, vm):
    s = sT[1]; A = l % 2 == 0
    if A: vm.wo(range(LATE, 32))
    if l == LAST:
        if TO3:
            for f in hand(a, vm, l, "to"): f()
        vm.wait_wo(); a("s_barrier"); a("s_barrier"); return
    n = l + 1; assert l or PZ or HPAT < 15 or any('hp' in x for x in WSCH[0])
    a(f"s_mov_b32 s{sL}, {n}")
    p = (pWB, pWOB) if n & 1 else (pWA, pWOA)
    a(f"s_mov_b32 s{sW}, s{p[0]}"); a(f"s_mov_b32 s{sW+1}, s{p[0]+1}")
    if l == 0:
        setup_w(a, False); setup_x(a, 1); assert 1 in ROTL
        a(f"s_andn2_b32 s{sGO}, s{sRB}, {RG1}"); a(f"s_cmp_eq_u32 s{sGO}, 15"); a(f"s_cselect_b32 s{sGO}, 0, s{sGO}")
        a(f"s_and_b32 s{sH}, s{sRB}, {RG1}"); a(f"s_add_u32 s{sH}, s{sH}, 1"); a(f"s_cmp_eq_u32 s{sRB}, 15"); a(f"s_cselect_b32 s{sH}, 0, s{sH}")
    a(f"v_add_u32 v{vSF}, 8192, v{vSF}")
    if HOT: hot_setup(a, n, S_)
    def batch(k):
        for ll, nn, what, lo, cnt in SWARM:
            if (ll, nn) == (l, 17 + k): a.all(swarm(what, lo, cnt))
        for st in WSCH[l][k]:
            if st == "hp": halo_fill(a, 0); halo_fill(a, 1); vm.add(("hp",), 2); continue
            if st in ("tx", "to"):
                for f in hand(a, vm, l, st): f()
                continue
            if st == "h":
                if HOT: hot_issue(a, n, int(n in ROTL), HOTD + 1, S_); vm.add(("hot",))
                continue
            assert st <= k
            kstage(a, n, st, x=False); t = G_(a); dma_w(t, WB[st])
            for x in t.lines:
                if "buffer" in x and WP[l] is not None: a(f"s_waitcnt vmcnt({WP[l]})")
                a(x)
            vm.add(("w", st), 6)
    batch(0)
    if not A: vm.wait_wo()
    a.stamp("l_a")
    a("s_barrier")
    batch(1)
    vm.wait_wo()
    a(f"s_mov_b32 s{sWO}, s{p[1]}"); a(f"s_mov_b32 s{sWO+1}, s{p[1]+1}")
    a("s_barrier")
    batch(2)
    if l == 0 and SUM0:
        vm.wait(("w", 0)); vm.wait(("w", 1)); a(f"s_cmp_eq_u32 s{sH}, 0"); a(f"s_cselect_b32 s{s+5}, {WB[0]}, {WB[1]}"); slab_sums(a, f"s{s+5}")
    vm.wait(("w", 0))
    kstage(a, n, 1, w=False)
    a.stamp("l_b")
    a("s_barrier")
    dma_x(a, n, 1); vm.add(("x", 1), 4)

ACC, FR, AX, AW = 24, 120, 200, 202
def acc(q, i): return ACC + 32 * (q >> 1) + 8 * i + 4 * (q & 1) if q < 4 else ACC + 64 + 16 * (q & 1) + 4 * i
xf = lambda p, i: FR + 40 * p + 4 * i
wf = lambda p, q: FR + 40 * p + 16 + 4 * q
snake = lambda qs: [(q, i if k % 2 == 0 else 3 - i) for k, q in enumerate(qs) for i in range(4)]
VORD = [(4 + (b ^ (i & 1)), i) for i in range(4) for b in range(2)]
ORD = snake([0, 1, 2, 3]) + VORD; KVORD = snake([2, 3]) + VORD; QORD = snake([0, 1])
def g1m(p, order, init=False):
    return [M(acc(q, i), *((wf(p, q), xf(p, i)) if q < 4 else (xf(p, i), wf(p, q))), "0" if init else acc(q, i)) for q, i in order]
def g1r(p, n, ks, qs=range(6)):
    slot = n % 3
    rx = lambda i: f"ds_read_b128 {vr(xf(p,i),4)}, v{AX+ks} offset:{slot*16384 + i*2048}"
    rw = lambda q: [f"ds_read_b64_tr_b16 {vr(wf(p,q)+2*e,2)}, v{AW + (q & 1) + (0 if slot else 2)} offset:{(WB[slot] if slot else 0) + (4*ks + 2*e)*3072 + (q >> 1)*1024}" for e in range(2)]
    qs = list(qs)
    return [rx(0)] + rw(qs[0]) + [rx(1), rx(2), rx(3)] + [x for q in qs[1:] for x in rw(q)]
def stage(a, n, h0=None, h1=None, first=False, bar=1):
    f0 = {k: [x] for k, x in enumerate(g1r(1, n, 1))}
    if first:
        for m, need in ((1, 4), (2, 5), (3, 6), (4, 8), (8, 10), (12, 12), (16, 16)): f0[m - 1].append(f"s_waitcnt lgkmcnt({min(15, 16 - need + m)})")
    else: f0[7].append("s_waitcnt lgkmcnt(8)")
    f0[23] = ["s_waitcnt lgkmcnt(4)"]
    f1 = {bar + 1 + k: [x] for k, x in enumerate(g1r(0, n + 1, 0))}
    f1[bar - 1] = ["s_waitcnt lgkmcnt(0)"]; f1[bar] = ["s_barrier"]
    f1.setdefault(max(22, bar + 17), []).append("s_waitcnt lgkmcnt(4)")
    for f, h in ((f0, h0), (f1, h1)):
        for g, L in (h or {}).items(): f.setdefault(g, []).extend(L)
    weave(a, g1m(0, ORD, first), f0); weave(a, g1m(1, ORD), f1)
AB, CK, CQ, CV, TA, MD = 206, 214, 192, 230, 248, 252
VT = {3: 232, 2: 240, 1: 144, 0: 152}; TM = 184
SD, SQ, SFA = 206, 230, 236
BD, ONE = 222, 226
def c_setup(a, first):
    s = sT[1]
    a(f"s_lshr_b32 s{s}, s{sWID}, 1"); a(f"s_lshl_b32 s{s}, s{s}, 13"); a(f"s_add_u32 s{s}, s{s}, {XB[0]}")
    if not first: a(f"v_add_u32 v{AX}, s{s}, v{vL16}"); a(f"v_add_u32 v{AX+1}, 1024, v{AX}"); return
    a(f"v_and_b32 v{AX}, 15, v{vLANE}"); a(f"v_bfe_u32 v{AX+1}, v{vLANE}, 1, 3"); a(f"v_lshrrev_b32 v{AW}, 4, v{vLANE}"); a(f"v_xor_b32 v{AX+1}, v{AX+1}, v{AW}")
    a(f"v_lshlrev_b32 v{AX}, 7, v{AX}"); a(f"v_lshlrev_b32 v{AX+1}, 4, v{AX+1}"); a(f"v_add3_u32 v{AX}, v{AX}, v{AX+1}, s{s}"); a(f"v_xor_b32 v{AX+1}, 64, v{AX}")
    a(f"s_and_b32 s{s+1}, s{sWID}, 1"); a(f"s_lshl_b32 s{s+2}, s{s+1}, 6"); a(f"v_xor_b32 v{AW}, s{s+2}, v{vTR}")
    a(f"v_lshrrev_b32 v{AW+1}, 5, v{vLANE}"); a(f"v_mul_u32_u24 v{AW+1}, 3072, v{AW+1}"); a(f"v_add_u32 v{AW}, v{AW}, v{AW+1}"); a(f"v_xor_b32 v{AW+1}, 32, v{AW}")
    for k in range(2): a(f"v_add_u32 v{AW+2+k}, {WB[0]}, v{AW+k}")
    a(f"s_lshr_b32 s{s}, s{sWID}, 1"); a(f"s_lshl_b32 s{s}, s{s}, 8"); a(f"s_add_u32 s{s}, s{s}, {TAB}"); a(f"s_lshl_b32 s{s+1}, s{s+1}, 7"); a(f"s_add_u32 s{s+1}, s{s+1}, {TAB+1024}")
    a(f"v_and_b32 v{TA+3}, 15, v{vLANE}"); a(f"v_and_b32 v{TA+2}, 48, v{vLANE}")
    a(f"v_lshl_add_u32 v{TA}, v{TA+3}, 2, s{s}"); a(f"v_add_u32 v{TA+1}, s{s}, v{TA+2}"); a(f"v_add_u32 v{TA+2}, s{s+1}, v{TA+2}"); a(f"v_lshl_add_u32 v{TA+3}, v{TA+3}, 2, s{s+1}")
def stat_mfma():
    L = []
    for ks in range(2):
        for t in range(2):
            x = XRES + 8 * t + 4 * ks
            L += [M(SD + 8 * t, ONE, x, SD + 8 * t if ks else "0"), M(SD + 8 * t + 4, x, x, SD + 8 * t + 4 if ks else "0")]
    return L
def epi_qk(seg, i, cs):
    r = acc(2 * seg, i); ab = AB + 2 * i; L = []
    for p in range(4):
        t = TM + 2 * p
        L += [f"v_pk_mul_f32 {vr(t,2)}, {vr(cs+2*p,2)}, {vr(ab,2)} op_sel:[0,1] op_sel_hi:[1,1]", f"v_pk_fma_f32 {vr(t,2)}, {vr(r+2*p,2)}, {vr(ab,2)}, {vr(t,2)} op_sel_hi:[1,0,1]",
              f"v_cvt_pk_bf16_f32 v{r+p}, v{t}, v{t+1}"]
    return L
vout = lambda b, i: acc(4 + b, 0) + 8 + 2 * i
def epi_v(i):
    L = []
    for b in range(2):
        for p in (1, 0):
            t = TM + 2 * (2 * b + p); r = acc(4 + b, i) + 2 * p
            L += [f"v_pk_mul_f32 {vr(t,2)}, {vr(VT[i]+4+2*p,2)}, {vr(CV,2)} op_sel:[0,{b}] op_sel_hi:[1,{b}]", f"v_pk_fma_f32 {vr(t,2)}, {vr(r,2)}, {vr(VT[i]+2*p,2)}, {vr(t,2)}",
                  f"v_cvt_pk_bf16_f32 v{vout(b,i)+p}, v{t}, v{t+1}"]
    return L
def consumer(a):
    s = sT[1]
    a("s_barrier")
    a.stamp("g1start")
    a.all(g1r(0, 0, 0)); a("s_waitcnt lgkmcnt(13)")
    ex = []
    for t in range(2):
        d = SD + 8 * t + 4
        ex += [f"v_cndmask_b32 v{d}, v{d}, v{d+1}, {sr(mB0,2)}", f"v_cndmask_b32 v{d+2}, v{d+2}, v{d+3}, {sr(mB0,2)}", f"v_mov_b32 v{SQ+2*t}, v{d-4}", f"v_cndmask_b32 v{SQ+2*t+1}, v{d}, v{d+2}, {sr(mB1,2)}"]
    ex += [f"v_and_b32 v{SFA}, 0xf0, v{vL16}", f"s_lshl_b32 s{s}, s{sWID}, 8", f"s_add_u32 s{s}, s{s}, {SX}", f"v_add_u32 v{SFA}, s{s}, v{SFA}"]
    h0 = {}; spread(h0, [ex[k:k+2] for k in range(0, len(ex), 2)], range(16, 23))
    h1 = {1: ["s_mov_b32 exec_lo, 0x00f0000f", "s_mov_b32 exec_hi, 0xf0000f00", f"ds_write_b128 v{SFA}, {vr(SQ,4)}", "s_mov_b64 exec, -1"], 3: [f"s_mov_b32 s{sCNT}, 0"]}
    stage(a, 0, h0, h1, first=True, bar=BAR0); assert BAR0 >= 4
    stage(a, 1, {22: ["s_waitcnt vmcnt(0)"]})
    a(".p2align 3")
    a.label("L_cloop")
    stage(a, 2); stage(a, 3); stage(a, 4, None, {19: [f"s_add_u32 s{sCNT}, s{sCNT}, 1"], 20: [f"s_cmp_lt_u32 s{sCNT}, 4"], 23: ["s_cbranch_scc1 L_cloop"]})
    t = G_(a); e = t.skip_unless("eq", sL, 0); t(f"v_readfirstlane_b32 s47, v{MD}"); t(f"s_and_b32 s{sFAST}, s47, 1"); t.all(halves(47) if POL == 3 else []); t.label(e)
    stage(a, 14, {16: [f"v_mov_b32 v{MD}, {TAB+1792}"], 17: [f"ds_read_b32 v{MD}, v{MD}"]}, {17: [x.strip() for x in t.lines], 18: [f"s_lshl_b32 s{s+1}, s{sT32}, 14", f"s_add_u32 s{s+1}, s{s+1}, s{sLO}"], 19: [f"s_add_u32 s{s+1}, s{s+1}, s{sNB[0]}", f"s_sub_u32 s{s}, s{s+1}, 16384"]})
    f = {k: [x] for k, x in enumerate(g1r(1, 15, 1, [2, 3, 4, 5, 0, 1]))}
    f[7].append("s_waitcnt lgkmcnt(8)"); f[15].append("s_waitcnt lgkmcnt(8)")
    weave(a, g1m(0, KVORD), f)
    ab = lambda i: f"ds_read2_b32 {vr(AB+2*i,2)}, v{TA} offset0:{16*i} offset1:{128+16*i}"
    vt = lambda i: [f"ds_read_b128 {vr(VT[i]+4*k,4)}, v{TA+1} offset:{k*512 + i*64}" for k in range(2)]
    cs = lambda d, seg: [f"ds_read_b128 {vr(d+4*b,4)}, v{TA+2} offset:{seg*256 + b*64}" for b in range(2)]
    tr = [ab(3)] + cs(CK, 1) + [f"ds_read2_b32 {vr(CV,2)}, v{TA+3} offset0:128 offset1:144"] + vt(3) + [ab(2)] + vt(2) + [ab(1)] + vt(1) + [ab(0)] + vt(0) + cs(CQ, 0)
    f = {k: [x] for k, x in enumerate(tr[:15])}; f[15] = tr[15:]
    f[4].append("s_waitcnt lgkmcnt(5)"); f[5].append("s_barrier")
    f[12].append(f"s_bitcmp1_b32 s{sL}, 0")
    weave(a, g1m(1, KVORD), f)
    a.stamp("g1kv")
    a("s_cbranch_scc1 L_tailB")

def q_scale(): return [f"s_mov_b32 s{sT[9]}, {QSCALE}"] + [f"v_mul_f32 v{AB+k}, s{sT[9]}, v{AB+k}" for k in range(8)]
Qr = lambda t: acc(0, 2 + t)
Kr = lambda par, c: acc(2, 2 * (1 - par) + c)
Vr = lambda par, b: vout(b, 2 * (1 - par))
SS, PP, OO, LL, BO, AD, MI = 120, 136, 144, 160, 236, 244, 245
def masks_A():
    L = []
    for r in range(4): L += [f"v_subrev_u32 v{BD+r}, {r}, v{vD0}", f"v_ashrrev_i32 v{BD+r}, 31, v{BD+r}", f"v_and_b32 v{BD+r}, {BIG}, v{BD+r}"]
    return L
ones = lambda val="0x3f803f80": [f"v_mov_b32 v{ONE+k}, {val}" for k in range(4)]
def blocks(kind, t):
    if kind == "diag": return [(0, BD)] if t == 0 else [(0, "0"), (1, BD)]
    if kind == "old": return [(0, BO), (1, "0")] if t == 0 else [(1, BO)]
    return [(0, "0"), (1, "0")]
def s_mf(kind, par, t): return [M(SS + 8 * t + 4 * c, Kr(par, c), Qr(t), C) for c, C in blocks(kind, t)]
def pv_mf(par, t, init=False):
    return [M(OO + 8 * t + 4 * b, Vr(par, b), PP + 4 * t, "0" if init else OO + 8 * t + 4 * b) for b in range(2)] + [M(LL + 4 * t, ONE, PP + 4 * t, "0" if init else LL + 4 * t)]
def kv_rd(par, off, what):
    R = Kr if what == "K" else Vr; o = off + (0 if what == "K" else 2048)
    return [f"ds_read_b128 {vr(R(par,k),4)}, v{AD} offset:{o + k*1024}" for k in range(2)]
def half(a, kind, t, nxt, pv, rd=(), top=(), mid=(), early=False):
    valu = []; cs = [c for c, _ in blocks(kind, t)]
    for c in cs:
        s = SS + 8 * t + 4 * c; p = PP + 4 * t + 2 * c
        valu += [f"v_exp_f32 v{s}, v{s}", f"v_exp_f32 v{s+1}, v{s+1}", f"v_exp_f32 v{s+2}, v{s+2}", f"v_cvt_pk_bf16_f32 v{p}, v{s}, v{s+1}", f"v_exp_f32 v{s+3}, v{s+3}", None, f"v_cvt_pk_bf16_f32 v{p+1}, v{s+2}, v{s+3}"]
    if len(cs) == 2: valu[5] = valu.pop(7)
    else: z = PP + 4 * t + 2 * (1 - cs[0]); valu[5] = f"v_mov_b32 v{z}, 0"; valu.insert(2, f"v_mov_b32 v{z+1}, 0")
    valu = [x for x in valu if x]
    mf = list(nxt) + list(pv); a.all(top)
    at = ATAT if len(valu) > 8 else [0, 1, 3, 4, 5]
    ins = {}
    for k, x in enumerate(mf): ins.setdefault(at[k], []).append(x)
    rd = list(rd)
    for k in range(len(rd)): ins.setdefault(at[k if early else max(0, len(mf) - len(rd) + k)], []).append(rd[k])
    for k, x in enumerate(mid): ins.setdefault(at[min(len(mf) - 1, (2 + k) if early else k)], []).extend(x)
    for k, x in enumerate(valu): a.all(ins.get(k, [])); a(x)
def local_steps(a, T, have, init, hook=None):
    off = lambda s: (3 - s) * 8192
    kind = lambda s: "diag" if s == 0 else "full"
    a.all(s_mf("diag", 0, 0))
    for s in range(T + 1):
        par = s & 1; more = have <= s + 1 <= T
        half(a, kind(s), 0, s_mf(kind(s), par, 1), pv_mf(par ^ 1, 1, init and s == 1) if s else [], kv_rd(par ^ 1, off(s + 1), "K") if more else [], early=True)
        half(a, kind(s), 1, s_mf("full", par ^ 1, 0) if s < T else [], pv_mf(par, 0, init and s == 0), kv_rd(par ^ 1, off(s + 1), "V") if more else [], top=["s_waitcnt lgkmcnt(0)"] if s + 1 >= have else [])
        if hook and s == hook[0]: a.all(hook[1])
RTILE = [3, 2, 1, 0, 3, 2, 1, 0]
def fetch(F, steps):
    s = sT[1]; back = None; out = []
    for n in steps:
        L = []
        if back != 1 + (n >> 2):
            back = 1 + (n >> 2)
            L += [f"v_add_u32 v{F}, s{sNB[back]}, v{vL16}", f"s_and_b32 s{s+1}, s{sLO}, 4096"]
        L += [f"s_add_u32 m0, s{s+1}, {REM + n*8192}", f"s_add_u32 s{s}, s{sLO}, {RTILE[n]*16384}"]
        for k in range(4): out.append(L + [f"buffer_load_dwordx4 v{F}, {sr(sWS)}, s{s} offen offset:{k*1024} sc1 lds"]); L = []
    return out
def before_Z():
    s = sT[1]
    return [f"s_and_b32 s{s}, s{sLO}, 4096", f"s_add_u32 s{s}, s{s}, {REM}", f"v_add_u32 v{AD}, s{s}, v{vL16}"] + [f"v_xor_b32 v{BO+r}, {BIG}, v{BD+r}" for r in range(4)]
def w_touch(k, v):
    s = sT[1]
    return [f"s_mov_b32 s40, s{pWB}", f"s_mov_b32 s41, s{pWB+1}", "s_mov_b32 s42, 6291456", "s_mov_b32 s43, 0x00020000",
            f"s_and_b32 s{s}, s{sRB}, 1", f"s_lshl_b32 s{s}, s{s}, 2", f"s_add_u32 s{s}, s{s}, s{sU}", f"s_mul_i32 s{s}, s{s}, 36", f"s_mul_i32 s{s+1}, s{sJ}, 192", f"s_add_u32 s{s}, s{s}, s{s+1}", f"s_add_u32 s{s}, s{s}, {288*k}",
            f"v_add_u32 v{v}, s{s}, v{vLANE}", f"v_subrev_u32 v{v+1}, 3072, v{v}", f"v_min_u32 v{v}, v{v}, v{v+1}", f"v_lshlrev_b32 v{v}, 11, v{v}", f"s_lshl_b32 s{s}, s{sJ}, 7",
            "s_mov_b32 exec_hi, 15", f"buffer_load_dword v{vDUM}, v{v}, s[40:43], s{s} offen", "s_mov_b64 exec, -1"]
def o_touch(v):
    s = sT[1]
    return [f"s_add_u32 s{s}, s{sTILE}, {OB}", f"v_lshlrev_b32 v{v}, 3, v{vL16}", "s_mov_b32 exec_hi, 0", f"buffer_load_dword v{vDUM}, v{v}, {sr(sWS)}, s{s} offen sc1", "s_mov_b64 exec, -1"]
def remote_steps(a, T):
    R = 8 - T; vm = VM(a); par = lambda r: (T + 1 + r) & 1; kind = lambda r: "old" if r == R - 1 else "full"
    X = {}
    if T >= 2:
        F = fetch(MI, [T + 2, T + 4]); wo = lambda L: [(wo_one(st), ("wo", st)) for st in L]
        X[-1] = [(x, ("kv",)) for x in F[:F2A]]
        def deal(L, h0, h1):
            for k, x in enumerate(L): X.setdefault(h0 + k * (h1 - h0) // len(L), []).append(x)
        if F2A < 8: deal([(x, ("kv",)) for x in F[F2A:]], 0, 2)
        early = {st for L in WOA + [WOY] for st in L}
        deal(wo([st for st in range(0, 26) if st not in early]), 2, 6); deal(wo(range(26, LATE)) + [(w_touch(k, MI), ("t",)) for k in range(WT)] + [(o_touch(MI), ("t",))] * TOA, 6, 9); assert 28 <= LATE <= 30
    if PZ and T % 2 == 0:
        assert PZ >= 6
        for k in range(3):
            t = G_(a); e = t.skip_unless("eq", sL, 0)
            if k < 2:
                for f in hand(t, VM(t), 0, "px", " sc1")[2*k:2*k+2]: f()
            else: halo_fill(t, 0); halo_fill(t, 1)
            t.label(e); X.setdefault(PZ + k, []).append(([x.strip() for x in t.lines], ("t",)))
    def ex(h):
        for x, tag in X.get(h, []): vm.add(tag)
        return [x for x, _ in X.get(h, [])]
    a.all(kv_rd(par(0), 0, "K") + kv_rd(par(0), 0, "V"))
    for x in ex(-1): a.all(x)
    a("s_waitcnt lgkmcnt(2)"); a.all(s_mf("full", par(0), 0))
    for r in range(R):
        p = par(r); more = r + 1 < R
        if r == 1:
            if T == 0: a("s_waitcnt vmcnt(0)")
            a("s_barrier"); a.stamp("end")
        if r == 3:
            vm.wait(("kv",)); a("s_barrier"); a.stamp("Z2")
        half(a, kind(r), 0, s_mf(kind(r), p, 1), pv_mf(p ^ 1, 1), kv_rd(p ^ 1, (r + 1) * 8192, "K") if more else [], mid=ex(2 * r), early=True)
        if r in (0, 4): e = a.skip_unless("eq", sRB, r >> 2); a.all(ones("0")); a.label(e)
        half(a, kind(r), 1, s_mf(kind(r + 1), p ^ 1, 0) if more else [], pv_mf(p, 0), kv_rd(p ^ 1, (r + 1) * 8192, "V") if more else [], mid=ex(2 * r + 1), top=["s_waitcnt lgkmcnt(0)"])
    assert par(R - 1) == 0
    a("s_branch L_afin")
def finish_A(a):
    s = sT[1]; R = MI
    fin = lambda t: [f"v_rcp_f32 v{R+t}, v{LL+4*t}"] + [f"v_mul_f32 v{OO+8*t+k}, v{OO+8*t+k}, v{R+t}" for k in range(8)] + pack(OO + 8*t, OO + 8*t, 0, R + 2)
    a.all(fin(0)); a(M(SS, ONE, OO, "0")); a.all(fin(1)); a(M(SS, ONE, OO + 8, SS))
    a(f"v_max_f32 v{R}, v{LL}, v{LL+4}"); a(f"v_min_f32 v{R+1}, v{LL}, v{LL+4}")
    a(f"v_cmp_nge_f32 vcc, 0x5d800000, v{R}"); a(f"s_mov_b64 {sr(s+1,2)}, vcc"); a(f"v_cmp_nle_f32 vcc, 0x21800000, v{R+1}"); a(f"s_or_b64 {sr(s+1,2)}, vcc, {sr(s+1,2)}")
    a(f"v_mov_b32 v{R}, 0x207"); a(f"v_cmp_class_f32 vcc, v{SS}, v{R}"); a(f"s_or_b64 vcc, vcc, {sr(s+1,2)}")
    if FORCE_EXACT: a("s_mov_b64 vcc, -1")
    a("s_cbranch_vccnz L_exact")
    a.label("L_ostore")
    if PZ: a("s_waitcnt vmcnt(0)")
    a.bymode([f"buffer_store_dwordx4 {vr(OO+8*t,4)}, v{vL16}, {sr(sWS)}, s{sOA} offen offset:{t*1024}" for t in range(2)])
    t = G_(a); exact_A(t); t.all(fin(0) + fin(1)); t("s_branch L_ostore"); a.tail += t.lines
def kv_flag_addr(a, v, t):
    s = sT[1]
    a(f"s_lshr_b32 s{s}, s{sLO}, 9"); a(f"s_add_u32 s{s}, s{s}, {KF}"); a(f"v_and_b32 v{t}, 16, v{vL16}"); a(f"v_add_u32 v{t}, s{s}, v{t}")
    a(f"s_cmp_ge_u32 s{sRB}, 2"); a(f"s_cselect_b32 s{s}, s{sNB[2]}, s{sNB[1]}"); a(f"s_sub_u32 s{s}, s{s}, s{sNB[1]}")
    a(f"v_bfe_i32 v{v}, v{vLANE}, 1, 1"); a(f"v_and_b32 v{v}, s{s}, v{v}"); a(f"v_add3_u32 v{v}, v{v}, v{t}, s{sNB[1]}")
def exact_A(a):
    s = sT[1]; D, MX, BG, T_ = MI + 2, MI, 168 + 12, 168 + 13
    sN, sI, sP = sT[12], sT[13], sT[11]
    a.label("L_exact")
    a(f"s_lshl_b32 s{sN}, s{sRB}, 2"); a(f"s_add_u32 s{sN}, s{sN}, s{sT32}")
    a(f"s_mov_b32 s{sP}, 0"); a.all(ones()); a(f"v_mov_b32 v{BG}, {BIG}"); a(f"v_mov_b32 v{MX}, {BIG}"); a(f"v_mov_b32 v{MX+1}, {BIG}")
    if DIAG: srd(a, 40, pDBG, 256); a(f"v_mov_b32 v{T_}, 4"); a(f"v_mov_b32 v{D}, 1"); a("s_mov_b64 exec, 1"); a(f"buffer_atomic_add v{D}, v{T_}, {sr(40)}, 0 offen"); a("s_mov_b64 exec, -1")
    for r in range(OO, LL + 8): a(f"v_mov_b32 v{r}, 0")
    a.label("L_expass")
    a(f"s_mov_b32 s{sI}, 0"); a(f"v_mov_b32 v{D}, v{vD0}")
    a.label("L_exstep")
    a(f"s_sub_u32 s{s}, s{sT32}, s{sI}"); a(f"s_cmp_lt_i32 s{s}, 0"); a(f"s_cselect_b32 s{s+1}, s{sNB[1]}, s{sNB[0]}"); a(f"s_cmp_lt_i32 s{s}, -4"); a(f"s_cselect_b32 s{s+1}, s{sNB[2]}, s{s+1}")
    a(f"s_and_b32 s{s}, s{s}, 3"); a(f"s_lshl_b32 s{s}, s{s}, 14"); a(f"s_add_u32 s{s}, s{s}, s{s+1}"); a(f"s_add_u32 s{s}, s{s}, s{sLO}")
    for k, d in enumerate((Kr(0, 0), Kr(0, 1), Vr(0, 0), Vr(0, 1))): a(f"buffer_load_dwordx4 {vr(d,4)}, v{vL16}, {sr(sWS)}, s{s} offen offset:{k*1024} sc1")
    a("s_waitcnt vmcnt(0)")
    a.all(s_mf("full", 0, 0) + s_mf("full", 0, 1))
    for t in range(2):
        for c in range(2):
            for r in range(4):
                x = SS + 8 * t + 4 * c + r
                a(f"v_add_u32 v{T_}, {(16*t - 16*c - r) & 0xffffffff if 16*t - 16*c - r < -16 else 16*t - 16*c - r}, v{D}"); a(f"v_cmp_gt_u32 vcc, 0x100, v{T_}"); a(f"v_cndmask_b32 v{x}, v{BG}, v{x}, vcc")
    a(f"s_cmp_lg_u32 s{sP}, 0"); a("s_cbranch_scc1 L_exp2")
    for t in range(2):
        for k in range(0, 8, 2): a(f"v_max3_f32 v{MX+t}, v{MX+t}, v{SS+8*t+k}, v{SS+8*t+k+1}")
    a("s_branch L_exnext")
    a.label("L_exp2")
    for k in range(16): a(f"v_sub_f32 v{SS+k}, v{SS+k}, v{MX+(k>>3)}")
    for k in range(16): a(f"v_exp_f32 v{SS+k}, v{SS+k}")
    for k in range(8): a(f"v_cvt_pk_bf16_f32 v{PP+k}, v{SS+2*k}, v{SS+2*k+1}")
    a.all(pv_mf(0, 0) + pv_mf(0, 1))
    a.label("L_exnext")
    a(f"v_add_u32 v{D}, 32, v{D}"); a(f"s_add_u32 s{sI}, s{sI}, 1"); a(f"s_min_u32 s{s}, s{sN}, 8"); a(f"s_cmp_le_u32 s{sI}, s{s}"); a("s_cbranch_scc1 L_exstep")
    for w in (32, 16):
        for t in range(2): a(f"v_mov_b32 v{T_}, v{MX+t}"); a(f"v_permlane{w}_swap_b32 v{MX+t}, v{T_}"); a(f"v_max_f32 v{MX+t}, v{MX+t}, v{T_}")
    a(f"s_add_u32 s{sP}, s{sP}, 1"); a(f"s_cmp_lt_u32 s{sP}, 2"); a("s_cbranch_scc1 L_expass")

def tail_A(a):
    s = sT[1]; FA, FD, WA, QA = 245, 246, 253, 254
    st = lambda r, t, k: f"buffer_store_dwordx4 {vr(r,4)}, v{vL16}, {sr(sWS)}, s{s + t} offen offset:{k*1024} sc1"
    a("s_waitcnt lgkmcnt(8)")
    for t in (1, 0):
        a.all(epi_qk(1, 2*t+1, CK)); a(st(acc(2, 2*t+1), t, 1)); a.all(epi_v(2*t+1))
        a.all(epi_qk(1, 2*t, CK)); a(st(acc(2, 2*t), t, 0)); v = epi_v(2*t)
        a.all(v[:6]); a(st(vout(0, 2*t), t, 2)); a.all(v[6:]); a(st(vout(1, 2*t), t, 3))
        if t: a("s_waitcnt lgkmcnt(0)")
    a.stamp("epi")
    a(f"s_lshl_b32 s{s}, s{sT32}, 13"); a(f"s_and_b32 s{s+1}, s{sLO}, 4096"); a(f"s_add_u32 s{s}, s{s}, s{s+1}"); a(f"s_add_u32 s{s}, s{s}, {OWN - 8192}"); a(f"v_add_u32 v{WA}, s{s}, v{vL16}")
    wr = lambda t: [f"ds_write_b128 v{WA}, {vr(r,4)} offset:{t*8192 + k*1024}" for k, r in enumerate((acc(2, 2*t), acc(2, 2*t+1), vout(0, 2*t), vout(1, 2*t)))]
    p0, p1 = post_l(FA, FD)
    qa = [f"s_xor_b32 s{s+1}, s{sWID}, 2", f"s_lshl_b32 s{s+1}, s{s+1}, 11", f"s_add_u32 s{s+1}, s{s+1}, {QX}", f"v_add_u32 v{QA}, s{s+1}, v{vL16}"]
    a(f"s_cmp_ge_u32 s{sWID}, 2"); a("s_cbranch_scc1 L_tailA3")
    for T in (1, 3):
        if T == 3: a.label("L_tailA3")
        W = wr(0) + (wr(1) if T == 1 else [])
        X = q_scale() + qa + [f"s_lshl_b32 s{s}, s{sL}, 3", f"s_add_u32 s{s}, s{s}, s{sWID}", f"s_lshl_b32 s{s}, s{s}, 3", f"s_add_u32 s{s}, s{s}, {KF}", f"s_add_u32 s{s}, s{s}, s{sNB[0]}", f"v_mov_b32 v{FA}, s{s}"] + p0
        f = {}; spread(f, W, range(0, 16, 2))
        free = [g for g in range(16) if g not in f]; per = -(-len(X) // len(free))
        spread(f, [X[k:k+per] for k in range(0, len(X), per)], free)
        weave(a, g1m(0, QORD) + g1m(1, QORD), f)
        a.stamp("qmm")
        for i in range(2): a.all(epi_qk(0, i, CQ)); a(f"ds_write_b128 v{QA}, {vr(acc(0,i),4)} offset:{i*1024}")
        a.all(epi_qk(0, 2, CQ))
        if T == 3: a(f"v_subrev_u32 v{AD}, {2*8192}, v{WA}")
        a.all(epi_qk(0, 3, CQ))
        a("s_waitcnt lgkmcnt(0)"); a("s_barrier")
        a.stamp("Y")
        local_steps(a, T, 2, True, (min(T, F1AT), ["s_waitcnt vmcnt(0)"] + p1))
        a.stamp("loc")
        a.all(before_Z())
        a("s_barrier")
        a.stamp("Z")
        remote_steps(a, T)
def att_A_loader(a):
    s = sT[1]; F = 180
    a.all(ones())
    for r in range(OO, LL + 8): a(f"v_mov_b32 v{r}, 0")
    a(f"s_lshl_b32 s{s}, s{sU}, 11"); a(f"s_add_u32 s{s}, s{s}, {QX}"); a(f"v_add_u32 v{MI}, s{s}, v{vL16}")
    a(f"s_lshl_b32 s{s}, s{sT32}, 1"); a(f"s_and_b32 s{s+1}, s{sU}, 1"); a(f"s_add_u32 s{s}, s{s}, s{s+1}"); a(f"s_lshl_b32 s{s}, s{s}, 12"); a(f"s_add_u32 s{s}, s{s}, {OWN - 3*8192}"); a(f"v_add_u32 v{AD}, s{s}, v{vL16}")
    qrd = [f"ds_read_b128 {vr(Qr(t),4)}, v{MI} offset:{t*1024}" for t in range(2)]
    a(f"s_cmp_eq_u32 s{sT32}, 0"); a("s_cbranch_scc1 L_attA0")
    a("s_barrier")
    a.stamp("Y")
    a.all(qrd + kv_rd(0, 3*8192, "K") + kv_rd(0, 3*8192, "V")); a("s_waitcnt lgkmcnt(2)")
    woy = [x for st in WOY for x in wo_one(st)]
    local_steps(a, 2, 1, False, (1, woy))
    a.stamp("loc")
    a.all(before_Z()); a("s_barrier")
    a.stamp("Z")
    remote_steps(a, 2)
    a.label("L_attA0")
    if ZPRIO: a(f"s_setprio {ZPRIO}")
    kv_flag_addr(a, vKF, F)
    KP = "atomic" if APOLL else 0; ex4 = (lambda on: a(f"s_mov_b64 exec, {15 if on else -1}")) if APOLL else (lambda on: None)
    if PREP: ex4(1); a.flagload(F + 2, vKF, KP); ex4(0)
    a("s_barrier")
    a.stamp("Y")
    a.all(qrd + kv_rd(0, 3*8192, "K") + kv_rd(0, 3*8192, "V"))
    a("s_waitcnt lgkmcnt(2)")
    local_steps(a, 0, 1, False)
    a.stamp("loc")
    ex4(1); a.flagload(F, vKF, KP); ex4(0); a.all(woy)
    e = a.skip_unless("lg", sRB, 0)
    ex4(1); a(f"s_waitcnt vmcnt({len(WOY)})"); a.flagtest(F, e)
    a.poll(vKF, F, KP); a.label(e); ex4(0)
    a.stamp("epi")
    for x in fetch(F + 4, [0, 1, 2, 3]): a.all(x)
    a.all(before_Z()); a("s_waitcnt vmcnt(8)"); a("s_barrier")
    a.stamp("Z")
    remote_steps(a, 0)

def lane_mask(f): return sum(1 << l for l in range(64) if f(l & 15, l >> 4))
def tail_B(a):
    s = sT[1]; HK, HV, HA, MK, B0 = 244, 240, 253, 232, 236
    KK = lambda i: acc(2, i) if i >= 0 else HK
    a.label("L_tailB")
    a(f"s_and_b32 s{s}, s{sL}, 2")
    a("s_waitcnt lgkmcnt(8)")
    a.all(epi_qk(1, 3, CK))
    a(f"s_and_b32 s{s+1}, s{sWID}, 1"); a(f"s_add_u32 s{s}, s{s}, s{s+1}"); a(f"s_lshl_b32 s{s}, s{s}, 11"); a(f"s_add_u32 s{s}, s{s}, {HB}")
    a.all(epi_v(3))
    HO = VT[3]; a(clean(KK(3))); a(clean(HO, vout(0, 3))); a(f"v_mov_b32 v{HO+1}, v{vout(0,3)+1}"); a(f"v_mov_b32 v{HO+2}, v{vout(1,3)}"); a(f"v_mov_b32 v{HO+3}, v{vout(1,3)+1}")
    a(f"s_lshl_b32 s{s+1}, s{s+1}, 11"); a(f"s_add_u32 s{s+1}, s{s+1}, {HX}"); a(f"v_add_u32 v{HA}, s{s+1}, v{vL16}")
    up, on = a.newlabel("Lup"), a.newlabel("Lon")
    a(f"s_cmp_ge_u32 s{sWID}, 2"); a(f"s_cbranch_scc1 {up}")
    a(f"ds_write_b128 v{HA}, {vr(KK(3),4)}"); a(f"ds_write_b128 v{HA}, {vr(HO,4)} offset:1024")
    a(f"s_add_u32 s{sCNT}, s{s}, s{sNB[1]}"); a(f"s_cmp_eq_u32 s{sRB}, 0"); a(f"s_cselect_b32 s{s+2}, {BIG}, 0")
    a(f"s_branch {on}")
    a.label(up); a(f"s_add_u32 s{s}, s{s}, s{sNB[0]}")
    a(f"buffer_store_dwordx4 {vr(KK(3),4)}, v{vL16}, {sr(sWS)}, s{s} offen sc1"); a(f"buffer_store_dwordx4 {vr(HO,4)}, v{vL16}, {sr(sWS)}, s{s} offen offset:1024 sc1")
    a(f"s_mov_b32 s{s+2}, 0")
    a.label(on)
    a.all(epi_v(2) + epi_qk(1, 2, CK)); a("s_waitcnt lgkmcnt(0)")
    for i in (1, 0): a.all(epi_qk(1, i, CK) + epi_v(i))
    a.stamp("epi")
    X = q_scale() + [f"v_mov_b32 v{B0+k}, s{s+2}" for k in range(4)]
    X += [f"v_mov_b32 v{MK+2}, 0xffff", f"v_mov_b32 v{MK+3}, 0xffff0000", f"v_cndmask_b32 v{MK+3}, v{MK+2}, v{MK+3}, {sr(mB0,2)}", f"v_cndmask_b32 v{MK}, 0, v{MK+3}, {sr(mP0,2)}", f"v_cndmask_b32 v{MK+1}, 0, v{MK+3}, {sr(mP1,2)}",
          f"v_xor_b32 v{MK+2}, v{MK}, v{MK+3}", f"v_xor_b32 v{MK+3}, v{MK+1}, v{MK+3}"]
    X += [f"s_sub_u32 s{s+1}, s{sOA}, 65536"]
    f = {}; spread(f, [X[k:k+2] for k in range(0, len(X), 2)], range(0, 15)); f.setdefault(14, []).append("s_barrier")
    weave(a, g1m(0, QORD) + g1m(1, QORD), f)
    a.stamp("qmm")
    hl = [f"buffer_load_dwordx4 {vr(HK,4)}, v{vL16}, {sr(sWS)}, s{sCNT} offen sc1", f"buffer_load_dwordx4 {vr(HV,4)}, v{vL16}, {sr(sWS)}, s{sCNT} offen offset:1024 sc1"]
    def halo():
        up, on = a.newlabel("Lup"), a.newlabel("Lon")
        a(f"s_cmp_ge_u32 s{sWID}, 2"); a(f"s_cbranch_scc1 {up}"); a.all(hl); a(f"s_branch {on}")
        a.label(up); a(f"ds_read_b128 {vr(HK,4)}, v{HA}"); a(f"ds_read_b128 {vr(HV,4)}, v{HA} offset:1024"); a.label(on)
    for k, i in enumerate((3, 2, 1, 0)):
        if k == HALOAT: halo()
        a.all(epi_qk(0, i, CQ))
    if HALOAT >= 4: halo()
    a.stamp("Y")
    R = lambda i: 120 + 16 * i
    def scores(i): return [M(R(i), KK(i), acc(0, i), "0"), M(R(i) + 4, KK(i - 1), acc(0, i), B0 if i == 0 else "0")]
    def soft(i):
        r = R(i); x, y, m, t = r + 8, r + 9, r + 10, r + 11
        L = [f"v_cndmask_b32 v{r+2*k}, v{r+2*k}, v{r+2*k+1}, {sr(mB0,2)}" for k in range(4)]
        L += [f"v_cndmask_b32 v{x}, v{r}, v{r+4}, {sr(mP0,2)}", f"v_cndmask_b32 v{y}, v{r+2}, v{r+6}, {sr(mP1,2)}", f"v_max_f32 v{m}, v{x}, v{y}"]
        for w in (32, 16): L += [f"v_mov_b32 v{t}, v{m}", f"v_permlane{w}_swap_b32 v{m}, v{t}", f"v_max_f32 v{m}, v{m}, v{t}"]
        L += [f"v_sub_f32 v{x}, v{x}, v{m}", f"v_sub_f32 v{y}, v{y}, v{m}", f"v_exp_f32 v{x}, v{x}", f"v_exp_f32 v{y}, v{y}", f"v_cvt_pk_bf16_f32 v{x}, v{x}, v{x}", f"v_cvt_pk_bf16_f32 v{y}, v{y}, v{y}"]
        L += [f"v_and_b32 v{r+k}, v{MK+k}, v{(x, y)[k & 1]}" for k in range(4)]
        return L
    def prods(i): r = R(i); return [M(r + 4, ONE, r, "0")] + [M(r + 8 + 4 * b, vout(b, i - 1), r, "0") for b in range(2)]
    def fin(i):
        r = R(i)
        return [f"v_rcp_f32 v{r+4}, v{r+4}"] + [f"v_mul_f32 v{r+8+k}, v{r+8+k}, v{r+4}" for k in range(8)] + pack(r, r + 8, 1)
    ost = lambda i: f"buffer_store_dwordx4 {vr(R(i),4)}, v{vL16}, {sr(sWS)}, s{sOA if i >> 1 else s+1} offen offset:{(i & 1)*1024}"
    a.all(scores(3) + scores(2) + scores(1))
    a.all(rr(soft(3), soft(2), soft(1)))
    a.all(prods(3) + prods(2) + prods(1))
    a.all(rr(fin(3), fin(2), fin(1)))
    a.bymode([ost(3), ost(2), ost(1)])
    a.stamp("loc")
    ck, ok, rt = a.newlabel("Lhck"), a.newlabel("Lhok"), a.newlabel("Lhrt")
    a(f"s_mov_b32 s{sT[0]}, 0"); a("s_waitcnt vmcnt(3) lgkmcnt(0)")
    a.label(ck); a.all(poison_test(R(0), [HK, HV])); a(f"s_cbranch_vccnz {rt}"); a.label(ok)
    a.tail += [rt + ":", f"s_add_u32 s{sT[0]}, s{sT[0]}, 1", f"s_cmp_ge_u32 s{sT[0]}, {SPIN}", f"s_cbranch_scc1 {ok}"] + hl + ["s_waitcnt vmcnt(0)", f"s_branch {ck}"]
    a.stamp("Z")
    a.all(scores(0))
    for k in range(4): a(f"v_mov_b32 v{vout(k >> 1, -1) + (k & 1)}, v{HV+k}")
    a.all(soft(0) + prods(0) + fin(0))
    a.bymode([ost(0)])

A0, WF2, OFR, GA, vOB, vCK, vXW, vTG = 24, 56, 104, 206, 214, 216, 240, 241
def gemm2(a):
    s = sT[1]; assert OFR + 16 * NG <= 200
    ofr = lambda g, k: OFR + 16 * (g % NG) + 4 * k
    ld = lambda g, k, so=sGO: f"buffer_load_dwordx4 {vr(ofr(g,k),4)}, v{vOB}, {sr(sWS)}, s{so} offen offset:{k*1024} sc1"
    adv = [f"s_add_u32 s{sGO}, s{sGO}, 4096", f"s_and_b32 s{sGO}, s{sGO}, 0xffff"]
    rd = lambda i: [f"ds_read_b64_tr_b16 {vr(WF2+16*(i%3)+4*cb+2*e,2)}, v{GA + 4*(i >> 4) + cb} offset:{(i & 15)*4096 + e*2048}" for cb in range(4) for e in range(2)]
    def check(g):
        ck, ok = a.newlabel("Lock"), a.newlabel("Look")
        T = tag_test(vCK, [ofr(g, k) for k in range(4)], f"s{sL}")
        a.tail += [ck + ":", f"s_mov_b32 s{sT[0]}, 0", f"s_add_u32 s{s}, s{sJ}, {g}", f"s_and_b32 s{s}, s{s}, 15", f"s_lshl_b32 s{s}, s{s}, 12", ck + "a:"] + [ld(g, k, s) for k in range(4)]
        if DIAG: a.tail += [f"v_add_u32 v7, {1 << (16 * (g > 3))}, v7"]
        a.tail += ["s_waitcnt vmcnt(0)"] + T + [f"s_cbranch_vccz {ok}", f"s_add_u32 s{sT[0]}, s{sT[0]}, 1", f"s_cmp_lt_u32 s{sT[0]}, {SPIN}", f"s_cbranch_scc1 {ck}a", f"s_branch {ok}"]
        return T, [f"s_cbranch_vccnz {ck}", ok + ":"]
    a(f"s_and_b32 s{s}, s{sTILE}, 0xffff0000"); a(f"s_add_u32 s{s}, s{s}, {OB}")
    a(f"v_add_u32 v{vOB}, s{s}, v{vL16}"); a(f"s_and_b32 s{sGO}, s{sTILE}, 0xffff")
    for g in range(G2PRE):
        if g: a.all(adv)
        for k in range(4): a(ld(g, k))
        if g == 0:
            a(f"v_lshrrev_b32 v{GA+1}, 5, v{vLANE}"); a(f"v_lshl_add_u32 v{GA}, v{GA+1}, 10, v{vTR}")
            for cb in range(1, 4): a(f"v_xor_b32 v{GA+cb}, {32*cb}, v{GA}")
            a.all(rd(0))
        if g == 1: a.all(rd(1))
    for p in range(16): a(f"v_lshlrev_b32 v{A0+2*p}, 16, v{XRES+p}"); a(f"v_and_b32 v{A0+2*p+1}, 0xffff0000, v{XRES+p}")
    for cb in range(4): a(f"v_add_u32 v{GA+4+cb}, 65536, v{GA+cb}")
    a.all(ones()); c_setup(a, False)
    a(f"s_lshl_b32 s{s}, s{sWID}, 12"); a(f"s_add_u32 s{s}, s{s}, {XB[0]}"); a(f"v_add_u32 v{vXW}, s{s}, v{vL16}")
    a(f"s_waitcnt vmcnt({4*(G2PRE-1)})"); T, B = check(0); a.all(T + ["s_waitcnt lgkmcnt(8)"] + B)
    a.stamp("R")
    nxt = G2PRE; assert 2 <= G2PRE < NG
    for g in range(16):
        mf = []; f = {}
        for h in range(2):
            i = 2 * g + h
            mf += [M(A0 + 16 * t + 4 * cb, WF2 + 16 * (i % 3) + 4 * cb, ofr(g, 2 * h + t), A0 + 16 * t + 4 * cb) for cb in range(4) for t in ((0, 1) if cb % 2 == 0 else (1, 0))]
            if i + 2 < 32: spread(f, rd(i + 2), range(8 * h, 8 * h + 8))
            if i + 1 < 32: f.setdefault(8 * h + 7, []).append(f"s_waitcnt lgkmcnt({8 if i + 2 < 32 else 0})")
            if i in (S0AT, S2AT): f.setdefault(14 if h else 5, []).append("s_barrier")
        if nxt < 16 and nxt + 1 < min(16, g + NG) and g % G2RAMP == 0:
            spread(f, [adv + [ld(nxt, 0)], ld(nxt, 1), ld(nxt, 2), ld(nxt, 3), adv, ld(nxt + 1, 0), ld(nxt + 1, 1), ld(nxt + 1, 2), ld(nxt + 1, 3)], range(9)); nxt += 2
        elif nxt < 16: spread(f, adv + [ld(nxt, k) for k in range(4)], (0, 1, 2, 4, 6, 8)); nxt += 1
        if g < 15:
            T, B = check(g + 1)
            spread(f, [f"s_waitcnt vmcnt({4 * (nxt - g - 2)})"] + T + [B], (9, 10, 11, 12, 13, 15))
        if a.stamps and TRACE == 2:
            f.setdefault(3, []).extend(([f"s_lshl_b32 m0, s{sL}, 4", f"s_add_u32 m0, m0, {g-1}", "v_writelane_b32 v5, s100, m0"] if g else []) + ["s_memrealtime s[100:101]" if RT else "s_memtime s[100:101]"])
        weave(a, mf, f)
    assert 6 <= S0AT <= 9 and 20 <= S2AT <= 25
    a.stamp("g2end")
    if LAST % 2 == 0: a(f"s_cmp_eq_u32 s{sL}, {LAST}"); a("s_cbranch_scc1 L_final")
    a(f"s_bitcmp1_b32 s{sL}, 0"); a("s_cbranch_scc1 L_xodd")
    for ph in range(2):
        if ph: a.label("L_xodd"); a(f"s_cmp_eq_u32 s{sL}, {LAST}"); a("s_cbranch_scc1 L_final")
        L = []
        for fr in (0, 2, 1, 3):
            L += pack(XRES + 4 * fr, A0 + 8 * fr, ph, None if ph else vTG)
            L += [f"buffer_store_dwordx4 {vr(XRES+4*fr,4)}, v{vL16}, {sr(sIO)}, s{sTILE} offen offset:{fr*1024}", f"ds_write_b128 v{vXW}, {vr(XRES+4*fr,4)} offset:{fr*1024}"]
        a.bymode(L)
        for fr in (0, 2, 1, 3): a(f"v_cvt_pk_bf16_f32 v{XRES+4*fr}, v{A0+8*fr}, v{A0+8*fr+1}")
        a.all(stat_mfma()); a(f"s_add_u32 s{sL}, s{sL}, 1"); a("s_waitcnt lgkmcnt(0)"); a("s_branch L_cgo")

def gen(stamps=False):
    a = G(stamps)
    s = sT[1]
    a("s_cmp_ge_u32 s2, 256"); a("s_cbranch_scc1 L_end")
    if stamps: a(f"s_memtime s[{sT0}:{sT0+1}]"); a("s_memrealtime s[80:81]"); a("s_mov_b32 s70, 63"); a("s_mov_b32 s82, 0")
    a("s_load_dwordx16 s[48:63], s[0:1], 0"); a("s_load_dwordx2 s[64:65], s[0:1], 64")
    a("v_lshrrev_b32 v1, 6, v0"); a(f"v_readfirstlane_b32 s{sWID}, v1")
    a(f"v_and_b32 v{vLANE}, 63, v0"); a(f"v_lshlrev_b32 v{vL16}, 4, v{vLANE}")
    if CODEPF:
        l1 = a.skip_unless("eq", sWID, 3)
        a("s_getpc_b64 s[40:41]")
        a.label("L_pc")
        a(f"s_lshr_b32 s{s}, s2, 3"); a(f"s_mul_i32 s{s}, s{s}, {CODEPF * 128}"); a(f"v_lshlrev_b32 v28, 7, v{vLANE}"); a(f"v_add_u32 v28, s{s}, v28")
        a(f"s_mov_b32 s{s}, L_end - L_pc"); a(f"v_min_u32 v28, s{s}, v28")
        a("v_mov_b32 v29, s41"); a("v_add_co_u32 v28, vcc, s40, v28"); a("v_addc_co_u32 v29, vcc, 0, v29, vcc")
        a(f"s_mov_b64 exec, {(1 << CODEPF) - 1}"); a(f"global_load_dword v{vDUM}, v[28:29], off"); a("s_mov_b64 exec, -1")
        a.label(l1)
    a(f"s_and_b32 s{s}, s2, 7"); a(f"s_lshr_b32 s{s+1}, s2, 3"); a(f"s_lshl_b32 s{sRB}, s{s}, 1"); a(f"s_and_b32 s{s}, s{s+1}, 1"); a(f"s_add_u32 s{sRB}, s{sRB}, s{s}")
    a(f"s_lshr_b32 s{sJ}, s{s+1}, 1"); a(f"s_and_b32 s{sU}, s{sWID}, 3")
    a(f"v_lshrrev_b32 v16, 4, v{vLANE}"); a("v_lshlrev_b32 v16, 1, v16"); a(f"v_and_b32 v17, 7, v{vLANE}"); a("v_xor_b32 v16, v16, v17"); a(f"v_lshlrev_b32 v{vCH}, 4, v16")
    def common():
        srd(a, sWS, pWS, WS_SIZE); a(f"v_mov_b32 v28, {NONCE}")
        a(f"buffer_load_dwordx2 v[26:27], v28, {sr(sWS)}, 0 offen sc1")
        srd(a, sWO, pWOA, 2097152)
        a(f"s_mov_b32 s{sL}, 0"); a(f"s_mov_b32 s{sFAST}, 0"); a(f"v_mov_b32 v{vSTAMP}, 0"); (a.stamps and a("v_mov_b32 v7, 0"))
        a(f"v_bfe_u32 v28, v{vLANE}, 2, 3"); a(f"v_bfe_u32 v29, v{vLANE}, 3, 2"); a(f"v_and_b32 v30, 3, v{vLANE}")
        a("v_lshlrev_b32 v28, 7, v28"); a("v_lshlrev_b32 v29, 5, v29"); a("v_lshlrev_b32 v30, 3, v30"); a(f"v_add3_u32 v{vTR}, v28, v29, v30")
        a(f"v_and_b32 v28, 15, v{vLANE}"); a(f"v_lshrrev_b32 v29, 4, v{vLANE}"); a("v_lshlrev_b32 v29, 2, v29"); a(f"v_sub_u32 v{vD0}, v28, v29")
        a(f"s_lshl_b32 s{sWP}, s{sU}, 10"); a(f"s_lshl_b32 s{sWR}, s{sJ}, 17"); a(f"s_lshl_b32 s{s}, s{sU}, 14"); a(f"s_lshl_b32 s{s+1}, s{sJ}, 7"); (FJ == 15 or a(f"s_and_b32 s{s+1}, s{s+1}, {FJ << 7}")); a(f"s_add_u32 s{s}, s{s}, s{s+1}")
        a(f"v_lshrrev_b32 v{vWO}, 3, v{vLANE}"); a(f"v_lshlrev_b32 v{vWO}, 11, v{vWO}"); a(f"v_add3_u32 v{vWO}, v{vWO}, v{vCH}, s{s}")
        a(f"s_lshl_b32 s{s}, s{sRB}, 18"); a(f"s_lshl_b32 s{s+1}, s{sJ}, 12"); a(f"s_add_u32 s{s}, s{s}, s{s+1}"); a(f"s_lshl_b32 s{s+1}, s{sU}, 16"); a(f"s_add_u32 s{sTILE}, s{s}, s{s+1}")
        a(f"s_lshl_b32 s{s+1}, s{sT32}, 16"); a(f"s_add_u32 s{s}, s{s}, s{s+1}"); a(f"s_and_b32 s{s+1}, s{sU}, 1"); a(f"s_lshl_b32 s{s+2}, s{s+1}, 11"); a(f"s_add_u32 s{s}, s{s}, s{s+2}"); a(f"s_add_u32 s{sOA}, s{s}, {OB}")
        a(f"s_lshl_b32 s{sLO}, s{s+1}, 12"); a(f"s_sub_u32 s{s+2}, 0, s{pWS}"); a(f"s_and_b32 s{s+2}, s{s+2}, 0x3ff00"); a(f"s_add_u32 s{s+2}, s{s+2}, {KV}")
        for b in range(3):
            d = sNB[b]
            a(f"s_sub_u32 s{s}, s{sRB}, {b}"); a(f"s_lshl_b32 s{d}, s{s}, 4"); a(f"s_add_u32 s{d}, s{d}, s{sJ}"); a(f"s_lshl_b32 s{d}, s{d}, 18"); a(f"s_add_u32 s{d}, s{d}, s{s+2}")
            if POL < 2:
                a(f"s_lshr_b32 s{s}, s{s}, 1"); a(f"s_getreg_b32 s{s+1}, hwreg(HW_REG_XCC_ID, 0, 4)"); a(f"s_add_u32 s{s}, s{s}, s{s+1}"); a(f"s_sub_u32 s{s}, s{s}, s2"); a(f"s_lshr_b32 s{s}, s{s}, 2")
                a(f"s_add_u32 s{s+1}, s{d}, s{pWS}"); a(f"s_lshr_b32 s{s+1}, s{s+1}, 21"); a(f"s_xor_b32 s{s}, s{s}, s{s+1}"); a(f"s_xor_b32 s{s}, s{s}, {POL}")
            elif POL == 2: a(f"s_mov_b32 s{s}, s{sJ}")
            if POL < 3: a(f"s_and_b32 s{s}, s{s}, 1"); a(f"s_lshl_b32 s{s}, s{s}, 13"); a(f"s_add_u32 s{d}, s{d}, s{s}")
            if b: a(f"s_cmp_lt_u32 s{sRB}, {b}"); a(f"s_cselect_b32 s{d}, {OOB}, s{d}")
        for r in range(4): a(f"v_mov_b32 v{vPO+r}, -1")
        a.all(masks_A())
    def nonce():
        a(f"v_readfirstlane_b32 s{sN0}, v26"); a(f"v_readfirstlane_b32 s{sN1}, v27")
        a(f"s_add_u32 s{sN0}, s{sN0}, 1"); a(f"s_add_u32 s{sN1}, s{sN1}, 32"); a(f"s_and_b32 s{sN1}, s{sN1}, 0xffffffe0")
        a(f"s_getreg_b32 s{s}, hwreg(HW_REG_XCC_ID, 0, 4)"); a(f"s_or_b32 s{sN1}, s{sN1}, s{s}")
    a(f"s_cmp_lt_u32 s{sWID}, 4"); a("s_cbranch_scc1 L_cstart")
    a(f"s_lshl_b32 s{sMX}, s{sU}, 12"); a(f"s_mul_i32 s{sMW}, s{sU}, 6144")
    setup_w(a, True); setup_x(a, 0)
    a("s_waitcnt lgkmcnt(0)"); xsrd(a, sXS, 0); srd(a, sW, pWA, 6291456); a(f"s_andn2_b32 s{sGO}, s{sRB}, {RG}"); a(f"s_and_b32 s{sH}, s{sRB}, {RG}")
    vm = VM(a)
    if HOT: hot_setup(a, 0, 28); hot_issue(a, 0, HOT0[0], HOT0[1], 28)
    kstage(a, 0, 0); dma_w(a, WB[0]); dma_x(a, 0, 0)
    a(f"s_andn2_b32 s{sT32}, 2, s{sU}")
    common(); vm.add(("n",)); xsrd(a, sIO, 1)
    a(f"s_lshr_b32 s{s}, s{sTILE}, 16"); a(f"s_lshl_b32 s{s}, s{s}, 7"); a(f"s_add_u32 s{s}, s{s}, {SFL}"); a(f"v_and_b32 v28, 15, v{vLANE}"); a(f"v_lshl_add_u32 v{vSF}, v28, 3, s{s}")
    a(f"s_add_u32 s{s}, s{sMX}, {XB[0]}"); a(f"v_add_u32 v{vXV}, s{s}, v{vL16}")
    a(f"s_lshl_b32 s{s}, s{sU}, 7"); a(f"s_add_u32 s{s}, s{s}, {TAB}"); a(f"v_lshrrev_b32 v29, 5, v{vLANE}"); a("v_lshl_add_u32 v29, v29, 4, v28"); a(f"v_lshl_add_u32 v{vTW}, v29, 2, s{s}")
    a(f"s_min_u32 s{s}, s{sU}, 2"); a(f"s_lshl_b32 s{s}, s{s}, 8"); a(f"s_add_u32 s{s}, s{s}, {TAB+1024}"); a(f"v_lshrrev_b32 v29, 4, v{vLANE}"); a("v_lshl_add_u32 v29, v28, 2, v29"); a(f"v_lshl_add_u32 v{vCW}, v29, 2, s{s}")
    first = [lambda: (kstage(a, 0, 1), dma_x(a, 0, 1), vm.add(("x", 1), 4)), lambda: (dma_w(a, WB[1]), vm.add(("w", 1), 6)), lambda: (kstage(a, 0, 2), dma_w(a, WB[2]), vm.add(("w", 2), 6))]
    if ST0 & 4: first[0], first[1] = lambda: (kstage(a, 0, 1), dma_w(a, WB[1]), vm.add(("w", 1), 6)), lambda: (dma_x(a, 0, 1), vm.add(("x", 1), 4))
    for f in first[:ST0 & 3]: f()
    a.stamp("l_a"); vm.wait(("n",)); nonce(); a.stamp("l_b")
    a("s_barrier")
    for f in first[ST0 & 3:]: f()
    for l in range(LAST + 1):
        loader(a, l, vm)
        if l % 2 == 0:
            a("s_branch L_attL"); a.label(f"L_between{l}"); vm.q = []
        else:
            vm.wait(("wo", 11)); vm.wait(("p",)); a("s_barrier")
        between(a, l, vm)
    assert LAST >= 1; a(f"s_or_b32 s{s}, s2, s{sU}"); a(f"s_cmp_lg_u32 s{s}, 0"); a("s_cbranch_scc1 L_out")
    a(f"v_mov_b32 v22, {NONCE}"); p0, p1 = post_l(22, 24); a.all(p0 + p1)
    a("s_branch L_out")
    a.label("L_attL")
    att_A_loader(a)
    a.label("L_cstart")
    io_addr(a, 24)
    if POL == 3:
        a(f"s_lshl_b32 s47, s{sRB}, 4"); a(f"s_add_u32 s47, s47, s{sJ}"); a("s_lshl_b32 s47, s47, 11"); a(f"s_add_u32 s47, s47, s{sWID}"); a("s_lshl_b32 s47, s47, 7"); a(f"s_add_u32 s47, s47, {KV + KF + 1024}")
        a(f"v_lshrrev_b32 v32, 3, v{vLANE}"); a("v_mul_u32_u24 v32, 8064, v32"); a(f"v_add_u32 v32, v32, v{vL16}")
        for r in range(28, 32): a(f"v_mov_b32 v{r}, 0")
    a("s_waitcnt lgkmcnt(0)")
    if POL == 3:
        srd(a, sWS, pWS, WS_SIZE); a(f"s_sub_u32 s{s}, 0, s{pWS}"); a(f"s_and_b32 s{s}, s{s}, 0x3ff00"); a(f"s_add_u32 s47, s47, s{s}")
        a("s_mov_b64 exec, 0xffff"); a(f"buffer_store_dwordx4 v[28:31], v32, {sr(sWS)}, s47 offen sc1"); a("s_mov_b64 exec, -1")
    srd(a, sIO, pX, 4194304)
    for f in range(4): a(f"buffer_load_dwordx4 {vr(XRES+4*f,4)}, v{24 + (f >> 1)}, {sr(sIO)}, 0 offen offset:{(f & 1)*64}")
    a(f"s_or_b32 s{sT32}, s{sU}, 1")
    common(); srd(a, sW, pWA, 6291456)
    for d, val in ((mB0, lane_mask(lambda i, g: i & 1)), (mB1, lane_mask(lambda i, g: i & 2)), (mP0, lane_mask(lambda i, g: 4*g + (i & 1) > i)), (mP1, lane_mask(lambda i, g: 4*g + 2 + (i & 1) > i))):
        a(f"s_mov_b32 s{d}, {val & 0xffffffff}"); a(f"s_mov_b32 s{d+1}, {val >> 32}")
    c_setup(a, True); a.all(ones())
    if POL == 3:
        a(f"s_add_u32 s0, s{pWS}, s47"); a(f"s_addc_u32 s1, s{pWS+1}, 0"); a(f"s_and_b32 s35, s{sWID}, {PORD}"); a("s_lshl_b32 s36, s35, 13")
        a(f"s_lshl_b32 s37, s{sWID}, 2"); a("s_lshl_b32 s35, s35, 4"); a("s_add_u32 s37, s37, s35"); a(f"s_add_u32 s37, s37, {TAB + 1824}"); a("v_mov_b32 v29, s37"); a("v_xor_b32 v31, 16, v29")
        a(f"s_waitcnt vmcnt({PVM})"); a("s_memtime s[28:29]"); a("s_waitcnt lgkmcnt(0)")
        for k in range(2 * PN):
            a(f"s_load_dword s26, s[0:1], s36 offset:{64 * (k >> 1)}"); a("s_waitcnt lgkmcnt(0)"); a("s_memtime s[30:31]"); a("s_xor_b32 s36, s36, 8192"); a("s_waitcnt lgkmcnt(0)")
            a("s_sub_u32 s29, s30, s28"); a("s_mov_b32 s28, s30"); a(f"s_min_u32 s{38 + (k & 1)}, s29, s{38 + (k & 1) if k > 1 else 29}")
        a("v_mov_b32 v28, s38"); a("v_mov_b32 v30, s39"); a("ds_write_b32 v29, v28"); a("ds_write_b32 v31, v30")
    a.stamp("l_c"); a("s_waitcnt vmcnt(0) lgkmcnt(0)"); a.stamp("l_b")
    nonce(); a.all(stat_mfma()); xsrd(a, sIO, 1)
    for f in range(4): a.all(col_swaps(f, (16, 32)))
    a.label("L_cgo")
    consumer(a)
    tail_A(a)
    a.label("L_afin")
    a.all(pv_mf(0, 1))
    a.stamp("fin")
    finish_A(a)
    if ZPRIO: a("s_setprio 0")
    a(f"s_add_u32 s{sLO}, s{sLO}, 65536")
    if not PZ: a("s_waitcnt vmcnt(2)")
    a("s_barrier")
    a.stamp("P")
    a(f"s_cmp_lt_u32 s{sWID}, 4"); a("s_cbranch_scc1 L_g2")
    a(f"s_cmp_eq_u32 s{sL}, 0"); a("s_cbranch_scc1 L_between0"); a(f"s_branch L_between{2 if LAST >= 2 else 0}")
    tail_B(a)
    a.stamp("P")
    a.label("L_g2")
    gemm2(a)
    a.label("L_final")
    io_addr(a, 160)
    for f in (0, 2, 1, 3):
        for p in range(4 * f, 4 * f + 4): a(f"v_cvt_pk_bf16_f32 v{XRES+p}, v{A0+2*p}, v{A0+2*p+1}")
    for f in (0, 2, 1, 3): a.all(col_swaps(f, (32,)))
    for f in (0, 1, 2, 3):
        a.all(col_swaps(f, (16,))); a(f"buffer_store_dwordx4 {vr(XRES+4*f,4)}, v{160 + (f >> 1)}, {sr(sIO)}, 0 offen offset:{(f & 1)*64}")
    a.label("L_out")
    a.stamp("end")
    if stamps:
        a("s_waitcnt lgkmcnt(0)"); a("s_mov_b32 m0, s70"); a(f"v_writelane_b32 v{vSTAMP}, s82, m0")
        a("s_memrealtime s[82:83]"); a("s_waitcnt lgkmcnt(0)"); a("v_writelane_b32 v7, s80, 0"); a("v_writelane_b32 v7, s82, 1"); a(f"v_writelane_b32 v7, s{80 if RT else sT0}, 2"); a(f"v_writelane_b32 v7, s{sNB[0]}, 3"); a(f"v_writelane_b32 v7, s{sN1}, 4")
        a(f"s_lshl_b32 s{s}, s2, 11"); a(f"s_lshl_b32 s{s+1}, s{sWID}, 8"); a(f"s_add_u32 s{s}, s{s}, s{s+1}"); a(f"s_add_u32 s{s}, s{s}, {STAMP}")
        a(f"v_lshlrev_b32 v16, 2, v{vLANE}"); a(f"buffer_store_dword v{vSTAMP}, v16, {sr(sWS)}, s{s} offen")
        a(f"s_add_u32 s{s}, s{s}, {1 << 20}"); a(f"buffer_store_dword v7, v16, {sr(sWS)}, s{s} offen")
        if TRACE: a(f"s_add_u32 s{s}, s{s}, {1 << 19}"); a(f"buffer_store_dword v5, v16, {sr(sWS)}, s{s} offen")
    a("s_endpgm")
    a.all(x.strip() for x in a.tail)
    a.label("L_end")
    a("s_endpgm")
    body, n = hazard.fix(a.text())
    hdr = open(HERE + "/header3.txt").read().rstrip("\n").split("\n")
    hdr.append("; @launch grid=(256,1,1) block=(512,1,1) lds=163840")
    return kernel_file(hdr, [(KNAME, body, 256, 102 if stamps else 100, 256)]), n

if __name__ == "__main__":
    for x in sys.argv[2:]:
        if "=" in x: k, v = x.split("=", 1); assert k in globals(), k; globals()[k] = eval(v)
    txt, n = gen("stamps" in sys.argv)
    open(sys.argv[1], "w").write(txt)
    print("lines", txt.count("\n"), "nops inserted", n)
```

```python
import sys, os, struct, math
HERE = os.path.dirname(os.path.abspath(__file__)); sys.path.insert(0, HERE + "/../tools")
from asmlib import *
import hazard

KB, MB = 1 << 10, 1 << 20
ST, CSP, SFL, CSFL, NONCE = 0, 256 * KB, 768 * KB, 800 * KB, 824 * KB
OB, KV, STAMP, WS_SIZE = 2 * MB, 80 * MB, 70 * MB, 160 * MB
HB, KF = 128 * KB, 144 * KB
XB = [48 * KB, 64 * KB, 80 * KB]; WB = [136 * KB, 0, 24 * KB]
TAB, HX, SX = 128 * KB, 130 * KB, 134 * KB
QX, OWN, REM = 48 * KB, 64 * KB, 96 * KB
BIG = 0xF149F2CA
QSCALE = struct.unpack("<I", struct.pack("<f", 32 ** -0.5 * math.log2(math.e)))[0]
WSTEP = 64 * 6144
SPIN = 1 << 18
OOB = 0x40000000
RT = 0; SKIP = []; FORCE_EXACT = 0; FORCE_SLOW = 0; DIAG = 0; POL = 3; PN = 2; PORD = 1; PVM = 5; DZ = {}; CAP = {**{(0, n): 6 for n in range(1, 7)}, **{(1, n): 7 for n in range(5, 10)}}; NOI = 0; FJ = 15; TRACE = 0
NG = 5; S0AT = 9; S2AT = 20; HOT = 1; HOTD = 4; HOT0 = (0, 5); WOHOT = 14; CODEPF = 15; NF0 = 10; NF1 = 5; NP1 = 2; OI = [3, 4, 5, 6]; OID = 2; NL0 = [11, 11, 12, 12, 14, 14]; NL1 = [8, 9, 10, 11, 13, 14]; NCF0 = 9; NCF1 = 10; APOLL = 1; PZ = 6; ST0 = 5; BAR0 = 6; PREP = 1; HALOAT = 0
WARM = []; SWARM = [(0, 6, 'woa', 0, 8), (0, 7, 'woa', 8, 8), (0, 8, 'woa', 16, 8), (0, 9, 'woa', 24, 8), (1, 8, 'wob', 0, 8), (1, 9, 'wob', 8, 8), (1, 10, 'wob', 16, 8), (1, 11, 'wob', 24, 8)]; TRICKLE = 0; HPAT = 99
WOA = [range(0, 6), range(6, 12), []]; WOB = [[*range(0, 6), *range(16, 20)], [*range(6, 12), *range(20, 24)], range(12, 16)]
HANDA = []; HANDB = []; PXF = ' sc1'
G2PRE = 2; G2RAMP = 2; TO3 = 0; TOA = 0; LPRIO = 0; SUM0 = 0; RD2 = 1; VG = [1, 5, 6]; LATE = 30; F1AT = 1; ZPRIO = 1; RG = 1; RG1 = 1; ROTL = [1]; F2A = 4; WT = 0; WOT = 99; OP0 = 1; WOY = [22, 23, 14, 15]
WSCH = [[['h', 0], [], [1, 2]], [[], ['h', 0], [1, 2]], [['h', 0], [], [1, 2]]]; WP = [None, None, None]; ATAT = [0, 2, 4, 7, 11]; LAST = 3

sW, sWO, sWS, sIO, sXS = 4, 8, 12, 16, 88
sWID, sRB, sJ, sL, sFAST, sN0, sN1 = 3, 20, 21, 22, 23, 24, 25
sT = list(range(26, 48))
pX, pWA, pWOA, pWB, pWOB, pOUT, pDBG, pWS = 48, 50, 52, 56, 58, 60, 62, 64
sT0 = 66
sTILE, sOA, sKVS, sCNT, sU, sXO, sWOF, sMX, sMW = 71, 72, 73, 74, 75, 76, 77, 78, 79
sT32, sWP, sWR = 84, 85, 86
sNB, sLO = [sKVS, 87, 34], 33
sH, sGO = 54, 55
mB0, mB1, mP0, mP1 = 92, 94, 96, 98
vL16, vLANE, vTR, vWO, vD0, vSTAMP = 0, 1, 2, 3, 4, 6
XRES = 8
vDUM = 255

def vr(r, n): return f"v[{r}:{r+n-1}]"
def sr(r, n=4): return f"s[{r}:{r+n-1}]"
def M(d, A, B, C): return f"v_mfma_f32_16x16x32_bf16 {vr(d,4)}, {vr(A,4)}, {vr(B,4)}, {C if isinstance(C,str) else vr(C,4)}"
STAMPS = ["g1start", "g1kv", "epi", "qmm", "Y", "loc", "Z", "Z2", "fin", "P", "R", "g2end", "l_a", "l_b", "l_c", "end"]

class G(Asm):
    def __init__(self, stamps):
        super().__init__(); self.stamps = stamps; self.tail = []
    def all(self, L):
        for x in L: self(x)
    def stamp_l(self, name):
        if not self.stamps or SKIP == 'all' or name in SKIP: return []
        return ["s_mov_b32 s69, m0", "s_mov_b32 m0, s70", f"v_writelane_b32 v{vSTAMP}, s82, m0", "s_memrealtime s[82:83]" if RT else "s_memtime s[82:83]",
                f"s_mul_i32 s70, s{sL}, 16", "s_mov_b32 m0, s69"] + [f"s_bitset1_b32 s70, {b}" for b in range(4) if STAMPS.index(name) >> b & 1]
    def stamp(self, name): self.all(self.stamp_l(name))
    def skip_unless(self, cond, sreg, imm):
        l = self.newlabel("Lw")
        self(f"s_cmp_{cond}_u32 s{sreg}, {imm}"); self(f"s_cbranch_scc0 {l}")
        return l
    def bymode(self, L):
        sl, dn = self.newlabel("Lslow"), self.newlabel("Lback")
        self(f"s_cmp_eq_u32 s{sFAST}, 0"); self(f"s_cbranch_scc1 {sl}")
        self.all(L); self.label(dn)
        self.tail += [sl + ":"] + [x + " sc1" if x.startswith("buffer_store") else x for x in L] + [f"s_branch {dn}"]
    def flagtest(self, vt, ok, fail=None):
        self(f"v_xor_b32 v{vt+2}, s{sN0}, v{vt}"); self(f"v_xor_b32 v{vt+3}, s{sN1}, v{vt+1}")
        self(f"v_lshrrev_b32 v{vt+3}, 5, v{vt+3}"); self(f"v_or_b32 v{vt+2}, v{vt+2}, v{vt+3}")
        self(f"v_cmp_ne_u32 vcc, 0, v{vt+2}"); self(f"s_cbranch_vccz {ok}" if ok else f"s_cbranch_vccnz {fail}")
    def flagload(self, vt, vaddr, off=0):
        if off == "atomic":
            self(f"v_mov_b32 v{vt}, 0"); self(f"v_mov_b32 v{vt+1}, 0"); self(f"buffer_atomic_or_x2 {vr(vt,2)}, v{vaddr}, {sr(sWS)}, 0 offen sc0")
        else: self(f"buffer_load_dwordx2 {vr(vt,2)}, v{vaddr}, {sr(sWS)}, 0 offen offset:{off} sc1")
    def poll(self, vaddr, vt, off=0):
        lp, ok = self.newlabel("Lpoll"), self.newlabel("Lok")
        self(f"s_mov_b32 s{sT[0]}, 0")
        self.label(lp)
        self.flagload(vt, vaddr, off); self("s_waitcnt vmcnt(0)")
        self.flagtest(vt, ok)
        self(f"s_add_u32 s{sT[0]}, s{sT[0]}, 1"); self(f"s_cmp_lt_u32 s{sT[0]}, {SPIN}"); self(f"s_cbranch_scc1 {lp}")
        self.label(ok)
def post_l(vaddr, vt, off=0, fl=" sc1"):
    return [f"v_mov_b32 v{vt}, s{sN0}", f"v_mov_b32 v{vt+1}, s{sN1}"], ["s_mov_b64 exec, 1", f"buffer_store_dwordx2 {vr(vt,2)}, v{vaddr}, {sr(sWS)}, 0 offen offset:{off}{fl}", "s_mov_b64 exec, -1"]
def weave(a, mf, fill):
    for m, x in enumerate(mf):
        a(x)
        for y in fill.get(m, ()): a(y)
def spread(fill, L, gaps):
    gaps = list(gaps); assert len(L) <= len(gaps), (len(L), len(gaps))
    for g, x in zip(gaps, L): fill.setdefault(g, []).extend(x if isinstance(x, list) else [x])
def rr(*streams):
    out = []; n = max(map(len, streams))
    for k in range(n): out += [s[k] for s in streams if k < len(s)]
    return out
def poison_test(t, regs):
    L = []; regs = list(regs); cur = regs.pop(0)
    while regs:
        if len(regs) >= 2: L.append(f"v_max3_u32 v{t}, v{cur}, v{regs[0]}, v{regs[1]}"); regs = regs[2:]
        else: L.append(f"v_max_u32 v{t}, v{cur}, v{regs[0]}"); regs = []
        cur = t
    return L + [f"v_cmp_eq_u32 vcc, -1, v{cur}"]
def pack(d, r, t, tmp=None):
    C = [f"v_cvt_pk_bf16_f32 v{d+k}, v{r+2*k}, v{r+2*k+1}" for k in range(4)]; S = "dst_sel:WORD_0 dst_unused:UNUSED_PRESERVE src0_sel:WORD_1 src1_sel:DWORD"
    u = r if tmp is None else tmp
    if t: return ([] if tmp is None else [f"v_mov_b32 v{u}, v{r}"]) + C[:2] + [f"v_or_b32_sdwa v{d}, v{u}, 1 {S}"] + C[2:]
    return [f"v_add_u32 v{u}, 0x10000, v{r}"] + C[:2] + [f"v_and_b32_sdwa v{d}, v{u}, -2 {S}"] + C[2:]
def tag_test(t, d, ph):
    if ph == 0: return [f"v_or3_b32 v{t}, v{d[0]}, v{d[1]}, v{d[2]}", f"v_bitop3_b32 v{t}, v{t}, v{d[3]}, 1 bitop3:0xa8", f"v_cmp_ne_u32 vcc, 0, v{t}"]
    if ph == 1: return [f"v_bitop3_b32 v{t}, v{d[0]}, v{d[1]}, v{d[2]} bitop3:0x80", f"v_bitop3_b32 v{t}, v{t}, v{d[3]}, 1 bitop3:0x80", f"v_cmp_eq_u32 vcc, 0, v{t}"]
    return [f"v_bitop3_b32 v{t}, v{d[0]}, v{d[1]}, {ph} bitop3:0x7e", f"v_bitop3_b32 v{t+1}, v{d[2]}, v{d[3]}, {ph} bitop3:0x7e", f"v_bitop3_b32 v{t}, v{t}, v{t+1}, 1 bitop3:0xa8", f"v_cmp_ne_u32 vcc, 0, v{t}"]
clean = lambda d, s=None: f"v_min_u32 v{d}, -2, v{d if s is None else s}"

def io_addr(a, v):
    s = sT[1]
    a(f"s_lshl_b32 s{s}, s{sRB}, 2"); a(f"s_add_u32 s{s}, s{s}, s{sWID}"); a(f"s_lshl_b32 s{s}, s{s}, 16"); a(f"s_lshl_b32 s{s+1}, s{sJ}, 7"); a(f"s_add_u32 s{s}, s{s}, s{s+1}")
    a(f"v_and_b32 v{v}, 15, v{vLANE}"); a(f"v_lshlrev_b32 v{v}, 11, v{v}"); a(f"v_and_b32 v{v+1}, 48, v{vLANE}")
    a(f"v_add3_u32 v{v}, v{v}, v{v+1}, s{s}"); a(f"v_add_u32 v{v+1}, 32768, v{v}")
def col_swaps(f, order): return [f"v_permlane{w}_swap_b32 v{XRES+4*f+k}, v{XRES+4*f+k+2}" for w in order for k in range(2)]

LX, LW, vHOT, vCS = 8, 12, 18, 20
vSF, vXV, vTW, vCW, vCF, vKF, vPO, vCH = 168, 169, 170, 171, 172, 174, 176, 173
S_, SELA = 24, 64
def setup_w(a, first):
    s = sT[1]
    a(f"v_lshrrev_b32 v{LW}, 3, v{vLANE}")
    if first:
        a(f"v_lshrrev_b32 v{LW+1}, 5, v{vLANE}"); a(f"v_lshl_add_u32 v{LW}, v{LW+1}, 2, v{LW}")
        a(f"s_lshr_b32 s{s}, s{sU}, 1"); a(f"s_lshl_b32 s{s}, s{s}, 3"); a(f"s_and_b32 s{s+1}, s{sU}, 1"); a(f"s_add_u32 s{s}, s{s}, s{s+1}"); a(f"s_mul_i32 s{s}, s{s}, {4*6144}")
    else: a(f"s_mul_i32 s{s}, s{sU}, {16*6144}")
    a(f"v_mul_u32_u24 v{LW}, 6144, v{LW}"); a(f"s_lshl_b32 s{s+1}, s{sJ}, 7"); (FJ == 15 or a(f"s_and_b32 s{s+1}, s{s+1}, {FJ << 7}")); a(f"s_add_u32 s{s}, s{s}, s{s+1}"); a(f"v_add3_u32 v{LW}, v{LW}, v{vCH}, s{s}")
    for k in range(1, 6): a(f"v_add_u32 v{LW+k}, {(k//3)*(16 if first else 8)*6144 + (k%3)*1024}, v{LW}")
def setup_x(a, l):
    s = sT[1]
    a(f"s_lshl_b32 s{s}, s{sRB}, 2"); a(f"s_add_u32 s{s}, s{s}, s{sU}"); a(f"s_lshl_b32 s{s}, s{s}, 16")
    if l == 0:
        a(f"v_lshrrev_b32 v{LX+1}, 4, v{vLANE}"); a(f"v_and_b32 v{LX+2}, 7, v{vLANE}"); a(f"v_xor_b32 v{LX+1}, v{LX+1}, v{LX+2}"); a(f"v_lshlrev_b32 v{LX+1}, 4, v{LX+1}")
        a(f"v_lshrrev_b32 v{LX+2}, 3, v{vLANE}"); a(f"v_lshlrev_b32 v{LX+2}, 11, v{LX+2}"); a(f"v_add3_u32 v{LX}, v{LX+1}, v{LX+2}, s{s}")
        a(f"v_xor_b32 v{LX+1}, 64, v{LX}"); a(f"v_add_u32 v{LX+2}, {2*15360}, v{LX}"); a(f"v_add_u32 v{LX+3}, {3*15360}, v{LX+1}"); a(f"v_add_u32 v{LX+1}, 15360, v{LX+1}")
    elif l == 1: a(f"v_add_u32 v{LX}, s{s}, v{vL16}")
def xsrd(a, d, l):
    srd(a, d, pOUT if l else pX, 4194304)
def kstage(a, l, n, x=True, w=True):
    t = sXO if x else sWOF
    if l in ROTL and n: a(f"s_add_u32 s{t}, s{sGO}, {n}"); a(f"s_cmp_ge_u32 s{t}, 16"); a(f"s_addc_u32 s{t}, s{t}, s{sJ}")
    else: a(f"s_add_u32 s{t}, s{sJ if l else sGO}, {n}")
    a(f"s_and_b32 s{t}, s{t}, 15")
    if w: a(f"s_mul_i32 s{sWOF}, s{t}, {WSTEP}")
    if x: a(f"s_lshl_b32 s{sXO}, s{t}, {12 if l else 7}")
def dma_w(a, base, so=sWOF):
    for i in range(2):
        a(f"s_add_u32 m0, s{sMW}, {base + i*3072}")
        for seg in range(3): a(f"buffer_load_dwordx4 v{LW+i*3+seg}, {sr(sW)}, s{so} offen offset:{seg*1024} lds")
def dma_x(a, l, n):
    a(f"s_add_u32 m0, s{sMX}, {XB[n % 3]}")
    for k in range(4): a(f"buffer_load_dwordx4 v{LX + (0 if l else k)}, {sr(sIO if l else sXS)}, s{sXO} offen offset:{k*1024} sc1 lds")
def hot_line(a, v, q, base):
    s = sT[4]
    a(f"s_lshr_b32 s{s}, s{base}, 7"); a(f"s_sub_u32 s{s}, 3, s{s}"); a(f"s_and_b32 s{s}, s{s}, 7"); a(f"s_lshl_b32 s{s}, s{s}, 7")
    a(f"v_and_b32 v{v}, 1, v{q}"); a(f"v_lshlrev_b32 v{v}, 10, v{v}"); a(f"v_lshrrev_b32 v{q}, 1, v{q}"); a(f"v_lshlrev_b32 v{q}, 11, v{q}")
    a(f"v_add3_u32 v{v}, v{v}, v{q}, s{s}")
def hot_setup(a, l, t):
    s = sT[1]
    a(f"s_lshr_b32 s{s}, s2, 3"); a(f"s_mul_i32 s{s}, s{s}, 12"); a(f"s_mul_i32 s{s+1}, s{sU}, 3"); a(f"s_add_u32 s{s}, s{s}, s{s+1}")
    a(f"v_mul_u32_u24 v{vHOT+1}, 21846, v{vLANE}"); a(f"v_lshrrev_b32 v{vHOT+1}, 16, v{vHOT+1}")
    a(f"v_mul_u32_u24 v{t}, 3, v{vHOT+1}"); a(f"v_sub_u32 v{t}, v{vLANE}, v{t}"); a(f"v_add_u32 v{t}, s{s}, v{t}")
    hot_line(a, vHOT, t, sW)
    if l and l not in ROTL: a(f"v_bfe_u32 v{t}, v{vHOT}, 7, 4"); a(f"v_add_u32 v{vHOT+1}, v{vHOT+1}, v{t}")
    else: a(f"s_and_b32 s{s}, s{sRB}, {14 & ~(RG1 if l else RG)}"); a(f"v_add_u32 v{vHOT+1}, s{s}, v{vHOT+1}")
def hot_issue(a, l, first, count, t):
    s = sT[1]
    a(f"v_add_u32 v{t}, {first}, v{vHOT+1}")
    if l in ROTL: a(f"v_lshrrev_b32 v{t+1}, 4, v{t}"); a(f"v_lshrrev_b32 v{t+2}, 7, v{vHOT}"); a(f"v_add3_u32 v{t}, v{t}, v{t+1}, v{t+2}")
    a(f"v_and_b32 v{t}, 15, v{t}")
    a(f"s_mov_b32 s{s}, {WSTEP}"); a(f"v_mad_u32_u24 v{t}, v{t}, s{s}, v{vHOT}")
    a(f"s_mov_b64 exec, {(1 << (3 * count)) - 1}")
    a(f"buffer_load_dword v{vDUM}, v{t}, {sr(sW)}, 0 offen")
    a("s_mov_b64 exec, -1")
def hot_slab(t, sd, v):
    s = sT[1]; per = 6
    t(f"s_lshr_b32 s{s}, s2, 3"); t(f"s_lshl_b32 s{s}, s{s}, 2"); t(f"s_add_u32 s{s}, s{s}, s{sU}")
    t(f"s_lshr_b32 s{s+1}, s{s}, 5"); t(f"s_and_b32 s{s}, s{s}, 31"); t(f"s_mul_i32 s{s}, s{s}, {per*2048}")
    t(f"s_lshr_b32 s{s+2}, s{sd}, 7"); t(f"s_sub_u32 s{s+2}, 3, s{s+2}"); t(f"s_and_b32 s{s+2}, s{s+2}, 7"); t(f"s_and_b32 s{s+3}, s{s+1}, 1"); t(f"s_lshl_b32 s{s+3}, s{s+3}, 3"); t(f"s_add_u32 s{s+2}, s{s+2}, s{s+3}")
    t(f"s_lshr_b32 s{s+1}, s{s+1}, 1"); t(f"s_and_b32 s{s+3}, s{sRB}, 14"); t(f"s_add_u32 s{s+1}, s{s+1}, s{s+3}")
    t(f"s_add_u32 s{s+1}, s{s+1}, s{s+2}"); t(f"s_and_b32 s{s+1}, s{s+1}, 15")
    t(f"s_mul_i32 s{s+1}, s{s+1}, {WSTEP}"); t(f"s_add_u32 s{s}, s{s}, s{s+1}"); t(f"s_lshl_b32 s{s+2}, s{s+2}, 7"); t(f"s_add_u32 s{s}, s{s}, s{s+2}")
    t(f"v_lshlrev_b32 v{v}, 11, v{vLANE}")
    t(f"s_mov_b64 exec, {(1 << per) - 1}"); t(f"buffer_load_dword v{vDUM}, v{v}, {sr(sd)}, s{s} offen"); t("s_mov_b64 exec, -1")
def wo_one(step):
    s = sT[10]
    return [f"s_add_u32 m0, s{sWP}, {step*4096}", f"s_add_u32 s{s}, s{sWR}, {step*65536}", f"s_and_b32 s{s}, s{s}, 0x1fffff", f"buffer_load_dwordx4 v{vWO}, {sr(sWO)}, s{s} offen lds"]

class VM:
    def __init__(self, a): self.a = a; self.q = []
    def add(self, tag, n=1): self.q += [tag] * n
    def wait(self, tag):
        if tag not in self.q: return
        last = max(i for i, t in enumerate(self.q) if t == tag)
        y = self.q[last + 1:]; self.q = y
        n = sum(1 for t in y if t[0] != "if"); c = sorted({t[1] for t in y if t[0] == "if"})
        assert n + 6 <= 63
        if c:
            a = self.a; l0, l1 = a.newlabel("Lvm"), a.newlabel("Lvm"); assert c == list(range(c[0], c[-1] + 1))
            a(f"s_sub_u32 s{sT[1]}, s{sH}, {c[0]}"); a(f"s_cmp_lt_u32 s{sT[1]}, {len(c)}"); a(f"s_cbranch_scc1 {l0}")
            a(f"s_waitcnt vmcnt({n})"); a.label(l0); a(f"s_waitcnt vmcnt({n + 6})")
        else: self.a(f"s_waitcnt vmcnt({n})")
    def wait_wo(self):
        w = [t for t in self.q if t[0] == "wo"]
        if w: self.wait(w[-1])
    def wo(self, steps):
        for st in steps: self.a.all(wo_one(st)); self.add(("wo", st))

def slab_sums(a, base, parts="rmw"):
    s = sT[1]; F, D, A = S_, 48, 60
    if "r" in parts:
        a(f"v_lshrrev_b32 v{A}, 5, v{vLANE}"); a(f"v_mul_u32_u24 v{A}, 3072, v{A}"); a(f"s_add_u32 s{s}, s{sMW}, {base}"); a(f"v_add3_u32 v{A}, v{A}, v{vTR}, s{s}")
        for cb in range(1, 4): a(f"v_xor_b32 v{A+cb}, {32*cb}, v{A}")
        for seg in range(3):
            for cb in range(4): a(f"ds_read_b64_tr_b16 {vr(F+8*seg+2*cb,2)}, v{A+cb} offset:{seg*1024}")
    if "m" in parts:
        a(f"v_bfe_u32 v{D}, v{vLANE}, 2, 2"); a(f"v_lshlrev_b32 v{D}, v{D}, 1")
        for cb in range(4):
            a(f"v_bfe_i32 v{SELA+2*cb}, v{D}, {cb}, 1"); a(f"v_and_b32 v{SELA+2*cb}, 0x3f803f80, v{SELA+2*cb}"); a(f"v_mov_b32 v{SELA+2*cb+1}, v{SELA+2*cb}")
        a("s_waitcnt lgkmcnt(0)")
        for h in range(2):
            for seg in range(3): a(M(D + 4 * seg, SELA + 4 * h, F + 8 * seg + 4 * h, D + 4 * seg if h else "0"))
    if "w" in parts:
        a(f"s_mul_i32 s{s}, s{sU}, 768"); a(f"s_add_u32 s{s}, s{s}, {HX}"); a(f"v_lshl_add_u32 v{A}, v{vLANE}, 2, s{s}")
        for seg in range(3): a(f"ds_write_b32 v{A}, v{D+4*seg} offset:{seg*256}")
        a("s_waitcnt lgkmcnt(0)")
def cs_off(a, d, l, unit, base):
    a(f"s_lshl_b32 s{d}, s{sJ}, 2"); a(f"s_add_u32 s{d}, s{d}, s{sU}"); a(f"s_mul_i32 s{d}, s{d}, {unit}"); a(f"s_add_u32 s{d}, s{d}, {base + l*64*unit}")
def slab_publish(a, l):
    s = sT[1]; F = S_
    a(f"s_min_u32 s{s}, s{sU}, 2"); a(f"s_lshl_b32 s{s}, s{s}, 8"); a(f"s_add_u32 s{s}, s{s}, {HX}"); a(f"v_lshl_add_u32 v{F}, v{vLANE}, 2, s{s}")
    for k in range(4): a(f"ds_read_b32 v{F+1+k}, v{F} offset:{k*768}")
    cs_off(a, s, l, 4096, CSP); a(f"s_lshl_b32 s{s+1}, s{sRB}, 8"); a(f"s_add_u32 s{s}, s{s}, s{s+1}"); a(f"v_lshlrev_b32 v{F}, 2, v{vLANE}")
    a("s_waitcnt lgkmcnt(0)")
    a(f"v_add_f32 v{F+1}, v{F+1}, v{F+2}"); a(f"v_add_f32 v{F+3}, v{F+3}, v{F+4}"); a(f"v_add_f32 v{F+1}, v{F+1}, v{F+3}")
    a(f"buffer_store_dword v{F+1}, v{F}, {sr(sWS)}, s{s} offen sc1")
def halves(w):
    s = sT[1]
    return [x for b in range(3) for x in (f"s_lshr_b32 s{s}, s{w}, {2-b}", f"s_and_b32 s{s}, s{s}, 8192", f"s_add_u32 s{sNB[b]}, s{sNB[b]}, s{s}")]
def slab_post(a, l):
    s = sT[1]; F = S_ + 20
    cs_off(a, s, l, 128, CSFL); a(f"v_and_b32 v{vCF}, 15, v{vLANE}"); a(f"v_lshl_add_u32 v{vCF}, v{vCF}, 3, s{s}")
    a(f"s_lshl_b32 s{s+1}, s{sRB}, 3"); a(f"s_add_u32 s{s}, s{s}, s{s+1}"); a(f"v_mov_b32 v{F+2}, s{s}")
    p0, p1 = post_l(F + 2, F); a.all(p0)
    if l == 0 and POL == 3: a(f"v_or_b32 v{F+1}, v{F+1}, v{vCS+2}")
    a.all(p1)

def chunks(a, L, k):
    L = [x.strip() for x in L]
    return [(lambda part: lambda: a.all(part))(L[i:i + k]) for i in range(0, len(L), k)]
def hand(a, vm, l, what, PXF=''):
    s = sT[1]
    if what[1] == "x" and l >= LAST or what[0] == "p" and l: return []
    sd = sIO if what[1] == "x" else sWS; off = 0 if what[1] == "x" else OB
    def st(k):
        a(f"s_add_u32 s{s}, s{sTILE}, {off}"); (a.all if PXF else a.bymode)([f"buffer_store_dwordx4 {vr(vPO,4)}, v{vL16}, {sr(sd)}, s{s} offen offset:{k*1024}{PXF}"]); vm.add(("p",))
    def touch():
        a(f"s_add_u32 s{s}, s{sTILE}, {off}"); a(f"v_lshlrev_b32 v{S_+22}, 3, v{vL16}")
        a("s_mov_b32 exec_hi, 0"); a(f"buffer_load_dword v{vDUM}, v{S_+22}, {sr(sd)}, s{s} offen sc1"); a("s_mov_b64 exec, -1"); vm.add(("hot",))
    return [touch] if what[0] == "t" else [(lambda k: lambda: st(k))(k) for k in range(4)]
def halo_fill(a, k):
    s = sT[1]
    a(f"s_add_u32 s{s}, s{sWP}, {HB + k * 4096}"); a(f"s_add_u32 s{s}, s{s}, s{sNB[0]}")
    a(f"buffer_store_dwordx4 {vr(vPO,4)}, v{vL16}, {sr(sWS)}, s{s} offen sc1")
def swarm(what, lo, cnt):
    s = sT[1]; p = {"woa": pWOA, "wob": pWOB, "wb": pWB}[what]
    return [f"s_lshl_b32 s{s}, s2, 2", f"s_add_u32 s{s}, s{s}, s{sU}", f"s_mul_i32 s{s}, s{s}, {6144 if what == 'wb' else 2048}", "s_nop 0", f"s_add_u32 s44, s{p}, s{s}", f"s_addc_u32 s45, s{p+1}, 0"] + [f"s_load_dword s46, s[44:45], {k*64}" for k in range(lo, lo + cnt)]
def loader(a, l, vm):
    S, G = S_, S_ + 24
    s = sT[1]; A = l % 2 == 0
    NR = RG1 + 1 if l else RG; NS, NP = NR + 1, NR + 2
    if SUM0: assert RG == RG1 == 0; NR, NS, NP = (-1, -1, 0) if l else (0, 0, 1)
    NF = NF0 if l == 0 else NF1; NPOST = (max(OI) + OID if l == 0 else NP1); NL = NL0 if l == 0 else NL1; assert 2 <= NPOST < NF
    NCF = NCF0 if l == 0 else NCF1
    if LPRIO: a(f"s_setprio {LPRIO}")
    for n in range(17):
        if n == 16 and LPRIO: a("s_setprio 0")
        if n <= 13: kstage(a, l, n + 2, w=n > 0); a(f"s_add_u32 m0, s{sMX}, {XB[(n + 2) % 3]}")
        if n:
            vm.wait(("x", n)); vm.wait(("w", n))
            if n == 15 or n == 14 and l == 0: a("s_waitcnt lgkmcnt(0)")
            if l == 0 and n in DZ and DZ[n] > 0: a(f"s_sleep {DZ[n]}")
            if l == 0 and n in DZ and DZ[n] < 0:
                lp = a.newlabel("Ldz"); a(f"s_mov_b32 s{s}, s{sJ}"); a.label(lp); a(f"s_sleep {-DZ[n]}"); a(f"s_sub_u32 s{s}, s{s}, 1"); a(f"s_cbranch_scc0 {lp}")
            a("s_barrier")
            if a.stamps and TRACE:
                if n > 1: a(f"v_writelane_b32 v5, s100, {l*16 + n - 1}")
                a("s_memrealtime s[100:101]" if RT else "s_memtime s[100:101]")
            if n == 1: a.stamp("l_c")
        D = []; X = []; late = []
        if n <= 13:
            t = G_(a); dma_x(t, l, n + 2); D += [([x], ("x", n + 2)) for x in t.lines[1:]]
            if n:
                t = G_(a); dma_w(t, WB[(n + 2) % 3]); L = t.lines
                D += [(x, ("w", n + 2)) for x in (L[0:2], L[2:3], L[3:4], L[4:6], L[6:7], L[7:8])]
        wo = []
        if not A and TRICKLE and 14 - TRICKLE <= n < 14: wo = [18 + n]
        if n >= 14: wo = (WOA if A else WOB)[n - 14]
        if n == 16 and not A: wo = list(wo) + list(range(24, 32 - TRICKLE))
        D += [(wo_one(st), ("wo", st)) for st in wo]
        if n == 0 and l == 0 and POL == 3: X.append(lambda: a.all([f"v_mov_b32 v{vCS+2}, {TAB+1824}", f"ds_read_b128 v[72:75], v{vCS+2}", f"ds_read_b128 v[76:79], v{vCS+2} offset:16"]))
        if n == 2 and l == 0 and POL == 3: X += chunks(a, ["v_min3_u32 v72, v72, v73, v74", "v_min3_u32 v76, v76, v77, v78", "v_min_u32 v72, v72, v75", "v_min_u32 v76, v76, v79", "v_sub_u32 v72, v76, v72", "v_lshrrev_b32 v72, 31, v72", f"v_lshlrev_b32 v{vCS+2}, 4, v72"], 2); assert NP + 2 > 2
        if n == 1:
            X += [lambda: a.all([f"s_lshl_b32 s{s}, s{sU}, 8", f"s_add_u32 s{s}, s{s}, {SX}", f"v_add_u32 v{S+4}, s{s}, v{vL16}", f"ds_read_b128 {vr(S,4)}, v{S+4}"]), lambda: None]
            def st():
                a(f"s_lshr_b32 s{s}, s{sTILE}, 4"); a("s_waitcnt lgkmcnt(0)"); a("s_mov_b64 exec, 0xffff")
                a.bymode([f"buffer_store_dwordx4 {vr(S,4)}, v{vL16}, {sr(sWS)}, s{s} offen"]); a("s_mov_b64 exec, -1"); vm.add(("p",))
            X.append(st)
        if l == 0 and n in OI and not NOI: X += hand(a, vm, l, "po", " sc1")[OI.index(n) * 4 // len(OI):(OI.index(n) + 1) * 4 // len(OI)]
        if n == NPOST:
            def post():
                p0, p1 = post_l(S + 22, S + 20, fl="")
                a(f"s_lshr_b32 s{s}, s{sTILE}, 9"); a(f"s_add_u32 s{s}, s{s}, {SFL + l*8192}"); a(f"v_mov_b32 v{S+22}, s{s}"); a.all(p0); vm.wait(("p",))
                a(p1[0]); a.bymode([p1[1]]); a(p1[2]); vm.add(("hot",))
            X.append(post)
        if n == NF: X.append(lambda: (a.flagload(S, vSF), vm.add(("F",))))
        if l < 2 and n == NCF: X.append(lambda: (a.flagload(G + 16, vCF), vm.add(("CF",))))
        if n == NF + 1:
            def chk():
                vm.wait(("F",)); ok = a.newlabel("Lsok"); a.flagtest(S, ok); a.poll(vSF, S); a.label(ok)
            def mode():
                a(f"v_cmp_ne_u32 vcc, s{sN1}, v{S+1}"); a("s_cmp_eq_u64 vcc, 0"); a(f"s_cselect_b32 s{sFAST}, {0 if FORCE_SLOW else 1}, 0")
                a(f"s_or_b32 s{s}, s{sFAST}, s47" if POL == 3 else f"s_mov_b32 s{s}, s{sFAST}"); assert NCF < NF <= 12
                a(f"v_mov_b32 v{S+18}, s{s}"); a(f"v_mov_b32 v{S+19}, {TAB+1792}"); a(f"ds_write_b32 v{S+19}, v{S+18}")
            X += [chk] + ([mode] if l == 0 else [])
        for i in [i for i in range(4) if NL[i] == n]:
            assert n > NF
            def sl(i=i):
                a(f"s_lshr_b32 s{s}, s{sTILE}, 16"); a(f"s_lshl_b32 s{s}, s{s}, 12"); assert ST == 0
                a(f"buffer_load_dwordx4 {vr(S+4*i,4)}, v{vL16}, {sr(sWS)}, s{s} offen offset:{i*1024} sc1"); vm.add(("stats",))
            X.append(sl)
        if n == NL[4]:
            L = [f"v_add_f32 v{S+i}, v{S+i}, v{S+8+i}" for i in range(8)] + [f"v_add_f32 v{S+i}, v{S+i}, v{S+4+i}" for i in range(4)]
            L += [f"v_permlane32_swap_b32 v{S}, v{S+2}", f"v_permlane32_swap_b32 v{S+1}, v{S+3}",
                  f"v_add_f32 v{S}, v{S}, v{S+2}", f"v_add_f32 v{S+1}, v{S+1}, v{S+3}", f"v_mov_b32 v{S+2}, v{S}", f"v_mov_b32 v{S+3}, v{S+1}"]
            X += [lambda: vm.wait(("stats",))] + chunks(a, L, 3)
        if n == NL[5]:
            L = [f"v_permlane16_swap_b32 v{S}, v{S+2}", f"v_permlane16_swap_b32 v{S+1}, v{S+3}", f"v_add_f32 v{S}, v{S}, v{S+2}", f"v_add_f32 v{S+1}, v{S+1}, v{S+3}",
                 f"v_mul_f32 v{S}, 0xba800000, v{S}", f"v_mul_f32 v{S+1}, 0x3a800000, v{S+1}",
                 f"v_fma_f32 v{S+1}, -v{S}, v{S}, v{S+1}", f"v_max_f32 v{S+1}, 0, v{S+1}", f"v_add_f32 v{S+1}, 0x3727c5ac, v{S+1}", f"v_rsq_f32 v{S+1}, v{S+1}", f"v_mul_f32 v{S}, v{S}, v{S+1}",
                 f"ds_write_b32 v{vTW}, v{S+1}", f"ds_write_b32 v{vTW}, v{S} offset:512"] + ([f"ds_write_b32 v{vCW}, v{vCS + (l & 1)}"] if l >= 2 else [])
            X += chunks(a, L, 2); assert n <= 14
        def piece(f, tag, k=4):
            t = G_(a); f(t); L = t.lines
            X.extend(chunks(a, L[:-3], k) + [lambda: (a.all(L[-3:]), vm.add(tag))])
        if HOT and n == WOHOT:
            def f(a):
                a(f"s_lshr_b32 s{s}, s2, 3"); a(f"s_lshl_b32 s{s}, s{s}, 6"); a(f"s_lshl_b32 s{s+1}, s{sU}, 4"); a(f"s_add_u32 s{s}, s{s}, s{s+1}")
                a(f"v_add_u32 v{S+20}, s{s}, v{vLANE}"); hot_line(a, S + 21, S + 20, sWO)
                a("s_mov_b64 exec, 0xffff"); a(f"buffer_load_dword v{vDUM}, v{S+21}, {sr(sWO)}, 0 offen"); a("s_mov_b64 exec, -1")
            piece(f, ("hot",))
        if HOT and n % 4 == 0 and n + HOTD + 1 <= 16: piece(lambda t: hot_issue(t, l, n + HOTD + 1, 4, S + 21), ("hot",))
        if (l, n) in WARM:
            def f(a):
                a(f"s_lshl_b32 s{s}, s2, 2"); a(f"s_add_u32 s{s}, s{s}, s{sU}"); a(f"s_lshl_b32 s{s}, s{s}, 11"); a(f"v_lshlrev_b32 v{S+20}, 7, v{vLANE}")
                a("s_mov_b64 exec, 0xffff"); a(f"buffer_load_dword v{vDUM}, v{S+20}, {sr(sWO)}, s{s} offen"); a("s_mov_b64 exec, -1")
            piece(f, ("hot",))
        if l == 0 and n in (HPAT, HPAT + 1): piece(lambda t: halo_fill(t, n - HPAT), ("hp",))
        for what, at in (HANDA if A else HANDB):
            if at == n: assert n > NF + 1 or PXF; X += hand(a, vm, l, what, PXF)
        if l < 2 and n <= NR:
            def f():
                e = a.skip_unless("eq", sH, n); t = G_(a); slab_sums(t, WB[n % 3], "r"); a.all(shift(t.lines, 56)); a.label(e)
            X.append(f); late.append(lambda: a("s_waitcnt lgkmcnt(0)"))
        if l < 2 and n == NS: t = G_(a); slab_sums(t, 0, "mw"); X += chunks(a, shift(t.lines, 56), 4)
        for ll, nn, what, lo, cnt in SWARM:
            if (ll, nn) == (l, n): X += chunks(a, swarm(what, lo, cnt), 2)
        if A and n == WOT:
            def f(a):
                a(f"s_and_b32 s{s}, s{sRB}, 1"); a(f"s_lshl_b32 s{s}, s{s}, 2"); a(f"s_add_u32 s{s}, s{s}, s{sU}"); a(f"s_cmp_ge_u32 s{s}, 1"); a(f"s_addc_u32 s{s+1}, s{s}, 6"); a(f"s_cmp_ge_u32 s{s}, 4"); a(f"s_addc_u32 s{s}, s{s+1}, s{sJ}")
                a(f"s_and_b32 s{s}, s{s}, 15"); a(f"s_lshl_b32 s{s}, s{s}, 10"); a(f"s_add_u32 s{s}, s{s}, s{sJ}"); a(f"s_lshl_b32 s{s}, s{s}, 7"); a(f"v_lshlrev_b32 v{S+20}, 11, v{vLANE}")
                a(f"buffer_load_dword v{vDUM}, v{S+20}, {sr(sWO)}, s{s} offen")
            piece(f, ("hot",), 99)
        if l < 2 and n == NP:
            def f(t): u = G_(a); slab_publish(u, l); t.all(shift(u.lines, 56))
            piece(f, ("cs",))
        if l < 2 and n == NP + 2: X.append(lambda: vm.wait(("cs",))); piece(lambda t: slab_post(t, l), ("hot",))
        if l < 2 and n == NCF + 1:
            def chk():
                vm.wait(("CF",)); ok = a.newlabel("Lcsok"); a.flagtest(G + 16, ok); a.poll(vCF, G + 16); a.label(ok)
            X += [chk, lambda: cs_off(a, s + 4, l, 4096, CSP)]
            if l == 0 and POL == 3:
                X.append(lambda: a.all([f"v_and_b32 v{G+18}, 16, v{G+17}", f"v_cmp_ne_u32 vcc, 0, v{G+18}", "s_lshl_b32 s47, vcc_lo, 15", f"s_lshr_b32 s47, s47, s{sRB}", "s_and_b32 s47, s47, 0xe000"] + halves(47)))
            X += [(lambda i: lambda: (a(f"buffer_load_dwordx4 {vr(G+4*i,4)}, v{vL16}, {sr(sWS)}, s{s+4} offen offset:{i*1024} sc1"), vm.add(("G",))))(i) for i in range(4)]
        if l < 2 and n == NCF + 3:
            L = [f"v_add_f32 v{G+i}, v{G+i}, v{G+8+i}" for i in range(8)] + [f"v_add_f32 v{G+i}, v{G+i}, v{G+4+i}" for i in range(4)]
            L += [f"v_permlane32_swap_b32 v{G}, v{G+2}", f"v_permlane32_swap_b32 v{G+1}, v{G+3}", f"v_add_f32 v{G}, v{G}, v{G+2}", f"v_add_f32 v{G+1}, v{G+1}, v{G+3}",
                  f"v_permlane16_swap_b32 v{G}, v{G+1}", f"v_add_f32 v{vCS+l}, v{G}, v{G+1}", f"ds_write_b32 v{vCW}, v{vCS+l}"]
            X += [lambda: vm.wait(("G",))] + chunks(a, L, 3)
        V = []
        if l and n + 1 <= NF + 3:
            m = n + 1; ok, rt = a.newlabel("Lxok"), a.newlabel("Lxrt")
            rd = [f"ds_read_b32 v{S+16+k}, v{vXV} offset:{(m % 3)*16384 + k*1024}" for k in range(4)]
            if RD2 == 2: rd = [f"ds_read_b64 {vr(72+2*k,2)}, v{vXV} offset:{(m % 3)*16384 + k*1024}" for k in range(4)]
            if RD2 == 1: rd = [f"ds_read2st64_b32 {vr(S+16+2*k,2)}, v{vXV} offset0:{(m % 3)*64 + 8*k} offset1:{(m % 3)*64 + 8*k + 4}" for k in range(2)]
            T = tag_test(S + 16, range(72, 80, 2) if RD2 == 2 else range(S + 16, S + 20), (l - 1) & 1)
            V = [lambda: (vm.wait(("x", m)), a.all(rd)), lambda: a.all(["s_waitcnt lgkmcnt(0)"] + T), lambda: (a(f"s_cbranch_vccnz {rt}"), a.label(ok))]
            t = G_(a); t.label(rt); t(f"s_mov_b32 s{sT[0]}, 0"); kstage(t, l, m, w=False); t.label(rt + "a"); (DIAG and t(f"v_add_u32 v7, {1 << (16 * (m > 1))}, v7")); dma_x(t, l, m); t("s_waitcnt vmcnt(0)"); t.all(rd + ["s_waitcnt lgkmcnt(0)"] + T)
            t(f"s_cbranch_vccz {ok}"); t(f"s_add_u32 s{sT[0]}, s{sT[0]}, 1"); t(f"s_cmp_lt_u32 s{sT[0]}, {SPIN}"); t(f"s_cbranch_scc1 {rt}a"); t(f"s_branch {ok}"); a.tail += t.lines
        gaps = [[] for _ in range(max(1, len(D)))]
        vg = VG if V and n else []
        for g, f in zip(vg, V): gaps[g].append(f)
        free = [g for g in range(len(gaps)) if g not in vg[1:]]; free = free[:-1] or free
        for k, f in enumerate(X): gaps[free[k * len(free) // len(X)]].append(f)
        for k, g in enumerate(gaps):
            if k < len(D):
                cap = CAP.get((l, n))
                a.all(D[k][0][:-1] + ([f"s_waitcnt vmcnt({cap - 1})"] if cap else []) + D[k][0][-1:]); vm.add(D[k][1])
            for f in g: f()
        for f in late + ([] if vg else V): f()
def G_(a):
    t = G(a.stamps); t.newlabel = a.newlabel; t.tail = a.tail
    return t
def shift(lines, d):
    import re
    def one(m): n = int(m.group(1)); return f"v{n + d}" if 24 <= n < 72 else m.group(0)
    def rng(m): p, q = int(m.group(1)), int(m.group(2)); return f"v[{p+d}:{q+d}]" if 24 <= p < 72 else m.group(0)
    return [re.sub(r"\bv(\d+)\b", one, re.sub(r"\bv\[(\d+):(\d+)\]", rng, x)).strip() for x in lines]

def between(a, l, vm):
    s = sT[1]; A = l % 2 == 0
    if A: vm.wo(range(LATE, 32))
    if l == LAST:
        if TO3:
            for f in hand(a, vm, l, "to"): f()
        vm.wait_wo(); a("s_barrier"); a("s_barrier"); return
    n = l + 1; assert l or PZ or HPAT < 15 or any('hp' in x for x in WSCH[0])
    a(f"s_mov_b32 s{sL}, {n}")
    p = (pWB, pWOB) if n & 1 else (pWA, pWOA)
    a(f"s_mov_b32 s{sW}, s{p[0]}"); a(f"s_mov_b32 s{sW+1}, s{p[0]+1}")
    if l == 0:
        setup_w(a, False); setup_x(a, 1); assert 1 in ROTL
        a(f"s_andn2_b32 s{sGO}, s{sRB}, {RG1}"); a(f"s_cmp_eq_u32 s{sGO}, 15"); a(f"s_cselect_b32 s{sGO}, 0, s{sGO}")
        a(f"s_and_b32 s{sH}, s{sRB}, {RG1}"); a(f"s_add_u32 s{sH}, s{sH}, 1"); a(f"s_cmp_eq_u32 s{sRB}, 15"); a(f"s_cselect_b32 s{sH}, 0, s{sH}")
    a(f"v_add_u32 v{vSF}, 8192, v{vSF}")
    if HOT: hot_setup(a, n, S_)
    def batch(k):
        for ll, nn, what, lo, cnt in SWARM:
            if (ll, nn) == (l, 17 + k): a.all(swarm(what, lo, cnt))
        for st in WSCH[l][k]:
            if st == "hp": halo_fill(a, 0); halo_fill(a, 1); vm.add(("hp",), 2); continue
            if st in ("tx", "to"):
                for f in hand(a, vm, l, st): f()
                continue
            if st == "h":
                if HOT: hot_issue(a, n, int(n in ROTL), HOTD + 1, S_); vm.add(("hot",))
                continue
            assert st <= k
            kstage(a, n, st, x=False); t = G_(a); dma_w(t, WB[st])
            for x in t.lines:
                if "buffer" in x and WP[l] is not None: a(f"s_waitcnt vmcnt({WP[l]})")
                a(x)
            vm.add(("w", st), 6)
    batch(0)
    if not A: vm.wait_wo()
    a.stamp("l_a")
    a("s_barrier")
    batch(1)
    vm.wait_wo()
    a(f"s_mov_b32 s{sWO}, s{p[1]}"); a(f"s_mov_b32 s{sWO+1}, s{p[1]+1}")
    a("s_barrier")
    batch(2)
    if l == 0 and SUM0:
        vm.wait(("w", 0)); vm.wait(("w", 1)); a(f"s_cmp_eq_u32 s{sH}, 0"); a(f"s_cselect_b32 s{s+5}, {WB[0]}, {WB[1]}"); slab_sums(a, f"s{s+5}")
    vm.wait(("w", 0))
    kstage(a, n, 1, w=False)
    a.stamp("l_b")
    a("s_barrier")
    dma_x(a, n, 1); vm.add(("x", 1), 4)

ACC, FR, AX, AW = 24, 120, 200, 202
def acc(q, i): return ACC + 32 * (q >> 1) + 8 * i + 4 * (q & 1) if q < 4 else ACC + 64 + 16 * (q & 1) + 4 * i
xf = lambda p, i: FR + 40 * p + 4 * i
wf = lambda p, q: FR + 40 * p + 16 + 4 * q
snake = lambda qs: [(q, i if k % 2 == 0 else 3 - i) for k, q in enumerate(qs) for i in range(4)]
VORD = [(4 + (b ^ (i & 1)), i) for i in range(4) for b in range(2)]
ORD = snake([0, 1, 2, 3]) + VORD; KVORD = snake([2, 3]) + VORD; QORD = snake([0, 1])
def g1m(p, order, init=False):
    return [M(acc(q, i), *((wf(p, q), xf(p, i)) if q < 4 else (xf(p, i), wf(p, q))), "0" if init else acc(q, i)) for q, i in order]
def g1r(p, n, ks, qs=range(6)):
    slot = n % 3
    rx = lambda i: f"ds_read_b128 {vr(xf(p,i),4)}, v{AX+ks} offset:{slot*16384 + i*2048}"
    rw = lambda q: [f"ds_read_b64_tr_b16 {vr(wf(p,q)+2*e,2)}, v{AW + (q & 1) + (0 if slot else 2)} offset:{(WB[slot] if slot else 0) + (4*ks + 2*e)*3072 + (q >> 1)*1024}" for e in range(2)]
    qs = list(qs)
    return [rx(0)] + rw(qs[0]) + [rx(1), rx(2), rx(3)] + [x for q in qs[1:] for x in rw(q)]
def stage(a, n, h0=None, h1=None, first=False, bar=1):
    f0 = {k: [x] for k, x in enumerate(g1r(1, n, 1))}
    if first:
        for m, need in ((1, 4), (2, 5), (3, 6), (4, 8), (8, 10), (12, 12), (16, 16)): f0[m - 1].append(f"s_waitcnt lgkmcnt({min(15, 16 - need + m)})")
    else: f0[7].append("s_waitcnt lgkmcnt(8)")
    f0[23] = ["s_waitcnt lgkmcnt(4)"]
    f1 = {bar + 1 + k: [x] for k, x in enumerate(g1r(0, n + 1, 0))}
    f1[bar - 1] = ["s_waitcnt lgkmcnt(0)"]; f1[bar] = ["s_barrier"]
    f1.setdefault(max(22, bar + 17), []).append("s_waitcnt lgkmcnt(4)")
    for f, h in ((f0, h0), (f1, h1)):
        for g, L in (h or {}).items(): f.setdefault(g, []).extend(L)
    weave(a, g1m(0, ORD, first), f0); weave(a, g1m(1, ORD), f1)
AB, CK, CQ, CV, TA, MD = 206, 214, 192, 230, 248, 252
VT = {3: 232, 2: 240, 1: 144, 0: 152}; TM = 184
SD, SQ, SFA = 206, 230, 236
BD, ONE = 222, 226
def c_setup(a, first):
    s = sT[1]
    a(f"s_lshr_b32 s{s}, s{sWID}, 1"); a(f"s_lshl_b32 s{s}, s{s}, 13"); a(f"s_add_u32 s{s}, s{s}, {XB[0]}")
    if not first: a(f"v_add_u32 v{AX}, s{s}, v{vL16}"); a(f"v_add_u32 v{AX+1}, 1024, v{AX}"); return
    a(f"v_and_b32 v{AX}, 15, v{vLANE}"); a(f"v_bfe_u32 v{AX+1}, v{vLANE}, 1, 3"); a(f"v_lshrrev_b32 v{AW}, 4, v{vLANE}"); a(f"v_xor_b32 v{AX+1}, v{AX+1}, v{AW}")
    a(f"v_lshlrev_b32 v{AX}, 7, v{AX}"); a(f"v_lshlrev_b32 v{AX+1}, 4, v{AX+1}"); a(f"v_add3_u32 v{AX}, v{AX}, v{AX+1}, s{s}"); a(f"v_xor_b32 v{AX+1}, 64, v{AX}")
    a(f"s_and_b32 s{s+1}, s{sWID}, 1"); a(f"s_lshl_b32 s{s+2}, s{s+1}, 6"); a(f"v_xor_b32 v{AW}, s{s+2}, v{vTR}")
    a(f"v_lshrrev_b32 v{AW+1}, 5, v{vLANE}"); a(f"v_mul_u32_u24 v{AW+1}, 3072, v{AW+1}"); a(f"v_add_u32 v{AW}, v{AW}, v{AW+1}"); a(f"v_xor_b32 v{AW+1}, 32, v{AW}")
    for k in range(2): a(f"v_add_u32 v{AW+2+k}, {WB[0]}, v{AW+k}")
    a(f"s_lshr_b32 s{s}, s{sWID}, 1"); a(f"s_lshl_b32 s{s}, s{s}, 8"); a(f"s_add_u32 s{s}, s{s}, {TAB}"); a(f"s_lshl_b32 s{s+1}, s{s+1}, 7"); a(f"s_add_u32 s{s+1}, s{s+1}, {TAB+1024}")
    a(f"v_and_b32 v{TA+3}, 15, v{vLANE}"); a(f"v_and_b32 v{TA+2}, 48, v{vLANE}")
    a(f"v_lshl_add_u32 v{TA}, v{TA+3}, 2, s{s}"); a(f"v_add_u32 v{TA+1}, s{s}, v{TA+2}"); a(f"v_add_u32 v{TA+2}, s{s+1}, v{TA+2}"); a(f"v_lshl_add_u32 v{TA+3}, v{TA+3}, 2, s{s+1}")
def stat_mfma():
    L = []
    for ks in range(2):
        for t in range(2):
            x = XRES + 8 * t + 4 * ks
            L += [M(SD + 8 * t, ONE, x, SD + 8 * t if ks else "0"), M(SD + 8 * t + 4, x, x, SD + 8 * t + 4 if ks else "0")]
    return L
def epi_qk(seg, i, cs):
    r = acc(2 * seg, i); ab = AB + 2 * i; L = []
    for p in range(4):
        t = TM + 2 * p
        L += [f"v_pk_mul_f32 {vr(t,2)}, {vr(cs+2*p,2)}, {vr(ab,2)} op_sel:[0,1] op_sel_hi:[1,1]", f"v_pk_fma_f32 {vr(t,2)}, {vr(r+2*p,2)}, {vr(ab,2)}, {vr(t,2)} op_sel_hi:[1,0,1]",
              f"v_cvt_pk_bf16_f32 v{r+p}, v{t}, v{t+1}"]
    return L
vout = lambda b, i: acc(4 + b, 0) + 8 + 2 * i
def epi_v(i):
    L = []
    for b in range(2):
        for p in (1, 0):
            t = TM + 2 * (2 * b + p); r = acc(4 + b, i) + 2 * p
            L += [f"v_pk_mul_f32 {vr(t,2)}, {vr(VT[i]+4+2*p,2)}, {vr(CV,2)} op_sel:[0,{b}] op_sel_hi:[1,{b}]", f"v_pk_fma_f32 {vr(t,2)}, {vr(r,2)}, {vr(VT[i]+2*p,2)}, {vr(t,2)}",
                  f"v_cvt_pk_bf16_f32 v{vout(b,i)+p}, v{t}, v{t+1}"]
    return L
def consumer(a):
    s = sT[1]
    a("s_barrier")
    a.stamp("g1start")
    a.all(g1r(0, 0, 0)); a("s_waitcnt lgkmcnt(13)")
    ex = []
    for t in range(2):
        d = SD + 8 * t + 4
        ex += [f"v_cndmask_b32 v{d}, v{d}, v{d+1}, {sr(mB0,2)}", f"v_cndmask_b32 v{d+2}, v{d+2}, v{d+3}, {sr(mB0,2)}", f"v_mov_b32 v{SQ+2*t}, v{d-4}", f"v_cndmask_b32 v{SQ+2*t+1}, v{d}, v{d+2}, {sr(mB1,2)}"]
    ex += [f"v_and_b32 v{SFA}, 0xf0, v{vL16}", f"s_lshl_b32 s{s}, s{sWID}, 8", f"s_add_u32 s{s}, s{s}, {SX}", f"v_add_u32 v{SFA}, s{s}, v{SFA}"]
    h0 = {}; spread(h0, [ex[k:k+2] for k in range(0, len(ex), 2)], range(16, 23))
    h1 = {1: ["s_mov_b32 exec_lo, 0x00f0000f", "s_mov_b32 exec_hi, 0xf0000f00", f"ds_write_b128 v{SFA}, {vr(SQ,4)}", "s_mov_b64 exec, -1"], 3: [f"s_mov_b32 s{sCNT}, 0"]}
    stage(a, 0, h0, h1, first=True, bar=BAR0); assert BAR0 >= 4
    stage(a, 1, {22: ["s_waitcnt vmcnt(0)"]})
    a(".p2align 3")
    a.label("L_cloop")
    stage(a, 2); stage(a, 3); stage(a, 4, None, {19: [f"s_add_u32 s{sCNT}, s{sCNT}, 1"], 20: [f"s_cmp_lt_u32 s{sCNT}, 4"], 23: ["s_cbranch_scc1 L_cloop"]})
    t = G_(a); e = t.skip_unless("eq", sL, 0); t(f"v_readfirstlane_b32 s47, v{MD}"); t(f"s_and_b32 s{sFAST}, s47, 1"); t.all(halves(47) if POL == 3 else []); t.label(e)
    stage(a, 14, {16: [f"v_mov_b32 v{MD}, {TAB+1792}"], 17: [f"ds_read_b32 v{MD}, v{MD}"]}, {17: [x.strip() for x in t.lines], 18: [f"s_lshl_b32 s{s+1}, s{sT32}, 14", f"s_add_u32 s{s+1}, s{s+1}, s{sLO}"], 19: [f"s_add_u32 s{s+1}, s{s+1}, s{sNB[0]}", f"s_sub_u32 s{s}, s{s+1}, 16384"]})
    f = {k: [x] for k, x in enumerate(g1r(1, 15, 1, [2, 3, 4, 5, 0, 1]))}
    f[7].append("s_waitcnt lgkmcnt(8)"); f[15].append("s_waitcnt lgkmcnt(8)")
    weave(a, g1m(0, KVORD), f)
    ab = lambda i: f"ds_read2_b32 {vr(AB+2*i,2)}, v{TA} offset0:{16*i} offset1:{128+16*i}"
    vt = lambda i: [f"ds_read_b128 {vr(VT[i]+4*k,4)}, v{TA+1} offset:{k*512 + i*64}" for k in range(2)]
    cs = lambda d, seg: [f"ds_read_b128 {vr(d+4*b,4)}, v{TA+2} offset:{seg*256 + b*64}" for b in range(2)]
    tr = [ab(3)] + cs(CK, 1) + [f"ds_read2_b32 {vr(CV,2)}, v{TA+3} offset0:128 offset1:144"] + vt(3) + [ab(2)] + vt(2) + [ab(1)] + vt(1) + [ab(0)] + vt(0) + cs(CQ, 0)
    f = {k: [x] for k, x in enumerate(tr[:15])}; f[15] = tr[15:]
    f[4].append("s_waitcnt lgkmcnt(5)"); f[5].append("s_barrier")
    f[12].append(f"s_bitcmp1_b32 s{sL}, 0")
    weave(a, g1m(1, KVORD), f)
    a.stamp("g1kv")
    a("s_cbranch_scc1 L_tailB")

def q_scale(): return [f"s_mov_b32 s{sT[9]}, {QSCALE}"] + [f"v_mul_f32 v{AB+k}, s{sT[9]}, v{AB+k}" for k in range(8)]
Qr = lambda t: acc(0, 2 + t)
Kr = lambda par, c: acc(2, 2 * (1 - par) + c)
Vr = lambda par, b: vout(b, 2 * (1 - par))
SS, PP, OO, LL, BO, AD, MI = 120, 136, 144, 160, 236, 244, 245
def masks_A():
    L = []
    for r in range(4): L += [f"v_subrev_u32 v{BD+r}, {r}, v{vD0}", f"v_ashrrev_i32 v{BD+r}, 31, v{BD+r}", f"v_and_b32 v{BD+r}, {BIG}, v{BD+r}"]
    return L
ones = lambda val="0x3f803f80": [f"v_mov_b32 v{ONE+k}, {val}" for k in range(4)]
def blocks(kind, t):
    if kind == "diag": return [(0, BD)] if t == 0 else [(0, "0"), (1, BD)]
    if kind == "old": return [(0, BO), (1, "0")] if t == 0 else [(1, BO)]
    return [(0, "0"), (1, "0")]
def s_mf(kind, par, t): return [M(SS + 8 * t + 4 * c, Kr(par, c), Qr(t), C) for c, C in blocks(kind, t)]
def pv_mf(par, t, init=False):
    return [M(OO + 8 * t + 4 * b, Vr(par, b), PP + 4 * t, "0" if init else OO + 8 * t + 4 * b) for b in range(2)] + [M(LL + 4 * t, ONE, PP + 4 * t, "0" if init else LL + 4 * t)]
def kv_rd(par, off, what):
    R = Kr if what == "K" else Vr; o = off + (0 if what == "K" else 2048)
    return [f"ds_read_b128 {vr(R(par,k),4)}, v{AD} offset:{o + k*1024}" for k in range(2)]
def half(a, kind, t, nxt, pv, rd=(), top=(), mid=(), early=False):
    valu = []; cs = [c for c, _ in blocks(kind, t)]
    for c in cs:
        s = SS + 8 * t + 4 * c; p = PP + 4 * t + 2 * c
        valu += [f"v_exp_f32 v{s}, v{s}", f"v_exp_f32 v{s+1}, v{s+1}", f"v_exp_f32 v{s+2}, v{s+2}", f"v_cvt_pk_bf16_f32 v{p}, v{s}, v{s+1}", f"v_exp_f32 v{s+3}, v{s+3}", None, f"v_cvt_pk_bf16_f32 v{p+1}, v{s+2}, v{s+3}"]
    if len(cs) == 2: valu[5] = valu.pop(7)
    else: z = PP + 4 * t + 2 * (1 - cs[0]); valu[5] = f"v_mov_b32 v{z}, 0"; valu.insert(2, f"v_mov_b32 v{z+1}, 0")
    valu = [x for x in valu if x]
    mf = list(nxt) + list(pv); a.all(top)
    at = ATAT if len(valu) > 8 else [0, 1, 3, 4, 5]
    ins = {}
    for k, x in enumerate(mf): ins.setdefault(at[k], []).append(x)
    rd = list(rd)
    for k in range(len(rd)): ins.setdefault(at[k if early else max(0, len(mf) - len(rd) + k)], []).append(rd[k])
    for k, x in enumerate(mid): ins.setdefault(at[min(len(mf) - 1, (2 + k) if early else k)], []).extend(x)
    for k, x in enumerate(valu): a.all(ins.get(k, [])); a(x)
def local_steps(a, T, have, init, hook=None):
    off = lambda s: (3 - s) * 8192
    kind = lambda s: "diag" if s == 0 else "full"
    a.all(s_mf("diag", 0, 0))
    for s in range(T + 1):
        par = s & 1; more = have <= s + 1 <= T
        half(a, kind(s), 0, s_mf(kind(s), par, 1), pv_mf(par ^ 1, 1, init and s == 1) if s else [], kv_rd(par ^ 1, off(s + 1), "K") if more else [], early=True)
        half(a, kind(s), 1, s_mf("full", par ^ 1, 0) if s < T else [], pv_mf(par, 0, init and s == 0), kv_rd(par ^ 1, off(s + 1), "V") if more else [], top=["s_waitcnt lgkmcnt(0)"] if s + 1 >= have else [])
        if hook and s == hook[0]: a.all(hook[1])
RTILE = [3, 2, 1, 0, 3, 2, 1, 0]
def fetch(F, steps):
    s = sT[1]; back = None; out = []
    for n in steps:
        L = []
        if back != 1 + (n >> 2):
            back = 1 + (n >> 2)
            L += [f"v_add_u32 v{F}, s{sNB[back]}, v{vL16}", f"s_and_b32 s{s+1}, s{sLO}, 4096"]
        L += [f"s_add_u32 m0, s{s+1}, {REM + n*8192}", f"s_add_u32 s{s}, s{sLO}, {RTILE[n]*16384}"]
        for k in range(4): out.append(L + [f"buffer_load_dwordx4 v{F}, {sr(sWS)}, s{s} offen offset:{k*1024} sc1 lds"]); L = []
    return out
def before_Z():
    s = sT[1]
    return [f"s_and_b32 s{s}, s{sLO}, 4096", f"s_add_u32 s{s}, s{s}, {REM}", f"v_add_u32 v{AD}, s{s}, v{vL16}"] + [f"v_xor_b32 v{BO+r}, {BIG}, v{BD+r}" for r in range(4)]
def w_touch(k, v):
    s = sT[1]
    return [f"s_mov_b32 s40, s{pWB}", f"s_mov_b32 s41, s{pWB+1}", "s_mov_b32 s42, 6291456", "s_mov_b32 s43, 0x00020000",
            f"s_and_b32 s{s}, s{sRB}, 1", f"s_lshl_b32 s{s}, s{s}, 2", f"s_add_u32 s{s}, s{s}, s{sU}", f"s_mul_i32 s{s}, s{s}, 36", f"s_mul_i32 s{s+1}, s{sJ}, 192", f"s_add_u32 s{s}, s{s}, s{s+1}", f"s_add_u32 s{s}, s{s}, {288*k}",
            f"v_add_u32 v{v}, s{s}, v{vLANE}", f"v_subrev_u32 v{v+1}, 3072, v{v}", f"v_min_u32 v{v}, v{v}, v{v+1}", f"v_lshlrev_b32 v{v}, 11, v{v}", f"s_lshl_b32 s{s}, s{sJ}, 7",
            "s_mov_b32 exec_hi, 15", f"buffer_load_dword v{vDUM}, v{v}, s[40:43], s{s} offen", "s_mov_b64 exec, -1"]
def o_touch(v):
    s = sT[1]
    return [f"s_add_u32 s{s}, s{sTILE}, {OB}", f"v_lshlrev_b32 v{v}, 3, v{vL16}", "s_mov_b32 exec_hi, 0", f"buffer_load_dword v{vDUM}, v{v}, {sr(sWS)}, s{s} offen sc1", "s_mov_b64 exec, -1"]
def remote_steps(a, T):
    R = 8 - T; vm = VM(a); par = lambda r: (T + 1 + r) & 1; kind = lambda r: "old" if r == R - 1 else "full"
    X = {}
    if T >= 2:
        F = fetch(MI, [T + 2, T + 4]); wo = lambda L: [(wo_one(st), ("wo", st)) for st in L]
        X[-1] = [(x, ("kv",)) for x in F[:F2A]]
        def deal(L, h0, h1):
            for k, x in enumerate(L): X.setdefault(h0 + k * (h1 - h0) // len(L), []).append(x)
        if F2A < 8: deal([(x, ("kv",)) for x in F[F2A:]], 0, 2)
        early = {st for L in WOA + [WOY] for st in L}
        deal(wo([st for st in range(0, 26) if st not in early]), 2, 6); deal(wo(range(26, LATE)) + [(w_touch(k, MI), ("t",)) for k in range(WT)] + [(o_touch(MI), ("t",))] * TOA, 6, 9); assert 28 <= LATE <= 30
    if PZ and T % 2 == 0:
        assert PZ >= 6
        for k in range(3):
            t = G_(a); e = t.skip_unless("eq", sL, 0)
            if k < 2:
                for f in hand(t, VM(t), 0, "px", " sc1")[2*k:2*k+2]: f()
            else: halo_fill(t, 0); halo_fill(t, 1)
            t.label(e); X.setdefault(PZ + k, []).append(([x.strip() for x in t.lines], ("t",)))
    def ex(h):
        for x, tag in X.get(h, []): vm.add(tag)
        return [x for x, _ in X.get(h, [])]
    a.all(kv_rd(par(0), 0, "K") + kv_rd(par(0), 0, "V"))
    for x in ex(-1): a.all(x)
    a("s_waitcnt lgkmcnt(2)"); a.all(s_mf("full", par(0), 0))
    for r in range(R):
        p = par(r); more = r + 1 < R
        if r == 1:
            if T == 0: a("s_waitcnt vmcnt(0)")
            a("s_barrier"); a.stamp("end")
        if r == 3:
            vm.wait(("kv",)); a("s_barrier"); a.stamp("Z2")
        half(a, kind(r), 0, s_mf(kind(r), p, 1), pv_mf(p ^ 1, 1), kv_rd(p ^ 1, (r + 1) * 8192, "K") if more else [], mid=ex(2 * r), early=True)
        if r in (0, 4): e = a.skip_unless("eq", sRB, r >> 2); a.all(ones("0")); a.label(e)
        half(a, kind(r), 1, s_mf(kind(r + 1), p ^ 1, 0) if more else [], pv_mf(p, 0), kv_rd(p ^ 1, (r + 1) * 8192, "V") if more else [], mid=ex(2 * r + 1), top=["s_waitcnt lgkmcnt(0)"])
    assert par(R - 1) == 0
    a("s_branch L_afin")
def finish_A(a):
    s = sT[1]; R = MI
    fin = lambda t: [f"v_rcp_f32 v{R+t}, v{LL+4*t}"] + [f"v_mul_f32 v{OO+8*t+k}, v{OO+8*t+k}, v{R+t}" for k in range(8)] + pack(OO + 8*t, OO + 8*t, 0, R + 2)
    a.all(fin(0)); a(M(SS, ONE, OO, "0")); a.all(fin(1)); a(M(SS, ONE, OO + 8, SS))
    a(f"v_max_f32 v{R}, v{LL}, v{LL+4}"); a(f"v_min_f32 v{R+1}, v{LL}, v{LL+4}")
    a(f"v_cmp_nge_f32 vcc, 0x5d800000, v{R}"); a(f"s_mov_b64 {sr(s+1,2)}, vcc"); a(f"v_cmp_nle_f32 vcc, 0x21800000, v{R+1}"); a(f"s_or_b64 {sr(s+1,2)}, vcc, {sr(s+1,2)}")
    a(f"v_mov_b32 v{R}, 0x207"); a(f"v_cmp_class_f32 vcc, v{SS}, v{R}"); a(f"s_or_b64 vcc, vcc, {sr(s+1,2)}")
    if FORCE_EXACT: a("s_mov_b64 vcc, -1")
    a("s_cbranch_vccnz L_exact")
    a.label("L_ostore")
    if PZ: a("s_waitcnt vmcnt(0)")
    a.bymode([f"buffer_store_dwordx4 {vr(OO+8*t,4)}, v{vL16}, {sr(sWS)}, s{sOA} offen offset:{t*1024}" for t in range(2)])
    t = G_(a); exact_A(t); t.all(fin(0) + fin(1)); t("s_branch L_ostore"); a.tail += t.lines
def kv_flag_addr(a, v, t):
    s = sT[1]
    a(f"s_lshr_b32 s{s}, s{sLO}, 9"); a(f"s_add_u32 s{s}, s{s}, {KF}"); a(f"v_and_b32 v{t}, 16, v{vL16}"); a(f"v_add_u32 v{t}, s{s}, v{t}")
    a(f"s_cmp_ge_u32 s{sRB}, 2"); a(f"s_cselect_b32 s{s}, s{sNB[2]}, s{sNB[1]}"); a(f"s_sub_u32 s{s}, s{s}, s{sNB[1]}")
    a(f"v_bfe_i32 v{v}, v{vLANE}, 1, 1"); a(f"v_and_b32 v{v}, s{s}, v{v}"); a(f"v_add3_u32 v{v}, v{v}, v{t}, s{sNB[1]}")
def exact_A(a):
    s = sT[1]; D, MX, BG, T_ = MI + 2, MI, 168 + 12, 168 + 13
    sN, sI, sP = sT[12], sT[13], sT[11]
    a.label("L_exact")
    a(f"s_lshl_b32 s{sN}, s{sRB}, 2"); a(f"s_add_u32 s{sN}, s{sN}, s{sT32}")
    a(f"s_mov_b32 s{sP}, 0"); a.all(ones()); a(f"v_mov_b32 v{BG}, {BIG}"); a(f"v_mov_b32 v{MX}, {BIG}"); a(f"v_mov_b32 v{MX+1}, {BIG}")
    if DIAG: srd(a, 40, pDBG, 256); a(f"v_mov_b32 v{T_}, 4"); a(f"v_mov_b32 v{D}, 1"); a("s_mov_b64 exec, 1"); a(f"buffer_atomic_add v{D}, v{T_}, {sr(40)}, 0 offen"); a("s_mov_b64 exec, -1")
    for r in range(OO, LL + 8): a(f"v_mov_b32 v{r}, 0")
    a.label("L_expass")
    a(f"s_mov_b32 s{sI}, 0"); a(f"v_mov_b32 v{D}, v{vD0}")
    a.label("L_exstep")
    a(f"s_sub_u32 s{s}, s{sT32}, s{sI}"); a(f"s_cmp_lt_i32 s{s}, 0"); a(f"s_cselect_b32 s{s+1}, s{sNB[1]}, s{sNB[0]}"); a(f"s_cmp_lt_i32 s{s}, -4"); a(f"s_cselect_b32 s{s+1}, s{sNB[2]}, s{s+1}")
    a(f"s_and_b32 s{s}, s{s}, 3"); a(f"s_lshl_b32 s{s}, s{s}, 14"); a(f"s_add_u32 s{s}, s{s}, s{s+1}"); a(f"s_add_u32 s{s}, s{s}, s{sLO}")
    for k, d in enumerate((Kr(0, 0), Kr(0, 1), Vr(0, 0), Vr(0, 1))): a(f"buffer_load_dwordx4 {vr(d,4)}, v{vL16}, {sr(sWS)}, s{s} offen offset:{k*1024} sc1")
    a("s_waitcnt vmcnt(0)")
    a.all(s_mf("full", 0, 0) + s_mf("full", 0, 1))
    for t in range(2):
        for c in range(2):
            for r in range(4):
                x = SS + 8 * t + 4 * c + r
                a(f"v_add_u32 v{T_}, {(16*t - 16*c - r) & 0xffffffff if 16*t - 16*c - r < -16 else 16*t - 16*c - r}, v{D}"); a(f"v_cmp_gt_u32 vcc, 0x100, v{T_}"); a(f"v_cndmask_b32 v{x}, v{BG}, v{x}, vcc")
    a(f"s_cmp_lg_u32 s{sP}, 0"); a("s_cbranch_scc1 L_exp2")
    for t in range(2):
        for k in range(0, 8, 2): a(f"v_max3_f32 v{MX+t}, v{MX+t}, v{SS+8*t+k}, v{SS+8*t+k+1}")
    a("s_branch L_exnext")
    a.label("L_exp2")
    for k in range(16): a(f"v_sub_f32 v{SS+k}, v{SS+k}, v{MX+(k>>3)}")
    for k in range(16): a(f"v_exp_f32 v{SS+k}, v{SS+k}")
    for k in range(8): a(f"v_cvt_pk_bf16_f32 v{PP+k}, v{SS+2*k}, v{SS+2*k+1}")
    a.all(pv_mf(0, 0) + pv_mf(0, 1))
    a.label("L_exnext")
    a(f"v_add_u32 v{D}, 32, v{D}"); a(f"s_add_u32 s{sI}, s{sI}, 1"); a(f"s_min_u32 s{s}, s{sN}, 8"); a(f"s_cmp_le_u32 s{sI}, s{s}"); a("s_cbranch_scc1 L_exstep")
    for w in (32, 16):
        for t in range(2): a(f"v_mov_b32 v{T_}, v{MX+t}"); a(f"v_permlane{w}_swap_b32 v{MX+t}, v{T_}"); a(f"v_max_f32 v{MX+t}, v{MX+t}, v{T_}")
    a(f"s_add_u32 s{sP}, s{sP}, 1"); a(f"s_cmp_lt_u32 s{sP}, 2"); a("s_cbranch_scc1 L_expass")

def tail_A(a):
    s = sT[1]; FA, FD, WA, QA = 245, 246, 253, 254
    st = lambda r, t, k: f"buffer_store_dwordx4 {vr(r,4)}, v{vL16}, {sr(sWS)}, s{s + t} offen offset:{k*1024} sc1"
    a("s_waitcnt lgkmcnt(8)")
    for t in (1, 0):
        a.all(epi_qk(1, 2*t+1, CK)); a(st(acc(2, 2*t+1), t, 1)); a.all(epi_v(2*t+1))
        a.all(epi_qk(1, 2*t, CK)); a(st(acc(2, 2*t), t, 0)); v = epi_v(2*t)
        a.all(v[:6]); a(st(vout(0, 2*t), t, 2)); a.all(v[6:]); a(st(vout(1, 2*t), t, 3))
        if t: a("s_waitcnt lgkmcnt(0)")
    a.stamp("epi")
    a(f"s_lshl_b32 s{s}, s{sT32}, 13"); a(f"s_and_b32 s{s+1}, s{sLO}, 4096"); a(f"s_add_u32 s{s}, s{s}, s{s+1}"); a(f"s_add_u32 s{s}, s{s}, {OWN - 8192}"); a(f"v_add_u32 v{WA}, s{s}, v{vL16}")
    wr = lambda t: [f"ds_write_b128 v{WA}, {vr(r,4)} offset:{t*8192 + k*1024}" for k, r in enumerate((acc(2, 2*t), acc(2, 2*t+1), vout(0, 2*t), vout(1, 2*t)))]
    p0, p1 = post_l(FA, FD)
    qa = [f"s_xor_b32 s{s+1}, s{sWID}, 2", f"s_lshl_b32 s{s+1}, s{s+1}, 11", f"s_add_u32 s{s+1}, s{s+1}, {QX}", f"v_add_u32 v{QA}, s{s+1}, v{vL16}"]
    a(f"s_cmp_ge_u32 s{sWID}, 2"); a("s_cbranch_scc1 L_tailA3")
    for T in (1, 3):
        if T == 3: a.label("L_tailA3")
        W = wr(0) + (wr(1) if T == 1 else [])
        X = q_scale() + qa + [f"s_lshl_b32 s{s}, s{sL}, 3", f"s_add_u32 s{s}, s{s}, s{sWID}", f"s_lshl_b32 s{s}, s{s}, 3", f"s_add_u32 s{s}, s{s}, {KF}", f"s_add_u32 s{s}, s{s}, s{sNB[0]}", f"v_mov_b32 v{FA}, s{s}"] + p0
        f = {}; spread(f, W, range(0, 16, 2))
        free = [g for g in range(16) if g not in f]; per = -(-len(X) // len(free))
        spread(f, [X[k:k+per] for k in range(0, len(X), per)], free)
        weave(a, g1m(0, QORD) + g1m(1, QORD), f)
        a.stamp("qmm")
        for i in range(2): a.all(epi_qk(0, i, CQ)); a(f"ds_write_b128 v{QA}, {vr(acc(0,i),4)} offset:{i*1024}")
        a.all(epi_qk(0, 2, CQ))
        if T == 3: a(f"v_subrev_u32 v{AD}, {2*8192}, v{WA}")
        a.all(epi_qk(0, 3, CQ))
        a("s_waitcnt lgkmcnt(0)"); a("s_barrier")
        a.stamp("Y")
        local_steps(a, T, 2, True, (min(T, F1AT), ["s_waitcnt vmcnt(0)"] + p1))
        a.stamp("loc")
        a.all(before_Z())
        a("s_barrier")
        a.stamp("Z")
        remote_steps(a, T)
def att_A_loader(a):
    s = sT[1]; F = 180
    a.all(ones())
    for r in range(OO, LL + 8): a(f"v_mov_b32 v{r}, 0")
    a(f"s_lshl_b32 s{s}, s{sU}, 11"); a(f"s_add_u32 s{s}, s{s}, {QX}"); a(f"v_add_u32 v{MI}, s{s}, v{vL16}")
    a(f"s_lshl_b32 s{s}, s{sT32}, 1"); a(f"s_and_b32 s{s+1}, s{sU}, 1"); a(f"s_add_u32 s{s}, s{s}, s{s+1}"); a(f"s_lshl_b32 s{s}, s{s}, 12"); a(f"s_add_u32 s{s}, s{s}, {OWN - 3*8192}"); a(f"v_add_u32 v{AD}, s{s}, v{vL16}")
    qrd = [f"ds_read_b128 {vr(Qr(t),4)}, v{MI} offset:{t*1024}" for t in range(2)]
    a(f"s_cmp_eq_u32 s{sT32}, 0"); a("s_cbranch_scc1 L_attA0")
    a("s_barrier")
    a.stamp("Y")
    a.all(qrd + kv_rd(0, 3*8192, "K") + kv_rd(0, 3*8192, "V")); a("s_waitcnt lgkmcnt(2)")
    woy = [x for st in WOY for x in wo_one(st)]
    local_steps(a, 2, 1, False, (1, woy))
    a.stamp("loc")
    a.all(before_Z()); a("s_barrier")
    a.stamp("Z")
    remote_steps(a, 2)
    a.label("L_attA0")
    if ZPRIO: a(f"s_setprio {ZPRIO}")
    kv_flag_addr(a, vKF, F)
    KP = "atomic" if APOLL else 0; ex4 = (lambda on: a(f"s_mov_b64 exec, {15 if on else -1}")) if APOLL else (lambda on: None)
    if PREP: ex4(1); a.flagload(F + 2, vKF, KP); ex4(0)
    a("s_barrier")
    a.stamp("Y")
    a.all(qrd + kv_rd(0, 3*8192, "K") + kv_rd(0, 3*8192, "V"))
    a("s_waitcnt lgkmcnt(2)")
    local_steps(a, 0, 1, False)
    a.stamp("loc")
    ex4(1); a.flagload(F, vKF, KP); ex4(0); a.all(woy)
    e = a.skip_unless("lg", sRB, 0)
    ex4(1); a(f"s_waitcnt vmcnt({len(WOY)})"); a.flagtest(F, e)
    a.poll(vKF, F, KP); a.label(e); ex4(0)
    a.stamp("epi")
    for x in fetch(F + 4, [0, 1, 2, 3]): a.all(x)
    a.all(before_Z()); a("s_waitcnt vmcnt(8)"); a("s_barrier")
    a.stamp("Z")
    remote_steps(a, 0)

def lane_mask(f): return sum(1 << l for l in range(64) if f(l & 15, l >> 4))
def tail_B(a):
    s = sT[1]; HK, HV, HA, MK, B0 = 244, 240, 253, 232, 236
    KK = lambda i: acc(2, i) if i >= 0 else HK
    a.label("L_tailB")
    a(f"s_and_b32 s{s}, s{sL}, 2")
    a("s_waitcnt lgkmcnt(8)")
    a.all(epi_qk(1, 3, CK))
    a(f"s_and_b32 s{s+1}, s{sWID}, 1"); a(f"s_add_u32 s{s}, s{s}, s{s+1}"); a(f"s_lshl_b32 s{s}, s{s}, 11"); a(f"s_add_u32 s{s}, s{s}, {HB}")
    a.all(epi_v(3))
    HO = VT[3]; a(clean(KK(3))); a(clean(HO, vout(0, 3))); a(f"v_mov_b32 v{HO+1}, v{vout(0,3)+1}"); a(f"v_mov_b32 v{HO+2}, v{vout(1,3)}"); a(f"v_mov_b32 v{HO+3}, v{vout(1,3)+1}")
    a(f"s_lshl_b32 s{s+1}, s{s+1}, 11"); a(f"s_add_u32 s{s+1}, s{s+1}, {HX}"); a(f"v_add_u32 v{HA}, s{s+1}, v{vL16}")
    up, on = a.newlabel("Lup"), a.newlabel("Lon")
    a(f"s_cmp_ge_u32 s{sWID}, 2"); a(f"s_cbranch_scc1 {up}")
    a(f"ds_write_b128 v{HA}, {vr(KK(3),4)}"); a(f"ds_write_b128 v{HA}, {vr(HO,4)} offset:1024")
    a(f"s_add_u32 s{sCNT}, s{s}, s{sNB[1]}"); a(f"s_cmp_eq_u32 s{sRB}, 0"); a(f"s_cselect_b32 s{s+2}, {BIG}, 0")
    a(f"s_branch {on}")
    a.label(up); a(f"s_add_u32 s{s}, s{s}, s{sNB[0]}")
    a(f"buffer_store_dwordx4 {vr(KK(3),4)}, v{vL16}, {sr(sWS)}, s{s} offen sc1"); a(f"buffer_store_dwordx4 {vr(HO,4)}, v{vL16}, {sr(sWS)}, s{s} offen offset:1024 sc1")
    a(f"s_mov_b32 s{s+2}, 0")
    a.label(on)
    a.all(epi_v(2) + epi_qk(1, 2, CK)); a("s_waitcnt lgkmcnt(0)")
    for i in (1, 0): a.all(epi_qk(1, i, CK) + epi_v(i))
    a.stamp("epi")
    X = q_scale() + [f"v_mov_b32 v{B0+k}, s{s+2}" for k in range(4)]
    X += [f"v_mov_b32 v{MK+2}, 0xffff", f"v_mov_b32 v{MK+3}, 0xffff0000", f"v_cndmask_b32 v{MK+3}, v{MK+2}, v{MK+3}, {sr(mB0,2)}", f"v_cndmask_b32 v{MK}, 0, v{MK+3}, {sr(mP0,2)}", f"v_cndmask_b32 v{MK+1}, 0, v{MK+3}, {sr(mP1,2)}",
          f"v_xor_b32 v{MK+2}, v{MK}, v{MK+3}", f"v_xor_b32 v{MK+3}, v{MK+1}, v{MK+3}"]
    X += [f"s_sub_u32 s{s+1}, s{sOA}, 65536"]
    f = {}; spread(f, [X[k:k+2] for k in range(0, len(X), 2)], range(0, 15)); f.setdefault(14, []).append("s_barrier")
    weave(a, g1m(0, QORD) + g1m(1, QORD), f)
    a.stamp("qmm")
    hl = [f"buffer_load_dwordx4 {vr(HK,4)}, v{vL16}, {sr(sWS)}, s{sCNT} offen sc1", f"buffer_load_dwordx4 {vr(HV,4)}, v{vL16}, {sr(sWS)}, s{sCNT} offen offset:1024 sc1"]
    def halo():
        up, on = a.newlabel("Lup"), a.newlabel("Lon")
        a(f"s_cmp_ge_u32 s{sWID}, 2"); a(f"s_cbranch_scc1 {up}"); a.all(hl); a(f"s_branch {on}")
        a.label(up); a(f"ds_read_b128 {vr(HK,4)}, v{HA}"); a(f"ds_read_b128 {vr(HV,4)}, v{HA} offset:1024"); a.label(on)
    for k, i in enumerate((3, 2, 1, 0)):
        if k == HALOAT: halo()
        a.all(epi_qk(0, i, CQ))
    if HALOAT >= 4: halo()
    a.stamp("Y")
    R = lambda i: 120 + 16 * i
    def scores(i): return [M(R(i), KK(i), acc(0, i), "0"), M(R(i) + 4, KK(i - 1), acc(0, i), B0 if i == 0 else "0")]
    def soft(i):
        r = R(i); x, y, m, t = r + 8, r + 9, r + 10, r + 11
        L = [f"v_cndmask_b32 v{r+2*k}, v{r+2*k}, v{r+2*k+1}, {sr(mB0,2)}" for k in range(4)]
        L += [f"v_cndmask_b32 v{x}, v{r}, v{r+4}, {sr(mP0,2)}", f"v_cndmask_b32 v{y}, v{r+2}, v{r+6}, {sr(mP1,2)}", f"v_max_f32 v{m}, v{x}, v{y}"]
        for w in (32, 16): L += [f"v_mov_b32 v{t}, v{m}", f"v_permlane{w}_swap_b32 v{m}, v{t}", f"v_max_f32 v{m}, v{m}, v{t}"]
        L += [f"v_sub_f32 v{x}, v{x}, v{m}", f"v_sub_f32 v{y}, v{y}, v{m}", f"v_exp_f32 v{x}, v{x}", f"v_exp_f32 v{y}, v{y}", f"v_cvt_pk_bf16_f32 v{x}, v{x}, v{x}", f"v_cvt_pk_bf16_f32 v{y}, v{y}, v{y}"]
        L += [f"v_and_b32 v{r+k}, v{MK+k}, v{(x, y)[k & 1]}" for k in range(4)]
        return L
    def prods(i): r = R(i); return [M(r + 4, ONE, r, "0")] + [M(r + 8 + 4 * b, vout(b, i - 1), r, "0") for b in range(2)]
    def fin(i):
        r = R(i)
        return [f"v_rcp_f32 v{r+4}, v{r+4}"] + [f"v_mul_f32 v{r+8+k}, v{r+8+k}, v{r+4}" for k in range(8)] + pack(r, r + 8, 1)
    ost = lambda i: f"buffer_store_dwordx4 {vr(R(i),4)}, v{vL16}, {sr(sWS)}, s{sOA if i >> 1 else s+1} offen offset:{(i & 1)*1024}"
    a.all(scores(3) + scores(2) + scores(1))
    a.all(rr(soft(3), soft(2), soft(1)))
    a.all(prods(3) + prods(2) + prods(1))
    a.all(rr(fin(3), fin(2), fin(1)))
    a.bymode([ost(3), ost(2), ost(1)])
    a.stamp("loc")
    ck, ok, rt = a.newlabel("Lhck"), a.newlabel("Lhok"), a.newlabel("Lhrt")
    a(f"s_mov_b32 s{sT[0]}, 0"); a("s_waitcnt vmcnt(3) lgkmcnt(0)")
    a.label(ck); a.all(poison_test(R(0), [HK, HV])); a(f"s_cbranch_vccnz {rt}"); a.label(ok)
    a.tail += [rt + ":", f"s_add_u32 s{sT[0]}, s{sT[0]}, 1", f"s_cmp_ge_u32 s{sT[0]}, {SPIN}", f"s_cbranch_scc1 {ok}"] + hl + ["s_waitcnt vmcnt(0)", f"s_branch {ck}"]
    a.stamp("Z")
    a.all(scores(0))
    for k in range(4): a(f"v_mov_b32 v{vout(k >> 1, -1) + (k & 1)}, v{HV+k}")
    a.all(soft(0) + prods(0) + fin(0))
    a.bymode([ost(0)])

A0, WF2, OFR, GA, vOB, vCK, vXW, vTG = 24, 56, 104, 206, 214, 216, 240, 241
def gemm2(a):
    s = sT[1]; assert OFR + 16 * NG <= 200
    ofr = lambda g, k: OFR + 16 * (g % NG) + 4 * k
    ld = lambda g, k, so=sGO: f"buffer_load_dwordx4 {vr(ofr(g,k),4)}, v{vOB}, {sr(sWS)}, s{so} offen offset:{k*1024} sc1"
    adv = [f"s_add_u32 s{sGO}, s{sGO}, 4096", f"s_and_b32 s{sGO}, s{sGO}, 0xffff"]
    rd = lambda i: [f"ds_read_b64_tr_b16 {vr(WF2+16*(i%3)+4*cb+2*e,2)}, v{GA + 4*(i >> 4) + cb} offset:{(i & 15)*4096 + e*2048}" for cb in range(4) for e in range(2)]
    def check(g):
        ck, ok = a.newlabel("Lock"), a.newlabel("Look")
        T = tag_test(vCK, [ofr(g, k) for k in range(4)], f"s{sL}")
        a.tail += [ck + ":", f"s_mov_b32 s{sT[0]}, 0", f"s_add_u32 s{s}, s{sJ}, {g}", f"s_and_b32 s{s}, s{s}, 15", f"s_lshl_b32 s{s}, s{s}, 12", ck + "a:"] + [ld(g, k, s) for k in range(4)]
        if DIAG: a.tail += [f"v_add_u32 v7, {1 << (16 * (g > 3))}, v7"]
        a.tail += ["s_waitcnt vmcnt(0)"] + T + [f"s_cbranch_vccz {ok}", f"s_add_u32 s{sT[0]}, s{sT[0]}, 1", f"s_cmp_lt_u32 s{sT[0]}, {SPIN}", f"s_cbranch_scc1 {ck}a", f"s_branch {ok}"]
        return T, [f"s_cbranch_vccnz {ck}", ok + ":"]
    a(f"s_and_b32 s{s}, s{sTILE}, 0xffff0000"); a(f"s_add_u32 s{s}, s{s}, {OB}")
    a(f"v_add_u32 v{vOB}, s{s}, v{vL16}"); a(f"s_and_b32 s{sGO}, s{sTILE}, 0xffff")
    for g in range(G2PRE):
        if g: a.all(adv)
        for k in range(4): a(ld(g, k))
        if g == 0:
            a(f"v_lshrrev_b32 v{GA+1}, 5, v{vLANE}"); a(f"v_lshl_add_u32 v{GA}, v{GA+1}, 10, v{vTR}")
            for cb in range(1, 4): a(f"v_xor_b32 v{GA+cb}, {32*cb}, v{GA}")
            a.all(rd(0))
        if g == 1: a.all(rd(1))
    for p in range(16): a(f"v_lshlrev_b32 v{A0+2*p}, 16, v{XRES+p}"); a(f"v_and_b32 v{A0+2*p+1}, 0xffff0000, v{XRES+p}")
    for cb in range(4): a(f"v_add_u32 v{GA+4+cb}, 65536, v{GA+cb}")
    a.all(ones()); c_setup(a, False)
    a(f"s_lshl_b32 s{s}, s{sWID}, 12"); a(f"s_add_u32 s{s}, s{s}, {XB[0]}"); a(f"v_add_u32 v{vXW}, s{s}, v{vL16}")
    a(f"s_waitcnt vmcnt({4*(G2PRE-1)})"); T, B = check(0); a.all(T + ["s_waitcnt lgkmcnt(8)"] + B)
    a.stamp("R")
    nxt = G2PRE; assert 2 <= G2PRE < NG
    for g in range(16):
        mf = []; f = {}
        for h in range(2):
            i = 2 * g + h
            mf += [M(A0 + 16 * t + 4 * cb, WF2 + 16 * (i % 3) + 4 * cb, ofr(g, 2 * h + t), A0 + 16 * t + 4 * cb) for cb in range(4) for t in ((0, 1) if cb % 2 == 0 else (1, 0))]
            if i + 2 < 32: spread(f, rd(i + 2), range(8 * h, 8 * h + 8))
            if i + 1 < 32: f.setdefault(8 * h + 7, []).append(f"s_waitcnt lgkmcnt({8 if i + 2 < 32 else 0})")
            if i in (S0AT, S2AT): f.setdefault(14 if h else 5, []).append("s_barrier")
        if nxt < 16 and nxt + 1 < min(16, g + NG) and g % G2RAMP == 0:
            spread(f, [adv + [ld(nxt, 0)], ld(nxt, 1), ld(nxt, 2), ld(nxt, 3), adv, ld(nxt + 1, 0), ld(nxt + 1, 1), ld(nxt + 1, 2), ld(nxt + 1, 3)], range(9)); nxt += 2
        elif nxt < 16: spread(f, adv + [ld(nxt, k) for k in range(4)], (0, 1, 2, 4, 6, 8)); nxt += 1
        if g < 15:
            T, B = check(g + 1)
            spread(f, [f"s_waitcnt vmcnt({4 * (nxt - g - 2)})"] + T + [B], (9, 10, 11, 12, 13, 15))
        if a.stamps and TRACE == 2:
            f.setdefault(3, []).extend(([f"s_lshl_b32 m0, s{sL}, 4", f"s_add_u32 m0, m0, {g-1}", "v_writelane_b32 v5, s100, m0"] if g else []) + ["s_memrealtime s[100:101]" if RT else "s_memtime s[100:101]"])
        weave(a, mf, f)
    assert 6 <= S0AT <= 9 and 20 <= S2AT <= 25
    a.stamp("g2end")
    if LAST % 2 == 0: a(f"s_cmp_eq_u32 s{sL}, {LAST}"); a("s_cbranch_scc1 L_final")
    a(f"s_bitcmp1_b32 s{sL}, 0"); a("s_cbranch_scc1 L_xodd")
    for ph in range(2):
        if ph: a.label("L_xodd"); a(f"s_cmp_eq_u32 s{sL}, {LAST}"); a("s_cbranch_scc1 L_final")
        L = []
        for fr in (0, 2, 1, 3):
            L += pack(XRES + 4 * fr, A0 + 8 * fr, ph, None if ph else vTG)
            L += [f"buffer_store_dwordx4 {vr(XRES+4*fr,4)}, v{vL16}, {sr(sIO)}, s{sTILE} offen offset:{fr*1024}", f"ds_write_b128 v{vXW}, {vr(XRES+4*fr,4)} offset:{fr*1024}"]
        a.bymode(L)
        for fr in (0, 2, 1, 3): a(f"v_cvt_pk_bf16_f32 v{XRES+4*fr}, v{A0+8*fr}, v{A0+8*fr+1}")
        a.all(stat_mfma()); a(f"s_add_u32 s{sL}, s{sL}, 1"); a("s_waitcnt lgkmcnt(0)"); a("s_branch L_cgo")

def gen(stamps=False):
    a = G(stamps)
    s = sT[1]
    a("s_cmp_ge_u32 s2, 256"); a("s_cbranch_scc1 L_end")
    if stamps: a(f"s_memtime s[{sT0}:{sT0+1}]"); a("s_memrealtime s[80:81]"); a("s_mov_b32 s70, 63"); a("s_mov_b32 s82, 0")
    a("s_load_dwordx16 s[48:63], s[0:1], 0"); a("s_load_dwordx2 s[64:65], s[0:1], 64")
    a("v_lshrrev_b32 v1, 6, v0"); a(f"v_readfirstlane_b32 s{sWID}, v1")
    a(f"v_and_b32 v{vLANE}, 63, v0"); a(f"v_lshlrev_b32 v{vL16}, 4, v{vLANE}")
    if CODEPF:
        l1 = a.skip_unless("eq", sWID, 3)
        a("s_getpc_b64 s[40:41]")
        a.label("L_pc")
        a(f"s_lshr_b32 s{s}, s2, 3"); a(f"s_mul_i32 s{s}, s{s}, {CODEPF * 128}"); a(f"v_lshlrev_b32 v28, 7, v{vLANE}"); a(f"v_add_u32 v28, s{s}, v28")
        a(f"s_mov_b32 s{s}, L_end - L_pc"); a(f"v_min_u32 v28, s{s}, v28")
        a("v_mov_b32 v29, s41"); a("v_add_co_u32 v28, vcc, s40, v28"); a("v_addc_co_u32 v29, vcc, 0, v29, vcc")
        a(f"s_mov_b64 exec, {(1 << CODEPF) - 1}"); a(f"global_load_dword v{vDUM}, v[28:29], off"); a("s_mov_b64 exec, -1")
        a.label(l1)
    a(f"s_and_b32 s{s}, s2, 7"); a(f"s_lshr_b32 s{s+1}, s2, 3"); a(f"s_lshl_b32 s{sRB}, s{s}, 1"); a(f"s_and_b32 s{s}, s{s+1}, 1"); a(f"s_add_u32 s{sRB}, s{sRB}, s{s}")
    a(f"s_lshr_b32 s{sJ}, s{s+1}, 1"); a(f"s_and_b32 s{sU}, s{sWID}, 3")
    a(f"v_lshrrev_b32 v16, 4, v{vLANE}"); a("v_lshlrev_b32 v16, 1, v16"); a(f"v_and_b32 v17, 7, v{vLANE}"); a("v_xor_b32 v16, v16, v17"); a(f"v_lshlrev_b32 v{vCH}, 4, v16")
    def common():
        srd(a, sWS, pWS, WS_SIZE); a(f"v_mov_b32 v28, {NONCE}")
        a(f"buffer_load_dwordx2 v[26:27], v28, {sr(sWS)}, 0 offen sc1")
        srd(a, sWO, pWOA, 2097152)
        a(f"s_mov_b32 s{sL}, 0"); a(f"s_mov_b32 s{sFAST}, 0"); a(f"v_mov_b32 v{vSTAMP}, 0"); (a.stamps and a("v_mov_b32 v7, 0"))
        a(f"v_bfe_u32 v28, v{vLANE}, 2, 3"); a(f"v_bfe_u32 v29, v{vLANE}, 3, 2"); a(f"v_and_b32 v30, 3, v{vLANE}")
        a("v_lshlrev_b32 v28, 7, v28"); a("v_lshlrev_b32 v29, 5, v29"); a("v_lshlrev_b32 v30, 3, v30"); a(f"v_add3_u32 v{vTR}, v28, v29, v30")
        a(f"v_and_b32 v28, 15, v{vLANE}"); a(f"v_lshrrev_b32 v29, 4, v{vLANE}"); a("v_lshlrev_b32 v29, 2, v29"); a(f"v_sub_u32 v{vD0}, v28, v29")
        a(f"s_lshl_b32 s{sWP}, s{sU}, 10"); a(f"s_lshl_b32 s{sWR}, s{sJ}, 17"); a(f"s_lshl_b32 s{s}, s{sU}, 14"); a(f"s_lshl_b32 s{s+1}, s{sJ}, 7"); (FJ == 15 or a(f"s_and_b32 s{s+1}, s{s+1}, {FJ << 7}")); a(f"s_add_u32 s{s}, s{s}, s{s+1}")
        a(f"v_lshrrev_b32 v{vWO}, 3, v{vLANE}"); a(f"v_lshlrev_b32 v{vWO}, 11, v{vWO}"); a(f"v_add3_u32 v{vWO}, v{vWO}, v{vCH}, s{s}")
        a(f"s_lshl_b32 s{s}, s{sRB}, 18"); a(f"s_lshl_b32 s{s+1}, s{sJ}, 12"); a(f"s_add_u32 s{s}, s{s}, s{s+1}"); a(f"s_lshl_b32 s{s+1}, s{sU}, 16"); a(f"s_add_u32 s{sTILE}, s{s}, s{s+1}")
        a(f"s_lshl_b32 s{s+1}, s{sT32}, 16"); a(f"s_add_u32 s{s}, s{s}, s{s+1}"); a(f"s_and_b32 s{s+1}, s{sU}, 1"); a(f"s_lshl_b32 s{s+2}, s{s+1}, 11"); a(f"s_add_u32 s{s}, s{s}, s{s+2}"); a(f"s_add_u32 s{sOA}, s{s}, {OB}")
        a(f"s_lshl_b32 s{sLO}, s{s+1}, 12"); a(f"s_sub_u32 s{s+2}, 0, s{pWS}"); a(f"s_and_b32 s{s+2}, s{s+2}, 0x3ff00"); a(f"s_add_u32 s{s+2}, s{s+2}, {KV}")
        for b in range(3):
            d = sNB[b]
            a(f"s_sub_u32 s{s}, s{sRB}, {b}"); a(f"s_lshl_b32 s{d}, s{s}, 4"); a(f"s_add_u32 s{d}, s{d}, s{sJ}"); a(f"s_lshl_b32 s{d}, s{d}, 18"); a(f"s_add_u32 s{d}, s{d}, s{s+2}")
            if POL < 2:
                a(f"s_lshr_b32 s{s}, s{s}, 1"); a(f"s_getreg_b32 s{s+1}, hwreg(HW_REG_XCC_ID, 0, 4)"); a(f"s_add_u32 s{s}, s{s}, s{s+1}"); a(f"s_sub_u32 s{s}, s{s}, s2"); a(f"s_lshr_b32 s{s}, s{s}, 2")
                a(f"s_add_u32 s{s+1}, s{d}, s{pWS}"); a(f"s_lshr_b32 s{s+1}, s{s+1}, 21"); a(f"s_xor_b32 s{s}, s{s}, s{s+1}"); a(f"s_xor_b32 s{s}, s{s}, {POL}")
            elif POL == 2: a(f"s_mov_b32 s{s}, s{sJ}")
            if POL < 3: a(f"s_and_b32 s{s}, s{s}, 1"); a(f"s_lshl_b32 s{s}, s{s}, 13"); a(f"s_add_u32 s{d}, s{d}, s{s}")
            if b: a(f"s_cmp_lt_u32 s{sRB}, {b}"); a(f"s_cselect_b32 s{d}, {OOB}, s{d}")
        for r in range(4): a(f"v_mov_b32 v{vPO+r}, -1")
        a.all(masks_A())
    def nonce():
        a(f"v_readfirstlane_b32 s{sN0}, v26"); a(f"v_readfirstlane_b32 s{sN1}, v27")
        a(f"s_add_u32 s{sN0}, s{sN0}, 1"); a(f"s_add_u32 s{sN1}, s{sN1}, 32"); a(f"s_and_b32 s{sN1}, s{sN1}, 0xffffffe0")
        a(f"s_getreg_b32 s{s}, hwreg(HW_REG_XCC_ID, 0, 4)"); a(f"s_or_b32 s{sN1}, s{sN1}, s{s}")
    a(f"s_cmp_lt_u32 s{sWID}, 4"); a("s_cbranch_scc1 L_cstart")
    a(f"s_lshl_b32 s{sMX}, s{sU}, 12"); a(f"s_mul_i32 s{sMW}, s{sU}, 6144")
    setup_w(a, True); setup_x(a, 0)
    a("s_waitcnt lgkmcnt(0)"); xsrd(a, sXS, 0); srd(a, sW, pWA, 6291456); a(f"s_andn2_b32 s{sGO}, s{sRB}, {RG}"); a(f"s_and_b32 s{sH}, s{sRB}, {RG}")
    vm = VM(a)
    if HOT: hot_setup(a, 0, 28); hot_issue(a, 0, HOT0[0], HOT0[1], 28)
    kstage(a, 0, 0); dma_w(a, WB[0]); dma_x(a, 0, 0)
    a(f"s_andn2_b32 s{sT32}, 2, s{sU}")
    common(); vm.add(("n",)); xsrd(a, sIO, 1)
    a(f"s_lshr_b32 s{s}, s{sTILE}, 16"); a(f"s_lshl_b32 s{s}, s{s}, 7"); a(f"s_add_u32 s{s}, s{s}, {SFL}"); a(f"v_and_b32 v28, 15, v{vLANE}"); a(f"v_lshl_add_u32 v{vSF}, v28, 3, s{s}")
    a(f"s_add_u32 s{s}, s{sMX}, {XB[0]}"); a(f"v_add_u32 v{vXV}, s{s}, v{vL16}")
    a(f"s_lshl_b32 s{s}, s{sU}, 7"); a(f"s_add_u32 s{s}, s{s}, {TAB}"); a(f"v_lshrrev_b32 v29, 5, v{vLANE}"); a("v_lshl_add_u32 v29, v29, 4, v28"); a(f"v_lshl_add_u32 v{vTW}, v29, 2, s{s}")
    a(f"s_min_u32 s{s}, s{sU}, 2"); a(f"s_lshl_b32 s{s}, s{s}, 8"); a(f"s_add_u32 s{s}, s{s}, {TAB+1024}"); a(f"v_lshrrev_b32 v29, 4, v{vLANE}"); a("v_lshl_add_u32 v29, v28, 2, v29"); a(f"v_lshl_add_u32 v{vCW}, v29, 2, s{s}")
    first = [lambda: (kstage(a, 0, 1), dma_x(a, 0, 1), vm.add(("x", 1), 4)), lambda: (dma_w(a, WB[1]), vm.add(("w", 1), 6)), lambda: (kstage(a, 0, 2), dma_w(a, WB[2]), vm.add(("w", 2), 6))]
    if ST0 & 4: first[0], first[1] = lambda: (kstage(a, 0, 1), dma_w(a, WB[1]), vm.add(("w", 1), 6)), lambda: (dma_x(a, 0, 1), vm.add(("x", 1), 4))
    for f in first[:ST0 & 3]: f()
    a.stamp("l_a"); vm.wait(("n",)); nonce(); a.stamp("l_b")
    a("s_barrier")
    for f in first[ST0 & 3:]: f()
    for l in range(LAST + 1):
        loader(a, l, vm)
        if l % 2 == 0:
            a("s_branch L_attL"); a.label(f"L_between{l}"); vm.q = []
        else:
            vm.wait(("wo", 11)); vm.wait(("p",)); a("s_barrier")
        between(a, l, vm)
    assert LAST >= 1; a(f"s_or_b32 s{s}, s2, s{sU}"); a(f"s_cmp_lg_u32 s{s}, 0"); a("s_cbranch_scc1 L_out")
    a(f"v_mov_b32 v22, {NONCE}"); p0, p1 = post_l(22, 24); a.all(p0 + p1)
    a("s_branch L_out")
    a.label("L_attL")
    att_A_loader(a)
    a.label("L_cstart")
    io_addr(a, 24)
    if POL == 3:
        a(f"s_lshl_b32 s47, s{sRB}, 4"); a(f"s_add_u32 s47, s47, s{sJ}"); a("s_lshl_b32 s47, s47, 11"); a(f"s_add_u32 s47, s47, s{sWID}"); a("s_lshl_b32 s47, s47, 7"); a(f"s_add_u32 s47, s47, {KV + KF + 1024}")
        a(f"v_lshrrev_b32 v32, 3, v{vLANE}"); a("v_mul_u32_u24 v32, 8064, v32"); a(f"v_add_u32 v32, v32, v{vL16}")
        for r in range(28, 32): a(f"v_mov_b32 v{r}, 0")
    a("s_waitcnt lgkmcnt(0)")
    if POL == 3:
        srd(a, sWS, pWS, WS_SIZE); a(f"s_sub_u32 s{s}, 0, s{pWS}"); a(f"s_and_b32 s{s}, s{s}, 0x3ff00"); a(f"s_add_u32 s47, s47, s{s}")
        a("s_mov_b64 exec, 0xffff"); a(f"buffer_store_dwordx4 v[28:31], v32, {sr(sWS)}, s47 offen sc1"); a("s_mov_b64 exec, -1")
    srd(a, sIO, pX, 4194304)
    for f in range(4): a(f"buffer_load_dwordx4 {vr(XRES+4*f,4)}, v{24 + (f >> 1)}, {sr(sIO)}, 0 offen offset:{(f & 1)*64}")
    a(f"s_or_b32 s{sT32}, s{sU}, 1")
    common(); srd(a, sW, pWA, 6291456)
    for d, val in ((mB0, lane_mask(lambda i, g: i & 1)), (mB1, lane_mask(lambda i, g: i & 2)), (mP0, lane_mask(lambda i, g: 4*g + (i & 1) > i)), (mP1, lane_mask(lambda i, g: 4*g + 2 + (i & 1) > i))):
        a(f"s_mov_b32 s{d}, {val & 0xffffffff}"); a(f"s_mov_b32 s{d+1}, {val >> 32}")
    c_setup(a, True); a.all(ones())
    if POL == 3:
        a(f"s_add_u32 s0, s{pWS}, s47"); a(f"s_addc_u32 s1, s{pWS+1}, 0"); a(f"s_and_b32 s35, s{sWID}, {PORD}"); a("s_lshl_b32 s36, s35, 13")
        a(f"s_lshl_b32 s37, s{sWID}, 2"); a("s_lshl_b32 s35, s35, 4"); a("s_add_u32 s37, s37, s35"); a(f"s_add_u32 s37, s37, {TAB + 1824}"); a("v_mov_b32 v29, s37"); a("v_xor_b32 v31, 16, v29")
        a(f"s_waitcnt vmcnt({PVM})"); a("s_memtime s[28:29]"); a("s_waitcnt lgkmcnt(0)")
        for k in range(2 * PN):
            a(f"s_load_dword s26, s[0:1], s36 offset:{64 * (k >> 1)}"); a("s_waitcnt lgkmcnt(0)"); a("s_memtime s[30:31]"); a("s_xor_b32 s36, s36, 8192"); a("s_waitcnt lgkmcnt(0)")
            a("s_sub_u32 s29, s30, s28"); a("s_mov_b32 s28, s30"); a(f"s_min_u32 s{38 + (k & 1)}, s29, s{38 + (k & 1) if k > 1 else 29}")
        a("v_mov_b32 v28, s38"); a("v_mov_b32 v30, s39"); a("ds_write_b32 v29, v28"); a("ds_write_b32 v31, v30")
    a.stamp("l_c"); a("s_waitcnt vmcnt(0) lgkmcnt(0)"); a.stamp("l_b")
    nonce(); a.all(stat_mfma()); xsrd(a, sIO, 1)
    for f in range(4): a.all(col_swaps(f, (16, 32)))
    a.label("L_cgo")
    consumer(a)
    tail_A(a)
    a.label("L_afin")
    a.all(pv_mf(0, 1))
    a.stamp("fin")
    finish_A(a)
    if ZPRIO: a("s_setprio 0")
    a(f"s_add_u32 s{sLO}, s{sLO}, 65536")
    if not PZ: a("s_waitcnt vmcnt(2)")
    a("s_barrier")
    a.stamp("P")
    a(f"s_cmp_lt_u32 s{sWID}, 4"); a("s_cbranch_scc1 L_g2")
    a(f"s_cmp_eq_u32 s{sL}, 0"); a("s_cbranch_scc1 L_between0"); a(f"s_branch L_between{2 if LAST >= 2 else 0}")
    tail_B(a)
    a.stamp("P")
    a.label("L_g2")
    gemm2(a)
    a.label("L_final")
    io_addr(a, 160)
    for f in (0, 2, 1, 3):
        for p in range(4 * f, 4 * f + 4): a(f"v_cvt_pk_bf16_f32 v{XRES+p}, v{A0+2*p}, v{A0+2*p+1}")
    for f in (0, 2, 1, 3): a.all(col_swaps(f, (32,)))
    for f in (0, 1, 2, 3):
        a.all(col_swaps(f, (16,))); a(f"buffer_store_dwordx4 {vr(XRES+4*f,4)}, v{160 + (f >> 1)}, {sr(sIO)}, 0 offen offset:{(f & 1)*64}")
    a.label("L_out")
    a.stamp("end")
    if stamps:
        a("s_waitcnt lgkmcnt(0)"); a("s_mov_b32 m0, s70"); a(f"v_writelane_b32 v{vSTAMP}, s82, m0")
        a("s_memrealtime s[82:83]"); a("s_waitcnt lgkmcnt(0)"); a("v_writelane_b32 v7, s80, 0"); a("v_writelane_b32 v7, s82, 1"); a(f"v_writelane_b32 v7, s{80 if RT else sT0}, 2"); a(f"v_writelane_b32 v7, s{sNB[0]}, 3"); a(f"v_writelane_b32 v7, s{sN1}, 4")
        a(f"s_lshl_b32 s{s}, s2, 11"); a(f"s_lshl_b32 s{s+1}, s{sWID}, 8"); a(f"s_add_u32 s{s}, s{s}, s{s+1}"); a(f"s_add_u32 s{s}, s{s}, {STAMP}")
        a(f"v_lshlrev_b32 v16, 2, v{vLANE}"); a(f"buffer_store_dword v{vSTAMP}, v16, {sr(sWS)}, s{s} offen")
        a(f"s_add_u32 s{s}, s{s}, {1 << 20}"); a(f"buffer_store_dword v7, v16, {sr(sWS)}, s{s} offen")
        if TRACE: a(f"s_add_u32 s{s}, s{s}, {1 << 19}"); a(f"buffer_store_dword v5, v16, {sr(sWS)}, s{s} offen")
    a("s_endpgm")
    a.all(x.strip() for x in a.tail)
    a.label("L_end")
    a("s_endpgm")
    body, n = hazard.fix(a.text())
    hdr = open(HERE + "/header3.txt").read().rstrip("\n").split("\n")
    hdr.append("; @launch grid=(256,1,1) block=(512,1,1) lds=163840")
    return kernel_file(hdr, [(KNAME, body, 256, 102 if stamps else 100, 256)]), n

if __name__ == "__main__":
    for x in sys.argv[2:]:
        if "=" in x: k, v = x.split("=", 1); assert k in globals(), k; globals()[k] = eval(v)
    txt, n = gen("stamps" in sys.argv)
    open(sys.argv[1], "w").write(txt)
    print("lines", txt.count("\n"), "nops inserted", n)
```

```python
from hazard import I, need, regs, TRANS
def cost(x):
    o = x.op
    if x.mfma or o.startswith(TRANS) or o.startswith("v_permlane"): return 8
    if o.startswith("ds_write"): return 24
    if o.startswith("buffer_store"): return 16
    return 4
def sched(L, before=(), prio=None):
    ins = []; n = len(L)
    for x in L:
        t, extra = x if isinstance(x, tuple) else (x, ())
        i = I(t); assert i.op and not i.label and not i.op.startswith(("s_cbranch", "s_branch")), t
        i.d = set(i.d) | {("v", r) for r in extra}
        if i.valu and i.op.startswith("v_cndmask") and len(i.ops) == 4 and i.ops[3] == "vcc": i.u |= {("vcc", 0)}
        if i.valu or i.mfma or i.ds or i.vmem: i.u = set(i.u) | {("exec", 0)}
        ins.append(i)
    pred = [set() for _ in range(n)]
    for c in range(n):
        for p in range(c):
            P, C = ins[p], ins[c]
            if P.d & (C.u | C.d) or P.u & C.d: pred[c].add(p)
            elif not (P.valu or P.mfma) and not (C.valu or C.mfma): pred[c].add(p)
    succ = [[c for c in range(n) if p in pred[c]] for p in range(n)]
    cp = [0] * n
    for p in reversed(range(n)): cp[p] = cost(ins[p]) + max([0] + [4 * need(ins[p], ins[c]) + cp[c] for c in succ[p]])
    import random
    rng = random.Random(1); nd = {}
    def N(P, C):
        k = (id(P), id(C))
        if k not in nd: nd[k] = need(P, C)
        return nd[k]
    ctx = [I(x) for x in before]; nops = [I(f"s_nop {k}") for k in range(16)]
    def run(w, mb, noise):
        pr = [cp[c] + w * (n - c) + mb * ins[c].mfma + noise * rng.random() for c in range(n)]
        done = list(ctx); out = []; t = 0; lastm = -8 if done and done[-1].mfma else -100
        cnt = [len(p) for p in pred]; ready = {c for c in range(n) if not cnt[c]}
        while ready:
            best = None
            for c in ready:
                C = ins[c]; nop = 0; d = 0
                for P in reversed(done[-10:]):
                    nop = max(nop, N(P, C) - d); d += P.states()
                st = t + 4 * nop
                if C.mfma: st = max(st, lastm + 16)
                if C.op.startswith(("v_pk_", "v_dot")): st = max(st, lastm + 28)
                if C.ds and done and done[-1].valu: st += 8
                key = (st - t, -pr[c], c)
                if best is None or key < best[0]: best = (key, c, st, nop)
            _, c, st, nop = best
            if nop: done.append(nops[nop - 1])
            done.append(ins[c]); out.append(ins[c].text); ready.remove(c)
            for q in succ[c]:
                cnt[q] -= 1
                if not cnt[q]: ready.add(q)
            if ins[c].mfma: lastm = st
            t = st + cost(ins[c])
        return t, out
    best = min((run(w, mb, nz) for w in (0, 1, 2, 4, 8, 30) for mb in (0, 1000) for nz in (0, 20, 60)), key=lambda r: r[0])
    sched.log.append((best[0], sum(map(cost, ins))))
    return best[1]
sched.log = []
```

```python
import sys, os, struct, math
HERE = os.path.dirname(os.path.abspath(__file__)); sys.path.insert(0, HERE + "/../tools")
from asmlib import *
import hazard
from sched import sched

KB, MB = 1 << 10, 1 << 20
ST, CSP, SFL, CSFL, NONCE = 0, 256 * KB, 768 * KB, 800 * KB, 824 * KB
OB, KV, STAMP, WS_SIZE = 2 * MB, 80 * MB, 70 * MB, 160 * MB
HB, KF = 128 * KB, 144 * KB
XB = [48 * KB, 64 * KB, 80 * KB]; WB = [136 * KB, 0, 24 * KB]
TAB, HX, SX = 128 * KB, 130 * KB, 134 * KB
QX, OWN, REM = 48 * KB, 64 * KB, 96 * KB
BIG = 0xF149F2CA
QSCALE = struct.unpack("<I", struct.pack("<f", 32 ** -0.5 * math.log2(math.e)))[0]
WSTEP = 64 * 6144
SPIN = 1 << 18
OOB = 0x40000000
RT = 0; SKIP = []; FORCE_EXACT = 0; FORCE_SLOW = 0; DIAG = 0; POL = 3; PN = 2; PORD = 1; PVM = 5; DZ = {}; CAP = {**{(0, n): 6 for n in range(1, 7)}, **{(1, n): 7 for n in range(5, 10)}}; NOI = 0; FJ = 15; TRACE = 0
NG = 6; S0AT = 9; S2AT = 20; HOT = 1; HOTD = 4; HOT0 = (0, 5); WOHOT = 14; CODEPF = 15; NF0 = 10; NF1 = 5; NP1 = 2; OI = [3, 4, 5, 6]; OID = 2; NL0 = [11, 11, 12, 12, 14, 14]; NL1 = [8, 9, 10, 11, 13, 14]; NCF0 = 9; NCF1 = 10; APOLL = 1; PZ = 6; WREG = 0; WRH = (5, 11); DUTY = (1, 3); ST0 = 5; BAR0 = 6; PREP = 1; BCUT = 0
WARM = []; SWARM = [(0, 6, 'woa', 0, 8), (0, 7, 'woa', 8, 8), (0, 8, 'woa', 16, 8), (0, 9, 'woa', 24, 8), (1, 8, 'wob', 0, 8), (1, 9, 'wob', 8, 8), (1, 10, 'wob', 16, 8), (1, 11, 'wob', 24, 8)]; TRICKLE = 0; HPAT = 99
WOA = [range(0, 6), range(6, 12), []]; WOB = [[*range(0, 6), *range(16, 20)], [*range(6, 12), *range(20, 24)], range(12, 16), range(24, 32)]
HANDA = []; HANDB = []; PXF = ' sc1'
G2PRE = 2; G2RAMP = 2; V0 = 1; FST = ''; HOTS = [(0, 5, 4), (4, 9, 4), (8, 13, 4)]; G2E = 1; TO3 = 0; TOA = 0; LPRIO = 0; SUM0 = 0; RD2 = 1; VG = [1, 5, 6]; LATE = 30; F1AT = 1; ZH = 1; WZ = 8; WZL = 4; ZPRIO = 1; RG = 1; RG1 = 1; ROTL = [1]; F2A = 4; WT = 0; WOT = 99; OP0 = 1; WOY = [22, 23, 14, 15]
WSCH = [[[], ['h', 0], [1, 2]]] * 3; WP = [None, None, None]; ATAT = [0, 2, 4, 7, 11]; LAST = 3

sW, sWO, sWS, sIO, sXS = 4, 8, 12, 16, 88
sWID, sRB, sJ, sL, sFAST, sN0, sN1 = 3, 20, 21, 22, 23, 24, 25
sT = list(range(26, 48))
pX, pWA, pWOA, pWB, pWOB, pOUT, pDBG, pWS = 48, 50, 52, 56, 58, 60, 62, 64
sT0 = 66
sTILE, sOA, sKVS, sCNT, sU, sXO, sWOF, sMX, sMW = 71, 72, 73, 74, 75, 76, 77, 78, 79
sT32, sWP, sWR = 84, 85, 86
sNB, sLO = [sKVS, 87, 34], 33
sH, sGO = 54, 55
mB0, mB1, mP0, mP1 = 92, 94, 96, 98
vL16, vLANE, vTR, vWO, vD0, vSTAMP = 0, 1, 2, 3, 4, 6
XRES = 8
vDUM = 255

def vr(r, n): return f"v[{r}:{r+n-1}]"
def sr(r, n=4): return f"s[{r}:{r+n-1}]"
def M(d, A, B, C): return f"v_mfma_f32_16x16x32_bf16 {vr(d,4)}, {vr(A,4)}, {vr(B,4)}, {C if isinstance(C,str) else vr(C,4)}"
STAMPS = ["g1start", "g1kv", "epi", "qmm", "Y", "loc", "Z", "Z2", "fin", "P", "R", "g2end", "l_a", "l_b", "l_c", "end"]

class G(Asm):
    def __init__(self, stamps):
        super().__init__(); self.stamps = stamps; self.tail = []
    def all(self, L):
        for x in L: self(x)
    def stamp_l(self, name):
        if not self.stamps or SKIP == 'all' or name in SKIP: return []
        return ["s_mov_b32 s69, m0", "s_mov_b32 m0, s70", f"v_writelane_b32 v{vSTAMP}, s82, m0", "s_memrealtime s[82:83]" if RT else "s_memtime s[82:83]",
                f"s_mul_i32 s70, s{sL}, 16", "s_mov_b32 m0, s69"] + [f"s_bitset1_b32 s70, {b}" for b in range(4) if STAMPS.index(name) >> b & 1]
    def stamp(self, name): self.all(self.stamp_l(name))
    def skip_unless(self, cond, sreg, imm):
        l = self.newlabel("Lw")
        self(f"s_cmp_{cond}_u32 s{sreg}, {imm}"); self(f"s_cbranch_scc0 {l}")
        return l
    def bymode(self, L):
        sl, dn = self.newlabel("Lslow"), self.newlabel("Lback")
        self(f"s_cmp_eq_u32 s{sFAST}, 0"); self(f"s_cbranch_scc1 {sl}")
        self.all(L); self.label(dn)
        self.tail += [sl + ":"] + [x + " sc1" if x.startswith("buffer_store") else x for x in L] + [f"s_branch {dn}"]
    def flagtest(self, vt, ok, fail=None):
        self(f"v_xor_b32 v{vt+2}, s{sN0}, v{vt}"); self(f"v_xor_b32 v{vt+3}, s{sN1}, v{vt+1}")
        self(f"v_lshrrev_b32 v{vt+3}, 5, v{vt+3}"); self(f"v_or_b32 v{vt+2}, v{vt+2}, v{vt+3}")
        self(f"v_cmp_ne_u32 vcc, 0, v{vt+2}"); self(f"s_cbranch_vccz {ok}" if ok else f"s_cbranch_vccnz {fail}")
    def flagload(self, vt, vaddr, off=0):
        if off == "atomic":
            self(f"v_mov_b32 v{vt}, 0"); self(f"v_mov_b32 v{vt+1}, 0"); self(f"buffer_atomic_or_x2 {vr(vt,2)}, v{vaddr}, {sr(sWS)}, 0 offen sc0")
        else: self(f"buffer_load_dwordx2 {vr(vt,2)}, v{vaddr}, {sr(sWS)}, 0 offen offset:{off} sc1")
    def poll(self, vaddr, vt, off=0):
        lp, ok = self.newlabel("Lpoll"), self.newlabel("Lok")
        self(f"s_mov_b32 s{sT[0]}, 0")
        self.label(lp)
        self.flagload(vt, vaddr, off); self("s_waitcnt vmcnt(0)")
        self.flagtest(vt, ok)
        self(f"s_add_u32 s{sT[0]}, s{sT[0]}, 1"); self(f"s_cmp_lt_u32 s{sT[0]}, {SPIN}"); self(f"s_cbranch_scc1 {lp}")
        self.label(ok)
def post_l(vaddr, vt, off=0, fl=" sc1"):
    return [f"v_mov_b32 v{vt}, s{sN0}", f"v_mov_b32 v{vt+1}, s{sN1}"], ["s_mov_b64 exec, 1", f"buffer_store_dwordx2 {vr(vt,2)}, v{vaddr}, {sr(sWS)}, 0 offen offset:{off}{fl}", "s_mov_b64 exec, -1"]
def weave(a, mf, fill):
    for m, x in enumerate(mf):
        a(x)
        for y in fill.get(m, ()): a(y)
def spread(fill, L, gaps):
    gaps = list(gaps); assert len(L) <= len(gaps), (len(L), len(gaps))
    for g, x in zip(gaps, L): fill.setdefault(g, []).extend(x if isinstance(x, list) else [x])
def rr(*streams):
    out = []; n = max(map(len, streams))
    for k in range(n): out += [s[k] for s in streams if k < len(s)]
    return out
def poison_test(t, regs):
    L = []; regs = list(regs); cur = regs.pop(0)
    while regs:
        if len(regs) >= 2: L.append(f"v_max3_u32 v{t}, v{cur}, v{regs[0]}, v{regs[1]}"); regs = regs[2:]
        else: L.append(f"v_max_u32 v{t}, v{cur}, v{regs[0]}"); regs = []
        cur = t
    return L + [f"v_cmp_eq_u32 vcc, -1, v{cur}"]
def pack(d, r, t, tmp=None):
    C = [f"v_cvt_pk_bf16_f32 v{d+k}, v{r+2*k}, v{r+2*k+1}" for k in range(4)]; S = "dst_sel:WORD_0 dst_unused:UNUSED_PRESERVE src0_sel:WORD_1 src1_sel:DWORD"
    u = r if tmp is None else tmp
    if t: return ([] if tmp is None else [f"v_mov_b32 v{u}, v{r}"]) + C[:2] + [f"v_or_b32_sdwa v{d}, v{u}, 1 {S}"] + C[2:]
    return [f"v_add_u32 v{u}, 0x10000, v{r}"] + C[:2] + [f"v_and_b32_sdwa v{d}, v{u}, -2 {S}"] + C[2:]
def tag_test(t, d, ph):
    if ph == 0: return [f"v_or3_b32 v{t}, v{d[0]}, v{d[1]}, v{d[2]}", f"v_bitop3_b32 v{t}, v{t}, v{d[3]}, 1 bitop3:0xa8", f"v_cmp_ne_u32 vcc, 0, v{t}"]
    if ph == 1: return [f"v_bitop3_b32 v{t}, v{d[0]}, v{d[1]}, v{d[2]} bitop3:0x80", f"v_bitop3_b32 v{t}, v{t}, v{d[3]}, 1 bitop3:0x80", f"v_cmp_eq_u32 vcc, 0, v{t}"]
    return [f"v_bitop3_b32 v{t}, v{d[0]}, v{d[1]}, {ph} bitop3:0x7e", f"v_bitop3_b32 v{t+1}, v{d[2]}, v{d[3]}, {ph} bitop3:0x7e", f"v_bitop3_b32 v{t}, v{t}, v{t+1}, 1 bitop3:0xa8", f"v_cmp_ne_u32 vcc, 0, v{t}"]
clean = lambda d, s=None: f"v_min_u32 v{d}, -2, v{d if s is None else s}"

def io_addr(a, v):
    s = sT[1]
    a(f"s_lshl_b32 s{s}, s{sRB}, 2"); a(f"s_add_u32 s{s}, s{s}, s{sWID}"); a(f"s_lshl_b32 s{s}, s{s}, 16"); a(f"s_lshl_b32 s{s+1}, s{sJ}, 7"); a(f"s_add_u32 s{s}, s{s}, s{s+1}")
    a(f"v_and_b32 v{v}, 15, v{vLANE}"); a(f"v_lshlrev_b32 v{v}, 11, v{v}"); a(f"v_and_b32 v{v+1}, 48, v{vLANE}")
    a(f"v_add3_u32 v{v}, v{v}, v{v+1}, s{s}"); a(f"v_add_u32 v{v+1}, 32768, v{v}")
def col_swaps(f, order): return [f"v_permlane{w}_swap_b32 v{XRES+4*f+k}, v{XRES+4*f+k+2}" for w in order for k in range(2)]

LX, LW, vHOT, vCS = 8, 12, 18, 20
vSF, vXV, vTW, vCW, vCF, vKF, vPO, vCH = 168, 169, 170, 171, 172, 174, 176, 173
S_, SELA = 24, 64
def setup_w(a, first):
    s = sT[1]
    a(f"v_lshrrev_b32 v{LW}, 3, v{vLANE}")
    if first:
        a(f"v_lshrrev_b32 v{LW+1}, 5, v{vLANE}"); a(f"v_lshl_add_u32 v{LW}, v{LW+1}, 2, v{LW}")
        a(f"s_lshr_b32 s{s}, s{sU}, 1"); a(f"s_lshl_b32 s{s}, s{s}, 3"); a(f"s_and_b32 s{s+1}, s{sU}, 1"); a(f"s_add_u32 s{s}, s{s}, s{s+1}"); a(f"s_mul_i32 s{s}, s{s}, {4*6144}")
    else: a(f"s_mul_i32 s{s}, s{sU}, {16*6144}")
    a(f"v_mul_u32_u24 v{LW}, 6144, v{LW}"); a(f"s_lshl_b32 s{s+1}, s{sJ}, 7"); (FJ == 15 or a(f"s_and_b32 s{s+1}, s{s+1}, {FJ << 7}")); a(f"s_add_u32 s{s}, s{s}, s{s+1}"); a(f"v_add3_u32 v{LW}, v{LW}, v{vCH}, s{s}")
    for k in range(1, 6): a(f"v_add_u32 v{LW+k}, {(k//3)*(16 if first else 8)*6144 + (k%3)*1024}, v{LW}")
def setup_x(a, l):
    s = sT[1]
    a(f"s_lshl_b32 s{s}, s{sRB}, 2"); a(f"s_add_u32 s{s}, s{s}, s{sU}"); a(f"s_lshl_b32 s{s}, s{s}, 16")
    if l == 0:
        a(f"v_lshrrev_b32 v{LX+1}, 4, v{vLANE}"); a(f"v_and_b32 v{LX+2}, 7, v{vLANE}"); a(f"v_xor_b32 v{LX+1}, v{LX+1}, v{LX+2}"); a(f"v_lshlrev_b32 v{LX+1}, 4, v{LX+1}")
        a(f"v_lshrrev_b32 v{LX+2}, 3, v{vLANE}"); a(f"v_lshlrev_b32 v{LX+2}, 11, v{LX+2}"); a(f"v_add3_u32 v{LX}, v{LX+1}, v{LX+2}, s{s}")
        a(f"v_xor_b32 v{LX+1}, 64, v{LX}"); a(f"v_add_u32 v{LX+2}, {2*15360}, v{LX}"); a(f"v_add_u32 v{LX+3}, {3*15360}, v{LX+1}"); a(f"v_add_u32 v{LX+1}, 15360, v{LX+1}")
    elif l == 1: a(f"v_add_u32 v{LX}, s{s}, v{vL16}")
def xsrd(a, d, l):
    srd(a, d, pOUT if l else pX, 4194304)
def kstage(a, l, n, x=True, w=True):
    t = sXO if x else sWOF
    if l in ROTL and n: a(f"s_add_u32 s{t}, s{sGO}, {n}"); a(f"s_cmp_ge_u32 s{t}, 16"); a(f"s_addc_u32 s{t}, s{t}, s{sJ}")
    else: a(f"s_add_u32 s{t}, s{sJ if l else sGO}, {n}")
    a(f"s_and_b32 s{t}, s{t}, 15")
    if w: a(f"s_mul_i32 s{sWOF}, s{t}, {WSTEP}")
    if x: a(f"s_lshl_b32 s{sXO}, s{t}, {12 if l else 7}")
def dma_w(a, base, so=sWOF):
    for i in range(2):
        a(f"s_add_u32 m0, s{sMW}, {base + i*3072}")
        for seg in range(3): a(f"buffer_load_dwordx4 v{LW+i*3+seg}, {sr(sW)}, s{so} offen offset:{seg*1024} lds")
def dma_x(a, l, n):
    a(f"s_add_u32 m0, s{sMX}, {XB[n % 3]}")
    for k in range(4): a(f"buffer_load_dwordx4 v{LX + (0 if l else k)}, {sr(sIO if l else sXS)}, s{sXO} offen offset:{k*1024} sc1 lds")
def hot_line(a, v, q, base):
    s = sT[4]
    a(f"s_lshr_b32 s{s}, s{base}, 7"); a(f"s_sub_u32 s{s}, 3, s{s}"); a(f"s_and_b32 s{s}, s{s}, 7"); a(f"s_lshl_b32 s{s}, s{s}, 7")
    a(f"v_and_b32 v{v}, 1, v{q}"); a(f"v_lshlrev_b32 v{v}, 10, v{v}"); a(f"v_lshrrev_b32 v{q}, 1, v{q}"); a(f"v_lshlrev_b32 v{q}, 11, v{q}")
    a(f"v_add3_u32 v{v}, v{v}, v{q}, s{s}")
def hot_setup(a, l, t):
    s = sT[1]
    a(f"s_lshr_b32 s{s}, s2, 3"); a(f"s_mul_i32 s{s}, s{s}, 12"); a(f"s_mul_i32 s{s+1}, s{sU}, 3"); a(f"s_add_u32 s{s}, s{s}, s{s+1}")
    a(f"v_mul_u32_u24 v{vHOT+1}, 21846, v{vLANE}"); a(f"v_lshrrev_b32 v{vHOT+1}, 16, v{vHOT+1}")
    a(f"v_mul_u32_u24 v{t}, 3, v{vHOT+1}"); a(f"v_sub_u32 v{t}, v{vLANE}, v{t}"); a(f"v_add_u32 v{t}, s{s}, v{t}")
    hot_line(a, vHOT, t, sW)
    if l and l not in ROTL: a(f"v_bfe_u32 v{t}, v{vHOT}, 7, 4"); a(f"v_add_u32 v{vHOT+1}, v{vHOT+1}, v{t}")
    else: a(f"s_and_b32 s{s}, s{sRB}, {14 & ~(RG1 if l else RG)}"); a(f"v_add_u32 v{vHOT+1}, s{s}, v{vHOT+1}")
def hot_issue(a, l, first, count, t):
    s = sT[1]
    a(f"v_add_u32 v{t}, {first}, v{vHOT+1}")
    if l in ROTL: a(f"v_lshrrev_b32 v{t+1}, 4, v{t}"); a(f"v_lshrrev_b32 v{t+2}, 7, v{vHOT}"); a(f"v_add3_u32 v{t}, v{t}, v{t+1}, v{t+2}")
    a(f"v_and_b32 v{t}, 15, v{t}")
    a(f"s_mov_b32 s{s}, {WSTEP}"); a(f"v_mad_u32_u24 v{t}, v{t}, s{s}, v{vHOT}")
    a(f"s_mov_b64 exec, {(1 << (3 * count)) - 1}")
    a(f"buffer_load_dword v{vDUM}, v{t}, {sr(sW)}, 0 offen")
    a("s_mov_b64 exec, -1")
def hot_slab(t, sd, v):
    s = sT[1]; per = 6
    t(f"s_lshr_b32 s{s}, s2, 3"); t(f"s_lshl_b32 s{s}, s{s}, 2"); t(f"s_add_u32 s{s}, s{s}, s{sU}")
    t(f"s_lshr_b32 s{s+1}, s{s}, 5"); t(f"s_and_b32 s{s}, s{s}, 31"); t(f"s_mul_i32 s{s}, s{s}, {per*2048}")
    t(f"s_lshr_b32 s{s+2}, s{sd}, 7"); t(f"s_sub_u32 s{s+2}, 3, s{s+2}"); t(f"s_and_b32 s{s+2}, s{s+2}, 7"); t(f"s_and_b32 s{s+3}, s{s+1}, 1"); t(f"s_lshl_b32 s{s+3}, s{s+3}, 3"); t(f"s_add_u32 s{s+2}, s{s+2}, s{s+3}")
    t(f"s_lshr_b32 s{s+1}, s{s+1}, 1"); t(f"s_and_b32 s{s+3}, s{sRB}, 14"); t(f"s_add_u32 s{s+1}, s{s+1}, s{s+3}")
    t(f"s_add_u32 s{s+1}, s{s+1}, s{s+2}"); t(f"s_and_b32 s{s+1}, s{s+1}, 15")
    t(f"s_mul_i32 s{s+1}, s{s+1}, {WSTEP}"); t(f"s_add_u32 s{s}, s{s}, s{s+1}"); t(f"s_lshl_b32 s{s+2}, s{s+2}, 7"); t(f"s_add_u32 s{s}, s{s}, s{s+2}")
    t(f"v_lshlrev_b32 v{v}, 11, v{vLANE}")
    t(f"s_mov_b64 exec, {(1 << per) - 1}"); t(f"buffer_load_dword v{vDUM}, v{v}, {sr(sd)}, s{s} offen"); t("s_mov_b64 exec, -1")
def wo_one(step):
    s = sT[10]
    return [f"s_add_u32 m0, s{sWP}, {step*4096}", f"s_add_u32 s{s}, s{sWR}, {step*65536}", f"s_and_b32 s{s}, s{s}, 0x1fffff", f"buffer_load_dwordx4 v{vWO}, {sr(sWO)}, s{s} offen lds"]

class VM:
    def __init__(self, a): self.a = a; self.q = []
    def add(self, tag, n=1): self.q += [tag] * n
    def wait(self, tag):
        if tag not in self.q: return
        last = max(i for i, t in enumerate(self.q) if t == tag)
        y = self.q[last + 1:]; self.q = y
        n = sum(1 for t in y if t[0] != "if"); c = sorted({t[1] for t in y if t[0] == "if"})
        assert n + 6 <= 63
        if c:
            a = self.a; l0, l1 = a.newlabel("Lvm"), a.newlabel("Lvm"); assert c == list(range(c[0], c[-1] + 1))
            a(f"s_sub_u32 s{sT[1]}, s{sH}, {c[0]}"); a(f"s_cmp_lt_u32 s{sT[1]}, {len(c)}"); a(f"s_cbranch_scc1 {l0}")
            a(f"s_waitcnt vmcnt({n})"); a.label(l0); a(f"s_waitcnt vmcnt({n + 6})")
        else: self.a(f"s_waitcnt vmcnt({n})")
    def wait_wo(self):
        w = [t for t in self.q if t[0] == "wo"]
        if w: self.wait(w[-1])
    def wo(self, steps):
        for st in steps: self.a.all(wo_one(st)); self.add(("wo", st))

def slab_sums(a, base, parts="rmw"):
    s = sT[1]; F, D, A = S_, 48, 60
    if "r" in parts:
        a(f"v_lshrrev_b32 v{A}, 5, v{vLANE}"); a(f"v_mul_u32_u24 v{A}, 3072, v{A}"); a(f"s_add_u32 s{s}, s{sMW}, {base}"); a(f"v_add3_u32 v{A}, v{A}, v{vTR}, s{s}")
        for cb in range(1, 4): a(f"v_xor_b32 v{A+cb}, {32*cb}, v{A}")
        for seg in range(3):
            for cb in range(4): a(f"ds_read_b64_tr_b16 {vr(F+8*seg+2*cb,2)}, v{A+cb} offset:{seg*1024}")
    if "m" in parts:
        a(f"v_bfe_u32 v{D}, v{vLANE}, 2, 2"); a(f"v_lshlrev_b32 v{D}, v{D}, 1")
        for cb in range(4):
            a(f"v_bfe_i32 v{SELA+2*cb}, v{D}, {cb}, 1"); a(f"v_and_b32 v{SELA+2*cb}, 0x3f803f80, v{SELA+2*cb}"); a(f"v_mov_b32 v{SELA+2*cb+1}, v{SELA+2*cb}")
        a("s_waitcnt lgkmcnt(0)")
        for h in range(2):
            for seg in range(3): a(M(D + 4 * seg, SELA + 4 * h, F + 8 * seg + 4 * h, D + 4 * seg if h else "0"))
    if "w" in parts:
        a(f"s_mul_i32 s{s}, s{sU}, 768"); a(f"s_add_u32 s{s}, s{s}, {HX}"); a(f"v_lshl_add_u32 v{A}, v{vLANE}, 2, s{s}")
        for seg in range(3): a(f"ds_write_b32 v{A}, v{D+4*seg} offset:{seg*256}")
        a("s_waitcnt lgkmcnt(0)")
def cs_off(a, d, l, unit, base):
    a(f"s_lshl_b32 s{d}, s{sJ}, 2"); a(f"s_add_u32 s{d}, s{d}, s{sU}"); a(f"s_mul_i32 s{d}, s{d}, {unit}"); a(f"s_add_u32 s{d}, s{d}, {base + l*64*unit}")
def slab_publish(a, l):
    s = sT[1]; F = S_
    a(f"s_min_u32 s{s}, s{sU}, 2"); a(f"s_lshl_b32 s{s}, s{s}, 8"); a(f"s_add_u32 s{s}, s{s}, {HX}"); a(f"v_lshl_add_u32 v{F}, v{vLANE}, 2, s{s}")
    for k in range(4): a(f"ds_read_b32 v{F+1+k}, v{F} offset:{k*768}")
    cs_off(a, s, l, 4096, CSP); a(f"s_lshl_b32 s{s+1}, s{sRB}, 8"); a(f"s_add_u32 s{s}, s{s}, s{s+1}"); a(f"v_lshlrev_b32 v{F}, 2, v{vLANE}")
    a("s_waitcnt lgkmcnt(0)")
    a(f"v_add_f32 v{F+1}, v{F+1}, v{F+2}"); a(f"v_add_f32 v{F+3}, v{F+3}, v{F+4}"); a(f"v_add_f32 v{F+1}, v{F+1}, v{F+3}")
    a(f"buffer_store_dword v{F+1}, v{F}, {sr(sWS)}, s{s} offen sc1")
def halves(w):
    s = sT[1]
    return [x for b in range(3) for x in (f"s_lshr_b32 s{s}, s{w}, {2-b}", f"s_and_b32 s{s}, s{s}, 8192", f"s_add_u32 s{sNB[b]}, s{sNB[b]}, s{s}")]
def slab_post(a, l):
    s = sT[1]; F = S_ + 20
    cs_off(a, s, l, 128, CSFL); a(f"v_and_b32 v{vCF}, 15, v{vLANE}"); a(f"v_lshl_add_u32 v{vCF}, v{vCF}, 3, s{s}")
    a(f"s_lshl_b32 s{s+1}, s{sRB}, 3"); a(f"s_add_u32 s{s}, s{s}, s{s+1}"); a(f"v_mov_b32 v{F+2}, s{s}")
    p0, p1 = post_l(F + 2, F); a.all(p0)
    if l == 0 and POL == 3: a(f"v_or_b32 v{F+1}, v{F+1}, v{vCS+2}")
    a.all(p1)

def chunks(a, L, k):
    L = [x.strip() for x in L]
    return [(lambda part: lambda: a.all(part))(L[i:i + k]) for i in range(0, len(L), k)]
def hand(a, vm, l, what, PXF=''):
    s = sT[1]
    if what[1] == "x" and l >= LAST or what[0] == "p" and l: return []
    sd = sIO if what[1] == "x" else sWS; off = 0 if what[1] == "x" else OB
    def st(k):
        a(f"s_add_u32 s{s}, s{sTILE}, {off}"); (a.all if PXF else a.bymode)([f"buffer_store_dwordx4 {vr(vPO,4)}, v{vL16}, {sr(sd)}, s{s} offen offset:{k*1024}{PXF}"]); vm.add(("p",))
    def touch():
        a(f"s_add_u32 s{s}, s{sTILE}, {off}"); a(f"v_lshlrev_b32 v{S_+22}, 3, v{vL16}")
        a("s_mov_b32 exec_hi, 0"); a(f"buffer_load_dword v{vDUM}, v{S_+22}, {sr(sd)}, s{s} offen sc1"); a("s_mov_b64 exec, -1"); vm.add(("hot",))
    return [touch] if what[0] == "t" else [(lambda k: lambda: st(k))(k) for k in range(4)]
def halo_fill(a, k):
    s = sT[1]
    a(f"s_add_u32 s{s}, s{sWP}, {HB + k * 4096}"); a(f"s_add_u32 s{s}, s{s}, s{sNB[0]}")
    a(f"buffer_store_dwordx4 {vr(vPO,4)}, v{vL16}, {sr(sWS)}, s{s} offen sc1")
def swarm(what, lo, cnt):
    s = sT[1]; p = {"woa": pWOA, "wob": pWOB, "wb": pWB}[what]
    return [f"s_lshl_b32 s{s}, s2, 2", f"s_add_u32 s{s}, s{s}, s{sU}", f"s_mul_i32 s{s}, s{s}, {6144 if what == 'wb' else 2048}", "s_nop 0", f"s_add_u32 s44, s{p}, s{s}", f"s_addc_u32 s45, s{p+1}, 0"] + [f"s_load_dword s46, s[44:45], {k*64}" for k in range(lo, lo + cnt)]
def loader(a, l, vm):
    S, G = S_, S_ + 24
    s = sT[1]; A = l % 2 == 0
    NR = RG1 + 1 if l else RG; NS, NP = NR + 1, NR + 2
    if SUM0: assert RG == RG1 == 0; NR, NS, NP = (-1, -1, 0) if l else (0, 0, 1)
    NF = NF0 if l == 0 else NF1; NPOST = (max(OI) + OID if l == 0 else NP1); NL = NL0 if l == 0 else NL1; assert 2 <= NPOST < NF
    NCF = NCF0 if l == 0 else NCF1
    if LPRIO: a(f"s_setprio {LPRIO}")
    for n in range(17):
        if n == 16 and LPRIO: a("s_setprio 0")
        if n <= 13 and (n or not (l and V0)): kstage(a, l, n + 2, w=n > 0); a(f"s_add_u32 m0, s{sMX}, {XB[(n + 2) % 3]}")
        if n:
            vm.wait(("x", n)); vm.wait(("w", n))
            if n == 15 or n == 14 and l == 0: a("s_waitcnt lgkmcnt(0)")
            if l == 0 and n in DZ and DZ[n] > 0: a(f"s_sleep {DZ[n]}")
            if l == 0 and n in DZ and DZ[n] < 0:
                lp = a.newlabel("Ldz"); a(f"s_mov_b32 s{s}, s{sJ}"); a.label(lp); a(f"s_sleep {-DZ[n]}"); a(f"s_sub_u32 s{s}, s{s}, 1"); a(f"s_cbranch_scc0 {lp}")
            a("s_barrier")
            if a.stamps and TRACE:
                if n > 1: a(f"v_writelane_b32 v5, s100, {l*16 + n - 1}")
                a("s_memrealtime s[100:101]" if RT else "s_memtime s[100:101]")
            if n == 1: a.stamp("l_c")
        D = []; X = []; late = []
        if n <= 13:
            t = G_(a); dma_x(t, l, n + 2); D += [([x], ("x", n + 2)) for x in t.lines[1:]]
            if n:
                t = G_(a); dma_w(t, WB[(n + 2) % 3]); L = t.lines
                D += [(x, ("w", n + 2)) for x in (L[0:2], L[2:3], L[3:4], L[4:6], L[6:7], L[7:8])]
        wo = []
        if not A and TRICKLE and 14 - TRICKLE <= n < 14: wo = [18 + n]
        if n >= 14: wo = (WOA if A else WOB)[n - 14]
        D += [(wo_one(st), ("wo", st)) for st in wo]
        if n == 0 and l == 0 and POL == 3: X.append(lambda: a.all([f"v_mov_b32 v{vCS+2}, {TAB+1824}", f"ds_read_b128 v[72:75], v{vCS+2}", f"ds_read_b128 v[76:79], v{vCS+2} offset:16"]))
        if n == 2 and l == 0 and POL == 3: X += chunks(a, ["v_min3_u32 v72, v72, v73, v74", "v_min3_u32 v76, v76, v77, v78", "v_min_u32 v72, v72, v75", "v_min_u32 v76, v76, v79", "v_sub_u32 v72, v76, v72", "v_lshrrev_b32 v72, 31, v72", f"v_lshlrev_b32 v{vCS+2}, 4, v72"], 2); assert NP + 2 > 2
        if n == 1:
            X += [lambda: a.all([f"s_lshl_b32 s{s}, s{sU}, 8", f"s_add_u32 s{s}, s{s}, {SX}", f"v_add_u32 v{S+4}, s{s}, v{vL16}", f"ds_read_b128 {vr(S,4)}, v{S+4}"]), lambda: None]
            def st():
                a(f"s_lshr_b32 s{s}, s{sTILE}, 4"); a("s_waitcnt lgkmcnt(0)"); a("s_mov_b64 exec, 0xffff")
                a.bymode([f"buffer_store_dwordx4 {vr(S,4)}, v{vL16}, {sr(sWS)}, s{s} offen"]); a("s_mov_b64 exec, -1"); vm.add(("p",))
            X.append(st)
        if l == 0 and n in OI and not NOI: X += hand(a, vm, l, "po", " sc1")[OI.index(n) * 4 // len(OI):(OI.index(n) + 1) * 4 // len(OI)]
        if n == NPOST:
            def post():
                p0, p1 = post_l(S + 22, S + 20, fl="")
                a(f"s_lshr_b32 s{s}, s{sTILE}, 9"); a(f"s_add_u32 s{s}, s{s}, {SFL + l*8192}"); a(f"v_mov_b32 v{S+22}, s{s}"); a.all(p0); vm.wait(("p",))
                a(p1[0]); a.bymode([p1[1]]); a(p1[2]); vm.add(("hot",))
            X.append(post)
        if n == NF: X.append(lambda: (a.flagload(S, vSF), vm.add(("F",))))
        if l < 2 and n == NCF: X.append(lambda: (a.flagload(G + 16, vCF), vm.add(("CF",))))
        if n == NF + 1:
            def chk():
                vm.wait(("F",)); ok = a.newlabel("Lsok"); a.flagtest(S, ok); a.poll(vSF, S); a.label(ok)
            def mode():
                a(f"v_cmp_ne_u32 vcc, s{sN1}, v{S+1}"); a("s_cmp_eq_u64 vcc, 0"); a(f"s_cselect_b32 s{sFAST}, {0 if FORCE_SLOW else 1}, 0")
                a(f"s_or_b32 s{s}, s{sFAST}, s47" if POL == 3 else f"s_mov_b32 s{s}, s{sFAST}"); assert NCF < NF <= 12
                a(f"v_mov_b32 v{S+18}, s{s}"); a(f"v_mov_b32 v{S+19}, {TAB+1792}"); a(f"ds_write_b32 v{S+19}, v{S+18}")
            X += [chk] + ([mode] if l == 0 else [])
        for i in [i for i in range(4) if NL[i] == n]:
            assert n > NF
            def sl(i=i):
                a(f"s_lshr_b32 s{s}, s{sTILE}, 16"); a(f"s_lshl_b32 s{s}, s{s}, 12"); assert ST == 0
                a(f"buffer_load_dwordx4 {vr(S+4*i,4)}, v{vL16}, {sr(sWS)}, s{s} offen offset:{i*1024} sc1"); vm.add(("stats",))
            X.append(sl)
        if n == NL[4]:
            L = [f"v_add_f32 v{S+i}, v{S+i}, v{S+8+i}" for i in range(8)] + [f"v_add_f32 v{S+i}, v{S+i}, v{S+4+i}" for i in range(4)]
            L += [f"v_permlane32_swap_b32 v{S}, v{S+2}", f"v_permlane32_swap_b32 v{S+1}, v{S+3}",
                  f"v_add_f32 v{S}, v{S}, v{S+2}", f"v_add_f32 v{S+1}, v{S+1}, v{S+3}", f"v_mov_b32 v{S+2}, v{S}", f"v_mov_b32 v{S+3}, v{S+1}"]
            X += [lambda: vm.wait(("stats",))] + chunks(a, L, 3)
        if n == NL[5]:
            L = [f"v_permlane16_swap_b32 v{S}, v{S+2}", f"v_permlane16_swap_b32 v{S+1}, v{S+3}", f"v_add_f32 v{S}, v{S}, v{S+2}", f"v_add_f32 v{S+1}, v{S+1}, v{S+3}",
                 f"v_mul_f32 v{S}, 0xba800000, v{S}", f"v_mul_f32 v{S+1}, 0x3a800000, v{S+1}",
                 f"v_fma_f32 v{S+1}, -v{S}, v{S}, v{S+1}", f"v_max_f32 v{S+1}, 0, v{S+1}", f"v_add_f32 v{S+1}, 0x3727c5ac, v{S+1}", f"v_rsq_f32 v{S+1}, v{S+1}",
                 f"ds_write_b32 v{vTW}, v{S} offset:512", f"ds_write_b32 v{vTW}, v{S+1}"] + ([f"ds_write_b32 v{vCW}, v{vCS + (l & 1)}"] if l >= 2 else [])
            X += chunks(a, L, 2); assert n <= 14
        def piece(f, tag, k=4):
            t = G_(a); f(t); L = t.lines
            X.extend(chunks(a, L[:-3], k) + [lambda: (a.all(L[-3:]), vm.add(tag))])
        if HOT and n == WOHOT:
            def f(a):
                a(f"s_lshr_b32 s{s}, s2, 3"); a(f"s_lshl_b32 s{s}, s{s}, 6"); a(f"s_lshl_b32 s{s+1}, s{sU}, 4"); a(f"s_add_u32 s{s}, s{s}, s{s+1}")
                a(f"v_add_u32 v{S+20}, s{s}, v{vLANE}"); hot_line(a, S + 21, S + 20, sWO)
                a("s_mov_b64 exec, 0xffff"); a(f"buffer_load_dword v{vDUM}, v{S+21}, {sr(sWO)}, 0 offen"); a("s_mov_b64 exec, -1")
            piece(f, ("hot",))
        for at, first, cnt in (HOTS if HOT else []):
            if at == n: piece(lambda t: hot_issue(t, l, first, cnt, S + 21), ("hot",))
        if (l, n) in WARM:
            def f(a):
                a(f"s_lshl_b32 s{s}, s2, 2"); a(f"s_add_u32 s{s}, s{s}, s{sU}"); a(f"s_lshl_b32 s{s}, s{s}, 11"); a(f"v_lshlrev_b32 v{S+20}, 7, v{vLANE}")
                a("s_mov_b64 exec, 0xffff"); a(f"buffer_load_dword v{vDUM}, v{S+20}, {sr(sWO)}, s{s} offen"); a("s_mov_b64 exec, -1")
            piece(f, ("hot",))
        if l == 0 and n in (HPAT, HPAT + 1): piece(lambda t: halo_fill(t, n - HPAT), ("hp",))
        for what, at in (HANDA if A else HANDB):
            if at == n: assert n > NF + 1 or PXF; X += hand(a, vm, l, what, PXF)
        if l < 2 and n <= NR:
            def f():
                e = a.skip_unless("eq", sH, n); t = G_(a); slab_sums(t, WB[n % 3], "r"); a.all(shift(t.lines, 56)); a.label(e)
            X.append(f); late.append(lambda: a("s_waitcnt lgkmcnt(0)"))
        if l < 2 and n == NS: t = G_(a); slab_sums(t, 0, "mw"); X += chunks(a, shift(t.lines, 56), 4)
        for ll, nn, what, lo, cnt in SWARM:
            if (ll, nn) == (l, n): X += chunks(a, swarm(what, lo, cnt), 2)
        if A and n == WOT:
            def f(a):
                a(f"s_and_b32 s{s}, s{sRB}, 1"); a(f"s_lshl_b32 s{s}, s{s}, 2"); a(f"s_add_u32 s{s}, s{s}, s{sU}"); a(f"s_cmp_ge_u32 s{s}, 1"); a(f"s_addc_u32 s{s+1}, s{s}, 6"); a(f"s_cmp_ge_u32 s{s}, 4"); a(f"s_addc_u32 s{s}, s{s+1}, s{sJ}")
                a(f"s_and_b32 s{s}, s{s}, 15"); a(f"s_lshl_b32 s{s}, s{s}, 10"); a(f"s_add_u32 s{s}, s{s}, s{sJ}"); a(f"s_lshl_b32 s{s}, s{s}, 7"); a(f"v_lshlrev_b32 v{S+20}, 11, v{vLANE}")
                a(f"buffer_load_dword v{vDUM}, v{S+20}, {sr(sWO)}, s{s} offen")
            piece(f, ("hot",), 99)
        if l < 2 and n == NP:
            def f(t): u = G_(a); slab_publish(u, l); t.all(shift(u.lines, 56))
            piece(f, ("cs",))
        if l < 2 and n == NP + 2: X.append(lambda: vm.wait(("cs",))); piece(lambda t: slab_post(t, l), ("hot",))
        if l < 2 and n == NCF + 1:
            def chk():
                vm.wait(("CF",)); ok = a.newlabel("Lcsok"); a.flagtest(G + 16, ok); a.poll(vCF, G + 16); a.label(ok)
            X += [chk, lambda: cs_off(a, s + 4, l, 4096, CSP)]
            if l == 0 and POL == 3:
                X.append(lambda: a.all([f"v_and_b32 v{G+18}, 16, v{G+17}", f"v_cmp_ne_u32 vcc, 0, v{G+18}", "s_lshl_b32 s47, vcc_lo, 15", f"s_lshr_b32 s47, s47, s{sRB}", "s_and_b32 s47, s47, 0xe000"] + halves(47)))
            X += [(lambda i: lambda: (a(f"buffer_load_dwordx4 {vr(G+4*i,4)}, v{vL16}, {sr(sWS)}, s{s+4} offen offset:{i*1024} sc1"), vm.add(("G",))))(i) for i in range(4)]
        if l < 2 and n == NCF + 3:
            L = [f"v_add_f32 v{G+i}, v{G+i}, v{G+8+i}" for i in range(8)] + [f"v_add_f32 v{G+i}, v{G+i}, v{G+4+i}" for i in range(4)]
            L += [f"v_permlane32_swap_b32 v{G}, v{G+2}", f"v_permlane32_swap_b32 v{G+1}, v{G+3}", f"v_add_f32 v{G}, v{G}, v{G+2}", f"v_add_f32 v{G+1}, v{G+1}, v{G+3}",
                  f"v_permlane16_swap_b32 v{G}, v{G+1}", f"v_add_f32 v{vCS+l}, v{G}, v{G+1}", f"ds_write_b32 v{vCW}, v{vCS+l}"]
            X += [lambda: vm.wait(("G",))] + chunks(a, L, 3)
        V = []
        if l and n + 1 <= NF + 3:
            m = n + 1; ok, rt = a.newlabel("Lxok"), a.newlabel("Lxrt")
            rd = [f"ds_read_b32 v{S+16+k}, v{vXV} offset:{(m % 3)*16384 + k*1024}" for k in range(4)]
            if RD2 == 2: rd = [f"ds_read_b64 {vr(72+2*k,2)}, v{vXV} offset:{(m % 3)*16384 + k*1024}" for k in range(4)]
            if RD2 == 1: rd = [f"ds_read2st64_b32 {vr(S+16+2*k,2)}, v{vXV} offset0:{(m % 3)*64 + 8*k} offset1:{(m % 3)*64 + 8*k + 4}" for k in range(2)]
            T = tag_test(S + 16, range(72, 80, 2) if RD2 == 2 else range(S + 16, S + 20), (l - 1) & 1)
            V = [lambda: (vm.wait(("x", m)), a.all(rd)), lambda: a.all(["s_waitcnt lgkmcnt(0)"] + T), lambda: (a(f"s_cbranch_vccnz {rt}"), a.label(ok))]
            t = G_(a); t.label(rt); t(f"s_mov_b32 s{sT[0]}, 0"); kstage(t, l, m, w=False); t.label(rt + "a"); (DIAG and t(f"v_add_u32 v7, {1 << (16 * (m > 1))}, v7")); dma_x(t, l, m); t("s_waitcnt vmcnt(0)"); t.all(rd + ["s_waitcnt lgkmcnt(0)"] + T)
            t(f"s_cbranch_vccz {ok}"); t(f"s_add_u32 s{sT[0]}, s{sT[0]}, 1"); t(f"s_cmp_lt_u32 s{sT[0]}, {SPIN}"); t(f"s_cbranch_scc1 {rt}a"); t(f"s_branch {ok}"); a.tail += t.lines
        if n == 0 and l and V0:
            for f in V: f()
            V = []; kstage(a, l, 2, w=False); a(f"s_add_u32 m0, s{sMX}, {XB[2]}")
        gaps = [[] for _ in range(max(1, len(D)))]
        vg = VG if V and n else []
        for g, f in zip(vg, V): gaps[g].append(f)
        free = [g for g in range(len(gaps)) if g not in vg[1:]]; free = free[:-1] or free
        for k, f in enumerate(X): gaps[free[k * len(free) // len(X)]].append(f)
        for k, g in enumerate(gaps):
            if k < len(D):
                cap = CAP.get((l, n))
                a.all(D[k][0][:-1] + ([f"s_waitcnt vmcnt({cap - 1})"] if cap else []) + D[k][0][-1:]); vm.add(D[k][1])
            for f in g: f()
        for f in late + ([] if vg else V): f()
def G_(a):
    t = G(a.stamps); t.newlabel = a.newlabel; t.tail = a.tail
    return t
def shift(lines, d):
    import re
    def one(m): n = int(m.group(1)); return f"v{n + d}" if 24 <= n < 72 else m.group(0)
    def rng(m): p, q = int(m.group(1)), int(m.group(2)); return f"v[{p+d}:{q+d}]" if 24 <= p < 72 else m.group(0)
    return [re.sub(r"\bv(\d+)\b", one, re.sub(r"\bv\[(\d+):(\d+)\]", rng, x)).strip() for x in lines]

def prep_next(a, l):
    s = sT[1]; n = l + 1
    p = (pWB, pWOB) if n & 1 else (pWA, pWOA)
    a(f"s_mov_b32 s{sW}, s{p[0]}"); a(f"s_mov_b32 s{sW+1}, s{p[0]+1}")
    if l == 0:
        setup_w(a, False); setup_x(a, 1); assert 1 in ROTL
        a(f"s_andn2_b32 s{sGO}, s{sRB}, {RG1}"); a(f"s_cmp_eq_u32 s{sGO}, 15"); a(f"s_cselect_b32 s{sGO}, 0, s{sGO}")
        a(f"s_and_b32 s{sH}, s{sRB}, {RG1}"); a(f"s_add_u32 s{sH}, s{sH}, 1"); a(f"s_cmp_eq_u32 s{sRB}, 15"); a(f"s_cselect_b32 s{sH}, 0, s{sH}")
    a(f"v_add_u32 v{vSF}, 8192, v{vSF}")
    if HOT: hot_setup(a, n, S_)
def between(a, l, vm):
    s = sT[1]; A = l % 2 == 0
    if A: vm.wo(range(LATE, 32))
    if l == LAST:
        if TO3:
            for f in hand(a, vm, l, "to"): f()
        vm.wait_wo(); a("s_barrier"); a("s_barrier"); return
    n = l + 1; assert l or PZ or HPAT < 15 or any('hp' in x for x in WSCH[0])
    a(f"s_mov_b32 s{sL}, {n}")
    p = (pWB, pWOB) if n & 1 else (pWA, pWOA)
    if not (A and WREG): prep_next(a, l)
    def batch(k):
        for ll, nn, what, lo, cnt in SWARM:
            if (ll, nn) == (l, 17 + k): a.all(swarm(what, lo, cnt))
        for st in WSCH[l][k]:
            if st == "hp": halo_fill(a, 0); halo_fill(a, 1); vm.add(("hp",), 2); continue
            if st in ("tx", "to"):
                for f in hand(a, vm, l, st): f()
                continue
            if A and st in range(WREG):
                vm.wait(("r", st)); a(f"s_add_u32 s{s}, s{sMW}, {WB[st]}"); a(f"v_add_u32 v{vKF}, s{s}, v{vL16}"); assert st <= k
                for q in range(6): a(f"ds_write_b128 v{vKF}, {vr(WQ[6*st+q],4)} offset:{q*1024}")
                continue
            if st == "h":
                if HOT and not (A and WREG): hot_issue(a, n, int(n in ROTL), HOTD + 1, S_); vm.add(("hot",))
                continue
            assert st <= k
            kstage(a, n, st, x=False); t = G_(a); dma_w(t, WB[st])
            for x in t.lines:
                if "buffer" in x and WP[l] is not None: a(f"s_waitcnt vmcnt({WP[l]})")
                a(x)
            vm.add(("w", st), 6)
    batch(0)
    if not A: vm.wait_wo()
    a.stamp("l_a")
    a("s_barrier")
    batch(1)
    vm.wait_wo()
    a(f"s_mov_b32 s{sWO}, s{p[1]}"); a(f"s_mov_b32 s{sWO+1}, s{p[1]+1}")
    a("s_barrier")
    batch(2)
    if l == 0 and SUM0:
        vm.wait(("w", 0)); vm.wait(("w", 1)); a(f"s_cmp_eq_u32 s{sH}, 0"); a(f"s_cselect_b32 s{s+5}, {WB[0]}, {WB[1]}"); slab_sums(a, f"s{s+5}")
    vm.wait(("w", 0))
    if A and WREG: a("s_waitcnt lgkmcnt(0)")
    kstage(a, n, 1, w=False)
    a.stamp("l_b")
    a("s_barrier")
    dma_x(a, n, 1); vm.add(("x", 1), 4)

ACC, FR, AX, AW = 24, 120, 200, 202
def acc(q, i): return ACC + 32 * (q >> 1) + 8 * i + 4 * (q & 1) if q < 4 else ACC + 64 + 16 * (q & 1) + 4 * i
xf = lambda p, i: FR + 40 * p + 4 * i
wf = lambda p, q: FR + 40 * p + 16 + 4 * q
snake = lambda qs: [(q, i if k % 2 == 0 else 3 - i) for k, q in enumerate(qs) for i in range(4)]
VORD = [(4 + (b ^ (i & 1)), i) for i in range(4) for b in range(2)]
ORD = snake([0, 1, 2, 3]) + VORD; KVORD = snake([2, 3]) + VORD; QORD = snake([0, 1])
def g1m(p, order, init=False):
    return [M(acc(q, i), *((wf(p, q), xf(p, i)) if q < 4 else (xf(p, i), wf(p, q))), "0" if init else acc(q, i)) for q, i in order]
def g1r(p, n, ks, qs=range(6)):
    slot = n % 3
    rx = lambda i: f"ds_read_b128 {vr(xf(p,i),4)}, v{AX+ks} offset:{slot*16384 + i*2048}"
    rw = lambda q: [f"ds_read_b64_tr_b16 {vr(wf(p,q)+2*e,2)}, v{AW + (q & 1) + (0 if slot else 2)} offset:{(WB[slot] if slot else 0) + (4*ks + 2*e)*3072 + (q >> 1)*1024}" for e in range(2)]
    qs = list(qs)
    return [rx(0)] + rw(qs[0]) + [rx(1), rx(2), rx(3)] + [x for q in qs[1:] for x in rw(q)]
def stage(a, n, h0=None, h1=None, first=False, bar=1):
    f0 = {k: [x] for k, x in enumerate(g1r(1, n, 1))}
    if first:
        for m, need in ((1, 4), (2, 5), (3, 6), (4, 8), (8, 10), (12, 12), (16, 16)): f0[m - 1].append(f"s_waitcnt lgkmcnt({min(15, 16 - need + m)})")
    else: f0[7].append("s_waitcnt lgkmcnt(8)")
    f0[23] = ["s_waitcnt lgkmcnt(4)"]
    f1 = {bar + 1 + k: [x] for k, x in enumerate(g1r(0, n + 1, 0))}
    f1[bar - 1] = ["s_waitcnt lgkmcnt(0)"]; f1[bar] = ["s_barrier"]
    f1.setdefault(max(22, bar + 17), []).append("s_waitcnt lgkmcnt(4)")
    for f, h in ((f0, h0), (f1, h1)):
        for g, L in (h or {}).items(): f.setdefault(g, []).extend(L)
    weave(a, g1m(0, ORD, first), f0); weave(a, g1m(1, ORD), f1)
AB, CK, CQ, CV, TA, MD = 206, 214, 192, 230, 248, 252
VT = {3: 232, 2: 240, 1: 144, 0: 152}; TM = 184
SD, SQ, SFA = 206, 230, 236
BD, ONE = 222, 226
def c_setup(a, first):
    s = sT[1]
    a(f"s_lshr_b32 s{s}, s{sWID}, 1"); a(f"s_lshl_b32 s{s}, s{s}, 13"); a(f"s_add_u32 s{s}, s{s}, {XB[0]}")
    if not first: a(f"v_add_u32 v{AX}, s{s}, v{vL16}"); a(f"v_add_u32 v{AX+1}, 1024, v{AX}"); return
    a(f"v_and_b32 v{AX}, 15, v{vLANE}"); a(f"v_bfe_u32 v{AX+1}, v{vLANE}, 1, 3"); a(f"v_lshrrev_b32 v{AW}, 4, v{vLANE}"); a(f"v_xor_b32 v{AX+1}, v{AX+1}, v{AW}")
    a(f"v_lshlrev_b32 v{AX}, 7, v{AX}"); a(f"v_lshlrev_b32 v{AX+1}, 4, v{AX+1}"); a(f"v_add3_u32 v{AX}, v{AX}, v{AX+1}, s{s}"); a(f"v_xor_b32 v{AX+1}, 64, v{AX}")
    a(f"s_and_b32 s{s+1}, s{sWID}, 1"); a(f"s_lshl_b32 s{s+2}, s{s+1}, 6"); a(f"v_xor_b32 v{AW}, s{s+2}, v{vTR}")
    a(f"v_lshrrev_b32 v{AW+1}, 5, v{vLANE}"); a(f"v_mul_u32_u24 v{AW+1}, 3072, v{AW+1}"); a(f"v_add_u32 v{AW}, v{AW}, v{AW+1}"); a(f"v_xor_b32 v{AW+1}, 32, v{AW}")
    for k in range(2): a(f"v_add_u32 v{AW+2+k}, {WB[0]}, v{AW+k}")
    a(f"s_lshr_b32 s{s}, s{sWID}, 1"); a(f"s_lshl_b32 s{s}, s{s}, 8"); a(f"s_add_u32 s{s}, s{s}, {TAB}"); a(f"s_lshl_b32 s{s+1}, s{s+1}, 7"); a(f"s_add_u32 s{s+1}, s{s+1}, {TAB+1024}")
    a(f"v_and_b32 v{TA+3}, 15, v{vLANE}"); a(f"v_and_b32 v{TA+2}, 48, v{vLANE}")
    a(f"v_lshl_add_u32 v{TA}, v{TA+3}, 2, s{s}"); a(f"v_add_u32 v{TA+1}, s{s}, v{TA+2}"); a(f"v_add_u32 v{TA+2}, s{s+1}, v{TA+2}"); a(f"v_lshl_add_u32 v{TA+3}, v{TA+3}, 2, s{s+1}")
def stat_mfma():
    L = []
    for ks in range(2):
        for t in range(2):
            x = XRES + 8 * t + 4 * ks
            L += [M(SD + 8 * t, ONE, x, SD + 8 * t if ks else "0"), M(SD + 8 * t + 4, x, x, SD + 8 * t + 4 if ks else "0")]
    return L
def epi_qk(seg, i, cs, part="fmc"):
    r = acc(2 * seg, i); ab = AB + 2 * i; L = []
    for p in range(4):
        t = vr(r + 2 * p, 2)
        if "f" in part: L.append(f"v_pk_fma_f32 {t}, {vr(cs+2*p,2)}, {vr(ab,2)}, {t} op_sel:[0,1,0] op_sel_hi:[1,1,1]")
        if "m" in part: L.append(f"v_pk_mul_f32 {t}, {t}, {vr(ab,2)} op_sel_hi:[1,0]")
        if "c" in part: L.append(f"v_cvt_pk_bf16_f32 v{r+p}, v{r+2*p}, v{r+2*p+1}")
    return L
vout = lambda b, i: acc(4 + b, 0) + 8 + 2 * i
def epi_v(i, part="fmc"):
    L = []
    for b in range(2):
        for p in (1, 0):
            r = acc(4 + b, i) + 2 * p; t = vr(r, 2)
            if "f" in part: L.append(f"v_pk_fma_f32 {t}, {vr(VT[i]+4+2*p,2)}, {vr(CV,2)}, {t} op_sel:[0,{b},0] op_sel_hi:[1,{b},1]")
            if "m" in part: L.append(f"v_pk_mul_f32 {t}, {t}, {vr(VT[i]+2*p,2)}")
            if "c" in part: L.append(f"v_cvt_pk_bf16_f32 v{vout(b,i)+p}, v{r}, v{r+1}")
    return L
def consumer(a):
    s = sT[1]
    a("s_barrier")
    a.stamp("g1start")
    a.all(g1r(0, 0, 0)); a("s_waitcnt lgkmcnt(13)")
    ex = []
    for t in range(2):
        d = SD + 8 * t + 4
        ex += [f"v_cndmask_b32 v{d}, v{d}, v{d+1}, {sr(mB0,2)}", f"v_cndmask_b32 v{d+2}, v{d+2}, v{d+3}, {sr(mB0,2)}", f"v_mov_b32 v{SQ+2*t}, v{d-4}", f"v_cndmask_b32 v{SQ+2*t+1}, v{d}, v{d+2}, {sr(mB1,2)}"]
    ex += [f"v_and_b32 v{SFA}, 0xf0, v{vL16}", f"s_lshl_b32 s{s}, s{sWID}, 8", f"s_add_u32 s{s}, s{s}, {SX}", f"v_add_u32 v{SFA}, s{s}, v{SFA}"]
    h0 = {}; spread(h0, [ex[k:k+2] for k in range(0, len(ex), 2)], range(16, 23))
    h1 = {1: ["s_mov_b32 exec_lo, 0x00f0000f", "s_mov_b32 exec_hi, 0xf0000f00", f"ds_write_b128 v{SFA}, {vr(SQ,4)}", "s_mov_b64 exec, -1"], 3: [f"s_mov_b32 s{sCNT}, 0"]}
    stage(a, 0, h0, h1, first=True, bar=BAR0); assert BAR0 >= 4
    stage(a, 1, {22: ["s_waitcnt vmcnt(0)"]})
    a(".p2align 3")
    a.label("L_cloop")
    stage(a, 2); stage(a, 3); stage(a, 4, None, {19: [f"s_add_u32 s{sCNT}, s{sCNT}, 1"], 20: [f"s_cmp_lt_u32 s{sCNT}, 4"], 23: ["s_cbranch_scc1 L_cloop"]})
    t = G_(a); e = t.skip_unless("eq", sL, 0); t(f"v_readfirstlane_b32 s47, v{MD}"); t(f"s_and_b32 s{sFAST}, s47, 1"); t.all(halves(47) if POL == 3 else []); t.label(e)
    stage(a, 14, {16: [f"v_mov_b32 v{MD}, {TAB+1792}"], 17: [f"ds_read_b32 v{MD}, v{MD}"]}, {17: [x.strip() for x in t.lines], 18: [f"s_lshl_b32 s{s+4}, s{sT32}, 14", f"s_add_u32 s{s+4}, s{s+4}, s{sLO}"], 19: [f"s_add_u32 s{s+4}, s{s+4}, s{sNB[0]}", f"s_sub_u32 s{s+3}, s{s+4}, 16384"]})
    f = {k: [x] for k, x in enumerate(g1r(1, 15, 1, [2, 3, 4, 5, 0, 1]))}
    f[7].append("s_waitcnt lgkmcnt(8)"); f[15].append("s_waitcnt lgkmcnt(8)")
    weave(a, g1m(0, KVORD), f)
    ab = lambda i: f"ds_read2_b32 {vr(AB+2*i,2)}, v{TA} offset0:{16*i} offset1:{128+16*i}"
    vt = lambda i: [f"ds_read_b128 {vr(VT[i]+4*k,4)}, v{TA+1} offset:{k*512 + i*64}" for k in range(2)]
    cs = lambda d, seg: [f"ds_read_b128 {vr(d+4*b,4)}, v{TA+2} offset:{seg*256 + b*64}" for b in range(2)]
    tr = [ab(3)] + cs(CK, 1) + [f"ds_read2_b32 {vr(CV,2)}, v{TA+3} offset0:128 offset1:144"] + vt(3) + [ab(2)] + vt(2) + [ab(1)] + vt(1) + [ab(0)] + vt(0) + cs(CQ, 0)
    f = {k: [x] for k, x in enumerate(tr[:15])}; f[15] = tr[15:]
    f[4].append("s_waitcnt lgkmcnt(5)"); f[5].append("s_barrier")
    f[12].append(f"s_bitcmp1_b32 s{sL}, 0")
    weave(a, g1m(1, KVORD), f)
    a.stamp("g1kv")
    a("s_cbranch_scc1 L_tailB")

def q_scale(): return [f"v_mul_f32 v{AB+2*k}, {QSCALE}, v{AB+2*k}" for k in range(4)]
Qr = lambda t: acc(0, 2 + t)
Kr = lambda par, c: acc(2, 2 * (1 - par) + c)
Vr = lambda par, b: vout(b, 2 * (1 - par))
SS, PP, OO, LL, BO, AD, MI = 120, 136, 144, 160, 236, 244, 245
def masks_A():
    L = []
    for r in range(4): L += [f"v_subrev_u32 v{BD+r}, {r}, v{vD0}", f"v_ashrrev_i32 v{BD+r}, 31, v{BD+r}", f"v_and_b32 v{BD+r}, {BIG}, v{BD+r}"]
    return L
ones = lambda val="0x3f803f80": [f"v_mov_b32 v{ONE+k}, {val}" for k in range(4)]
def blocks(kind, t):
    if kind == "diag": return [(0, BD)] if t == 0 else [(0, "0"), (1, BD)]
    if kind == "old": return [(0, BO), (1, "0")] if t == 0 else [(1, BO)]
    return [(0, "0"), (1, "0")]
def s_mf(kind, par, t): return [M(SS + 8 * t + 4 * c, Kr(par, c), Qr(t), C) for c, C in blocks(kind, t)]
def pv_mf(par, t, init=False, one=ONE):
    return [M(OO + 8 * t + 4 * b, Vr(par, b), PP + 4 * t, "0" if init else OO + 8 * t + 4 * b) for b in range(2)] + [M(LL + 4 * t, one, PP + 4 * t, "0" if init else LL + 4 * t)]
def kv_rd(par, off, what):
    R = Kr if what == "K" else Vr; o = off + (0 if what == "K" else 2048)
    return [f"ds_read_b128 {vr(R(par,k),4)}, v{AD} offset:{o + k*1024}" for k in range(2)]
def half(a, kind, t, nxt, pv, rd=(), top=(), mid=(), early=False):
    valu = []; cs = [c for c, _ in blocks(kind, t)]
    for c in cs:
        s = SS + 8 * t + 4 * c; p = PP + 4 * t + 2 * c
        valu += [f"v_exp_f32 v{s}, v{s}", f"v_exp_f32 v{s+1}, v{s+1}", f"v_exp_f32 v{s+2}, v{s+2}", f"v_cvt_pk_bf16_f32 v{p}, v{s}, v{s+1}", f"v_exp_f32 v{s+3}, v{s+3}", None, f"v_cvt_pk_bf16_f32 v{p+1}, v{s+2}, v{s+3}"]
    if len(cs) == 2: valu[5] = valu.pop(7)
    else: z = PP + 4 * t + 2 * (1 - cs[0]); valu[5] = f"v_mov_b32 v{z}, 0"; valu.insert(2, f"v_mov_b32 v{z+1}, 0")
    valu = [x for x in valu if x]
    mf = list(nxt) + list(pv); a.all(top)
    at = ATAT if len(valu) > 8 else [0, 1, 3, 4, 5]
    ins = {}
    for k, x in enumerate(mf): ins.setdefault(at[k], []).append(x)
    rd = list(rd)
    for k in range(len(rd)): ins.setdefault(at[k if early else max(0, len(mf) - len(rd) + k)], []).append(rd[k])
    for k, x in enumerate(mid): ins.setdefault(at[min(len(mf) - 1, (2 + k) if early else k)], []).extend(x)
    for k, x in enumerate(valu): a.all(ins.get(k, [])); a(x)
def local_steps(a, T, have, init, hook={}):
    off = lambda s: (3 - s) * 8192
    kind = lambda s: "diag" if s == 0 else "full"
    a.all(s_mf("diag", 0, 0))
    for s in range(T + 1):
        par = s & 1; more = have <= s + 1 <= T
        half(a, kind(s), 0, s_mf(kind(s), par, 1), pv_mf(par ^ 1, 1, init and s == 1) if s else [], kv_rd(par ^ 1, off(s + 1), "K") if more else [], early=True)
        half(a, kind(s), 1, s_mf("full", par ^ 1, 0) if s < T else [], pv_mf(par, 0, init and s == 0), kv_rd(par ^ 1, off(s + 1), "V") if more else [], top=["s_waitcnt lgkmcnt(0)"] if s + 1 >= have else [])
        a.all(hook.get(s, []))
SLOT = [(1, 3), (1, 2), (1, 1), (1, 0), (2, 3), (2, 2), (2, 1), (2, 0)]
ONEB = {1: 232, 2: 240}
def fetch(F, steps):
    s = sT[1]; back = None; out = []
    for n in steps:
        L = []
        if back != SLOT[n][0]:
            back = SLOT[n][0]
            L += [f"v_add_u32 v{F}, s{sNB[back]}, v{vL16}", f"s_and_b32 s{s+1}, s{sLO}, 4096"]
        L += [f"s_add_u32 m0, s{s+1}, {REM + n*8192}", f"s_add_u32 s{s}, s{sLO}, {SLOT[n][1]*16384}"]
        for k in range(4): out.append(L + [f"buffer_load_dwordx4 v{F}, {sr(sWS)}, s{s} offen offset:{k*1024} sc1 lds"]); L = []
    return out
def before_Z():
    s = sT[1]
    return [f"s_and_b32 s{s}, s{sLO}, 4096", f"s_add_u32 s{s}, s{s}, {REM}", f"v_add_u32 v{AD}, s{s}, v{vL16}"] + [f"v_xor_b32 v{BO+r}, {BIG}, v{BD+r}" for r in range(4)] + [
        x for b in (1, 2) for x in [f"s_cmp_ge_u32 s{sRB}, {b}", f"s_cselect_b32 s{s}, 0x3f803f80, 0"] + [f"v_mov_b32 v{ONEB[b]+k}, s{s}" for k in range(4)]]
def w_touch(k, v):
    s = sT[1]
    return [f"s_mov_b32 s40, s{pWB}", f"s_mov_b32 s41, s{pWB+1}", "s_mov_b32 s42, 6291456", "s_mov_b32 s43, 0x00020000",
            f"s_and_b32 s{s}, s{sRB}, 1", f"s_lshl_b32 s{s}, s{s}, 2", f"s_add_u32 s{s}, s{s}, s{sU}", f"s_mul_i32 s{s}, s{s}, 36", f"s_mul_i32 s{s+1}, s{sJ}, 192", f"s_add_u32 s{s}, s{s}, s{s+1}", f"s_add_u32 s{s}, s{s}, {288*k}",
            f"v_add_u32 v{v}, s{s}, v{vLANE}", f"v_subrev_u32 v{v+1}, 3072, v{v}", f"v_min_u32 v{v}, v{v}, v{v+1}", f"v_lshlrev_b32 v{v}, 11, v{v}", f"s_lshl_b32 s{s}, s{sJ}, 7",
            "s_mov_b32 exec_hi, 15", f"buffer_load_dword v{vDUM}, v{v}, s[40:43], s{s} offen", "s_mov_b64 exec, -1"]
def o_touch(v):
    s = sT[1]
    return [f"s_add_u32 s{s}, s{sTILE}, {OB}", f"v_lshlrev_b32 v{v}, 3, v{vL16}", "s_mov_b32 exec_hi, 0", f"buffer_load_dword v{vDUM}, v{v}, {sr(sWS)}, s{s} offen sc1", "s_mov_b64 exec, -1"]
WQ = [*range(188, 220, 4), 84, 88, 92, 104, 108, 24, 28, 32, 36, 52]
def remote_steps(a, T):
    S = [n for n in range(8) if SLOT[n][0] == 1 or SLOT[n][1] >= T]; R = len(S); ZA = S.index(4) - 1
    LZ = 30 if all(b == 1 for b, _ in SLOT[:4]) else 28
    vm = VM(a); par = lambda r: (T + 1 + r) & 1; kind = lambda r: "old" if SLOT[S[r]] == (2, T) else "full"; one = lambda r: ONEB[SLOT[S[r]][0]] if r >= 0 else ONE
    X = {}
    def deal(L, h0, h1):
        for k, x in enumerate(L): X.setdefault(h0 + k * (h1 - h0) // len(L), []).append(x)
    if T in DUTY:
        F = fetch(MI, [4 + (T == 3), 6 + (T == 3)]); wo = lambda L: [(wo_one(st), ("wo", st)) for st in L]
        X[-1] = [(x, ("kv",)) for x in F[:F2A]]
        if F2A < 8: deal([(x, ("kv",)) for x in F[F2A:]], 0, 2)
        early = {st for L in WOA + [WOY] for st in L}
        W1 = wo([st for st in range(0, min(LATE, LZ)) if st not in early]); deal(W1[:WZ], 2, 2 * ZA); deal(W1[WZ:], 2 * ZA, 2 * ZA + WZL); assert W1[WZ - 1][1][1] < (26 if ZH else 24)
        if LATE > LZ: deal(wo(range(LZ, LATE)), 2 * ZA + 4, 2 * ZA + 6)
    if PZ and T % 2 == 0:
        assert PZ >= (6 if 2 in DUTY else 2)
        for k in range(3):
            t = G_(a); e = t.skip_unless("eq", sL, 0)
            if k < 2:
                for f in hand(t, VM(t), 0, "px", " sc1")[2*k:2*k+2]: f()
            else: halo_fill(t, 0); halo_fill(t, 1)
            t.label(e); X.setdefault(PZ + k, []).append(([x.strip() for x in t.lines], ("t",)))
    if WREG and T % 2 == 0:
        assert 2 not in DUTY and WRH[0] >= 2
        if HOT: X.setdefault(WRH[0], []).append(([f"s_mov_b64 exec, {(1 << (3 * HOTD + 3)) - 1}", f"buffer_load_dword v{vDUM}, v{vCS+3}, {sr(sW)}, 0 offen", "s_mov_b64 exec, -1"], ("h",)))
        deal([([f"buffer_load_dwordx4 {vr(WQ[6*st+k],4)}, v{LW+k}, {sr(sW)}, s{44+st} offen offset:{(k%3)*1024}"], ("r", st)) for st in range(WREG) for k in range(6)], *WRH)
        tags = [tag for h in sorted(X) for _, tag in X[h]]; global WRN
        WRN = len(tags) - 1 - max([-1] + [k for k, tag in enumerate(tags) if tag == ("t",)])
    def ex(h):
        for x, tag in X.get(h, []): vm.add(tag)
        return [x for x, _ in X.get(h, [])]
    a.all(kv_rd(par(0), 0, "K") + kv_rd(par(0), 0, "V"))
    for x in ex(-1): a.all(x)
    a("s_waitcnt lgkmcnt(2)"); a.all(s_mf("full", par(0), 0))
    for r in range(R):
        p = par(r); more = r + 1 < R
        if r == 1 and ZH:
            if T == 0: a("s_waitcnt vmcnt(0)")
            a("s_barrier")
        if r == ZA: vm.wait(("kv",)); a("s_barrier"); a.stamp("end")
        if r == ZA + 2 and LATE > LZ: a("s_barrier"); a.stamp("Z2")
        half(a, kind(r), 0, s_mf(kind(r), p, 1), pv_mf(p ^ 1, 1, one=one(r - 1)), kv_rd(p ^ 1, S[r + 1] * 8192, "K") if more else [], mid=ex(2 * r), early=True)
        half(a, kind(r), 1, s_mf(kind(r + 1), p ^ 1, 0) if more else [], pv_mf(p, 0, one=one(r)), kv_rd(p ^ 1, S[r + 1] * 8192, "V") if more else [], mid=ex(2 * r + 1), top=["s_waitcnt lgkmcnt(0)"])
    assert max([0, *X]) < 2 * R
    a.all(pv_mf(par(R - 1), 1, one=one(R - 1)))
    a("s_branch L_afin")
def finish_A(a):
    s = sT[1]; R = MI
    fin = lambda t: [f"v_rcp_f32 v{R+t}, v{LL+4*t}"] + [f"v_mul_f32 v{OO+8*t+k}, v{OO+8*t+k}, v{R+t}" for k in range(8)] + pack(OO + 8*t, OO + 8*t, 0, R + 2)
    a.all(fin(0)); a(M(SS, ONE, OO, "0")); a.all(fin(1)); a(M(SS, ONE, OO + 8, SS))
    a(f"v_max_f32 v{R}, v{LL}, v{LL+4}"); a(f"v_min_f32 v{R+1}, v{LL}, v{LL+4}")
    a(f"v_cmp_nge_f32 vcc, 0x5d800000, v{R}"); a(f"s_mov_b64 {sr(s+1,2)}, vcc"); a(f"v_cmp_nle_f32 vcc, 0x21800000, v{R+1}"); a(f"s_or_b64 {sr(s+1,2)}, vcc, {sr(s+1,2)}")
    a(f"v_mov_b32 v{R}, 0x207"); a(f"v_cmp_class_f32 vcc, v{SS}, v{R}"); a(f"s_or_b64 vcc, vcc, {sr(s+1,2)}")
    if FORCE_EXACT: a("s_mov_b64 vcc, -1")
    a("s_cbranch_vccnz L_exact")
    a.label("L_ostore")
    a(f"s_waitcnt vmcnt({WRN if WREG else 0})")
    a.bymode([f"buffer_store_dwordx4 {vr(OO+8*t,4)}, v{vL16}, {sr(sWS)}, s{sOA} offen offset:{t*1024}" for t in range(2)])
    t = G_(a); exact_A(t); t.all(fin(0) + fin(1)); t("s_branch L_ostore"); a.tail += t.lines
def kv_flag_addr(a, v, t):
    s = sT[1]
    a(f"s_lshr_b32 s{s}, s{sLO}, 9"); a(f"s_add_u32 s{s}, s{s}, {KF}"); a(f"v_and_b32 v{t}, 16, v{vL16}"); a(f"v_add_u32 v{t}, s{s}, v{t}")
    a(f"s_cmp_ge_u32 s{sRB}, 2"); a(f"s_cselect_b32 s{s}, s{sNB[2]}, s{sNB[1]}"); a(f"s_sub_u32 s{s}, s{s}, s{sNB[1]}")
    a(f"v_bfe_i32 v{v}, v{vLANE}, 1, 1"); a(f"v_and_b32 v{v}, s{s}, v{v}"); a(f"v_add3_u32 v{v}, v{v}, v{t}, s{sNB[1]}")
def exact_A(a):
    s = sT[1]; D, MX, BG, T_ = MI + 2, MI, 168 + 12, 168 + 13
    sN, sI, sP = sT[12], sT[13], sT[11]
    a.label("L_exact")
    a(f"s_lshl_b32 s{sN}, s{sRB}, 2"); a(f"s_add_u32 s{sN}, s{sN}, s{sT32}")
    a(f"s_mov_b32 s{sP}, 0"); a(f"v_mov_b32 v{BG}, {BIG}"); a(f"v_mov_b32 v{MX}, {BIG}"); a(f"v_mov_b32 v{MX+1}, {BIG}")
    if DIAG: srd(a, 40, pDBG, 256); a(f"v_mov_b32 v{T_}, 4"); a(f"v_mov_b32 v{D}, 1"); a("s_mov_b64 exec, 1"); a(f"buffer_atomic_add v{D}, v{T_}, {sr(40)}, 0 offen"); a("s_mov_b64 exec, -1")
    for r in range(OO, LL + 8): a(f"v_mov_b32 v{r}, 0")
    a.label("L_expass")
    a(f"s_mov_b32 s{sI}, 0"); a(f"v_mov_b32 v{D}, v{vD0}")
    a.label("L_exstep")
    a(f"s_sub_u32 s{s}, s{sT32}, s{sI}"); a(f"s_cmp_lt_i32 s{s}, 0"); a(f"s_cselect_b32 s{s+1}, s{sNB[1]}, s{sNB[0]}"); a(f"s_cmp_lt_i32 s{s}, -4"); a(f"s_cselect_b32 s{s+1}, s{sNB[2]}, s{s+1}")
    a(f"s_and_b32 s{s}, s{s}, 3"); a(f"s_lshl_b32 s{s}, s{s}, 14"); a(f"s_add_u32 s{s}, s{s}, s{s+1}"); a(f"s_add_u32 s{s}, s{s}, s{sLO}")
    for k, d in enumerate((Kr(0, 0), Kr(0, 1), Vr(0, 0), Vr(0, 1))): a(f"buffer_load_dwordx4 {vr(d,4)}, v{vL16}, {sr(sWS)}, s{s} offen offset:{k*1024} sc1")
    a("s_waitcnt vmcnt(0)")
    a.all(s_mf("full", 0, 0) + s_mf("full", 0, 1))
    for t in range(2):
        for c in range(2):
            for r in range(4):
                x = SS + 8 * t + 4 * c + r
                a(f"v_add_u32 v{T_}, {(16*t - 16*c - r) & 0xffffffff if 16*t - 16*c - r < -16 else 16*t - 16*c - r}, v{D}"); a(f"v_cmp_gt_u32 vcc, 0x100, v{T_}"); a(f"v_cndmask_b32 v{x}, v{BG}, v{x}, vcc")
    a(f"s_cmp_lg_u32 s{sP}, 0"); a("s_cbranch_scc1 L_exp2")
    for t in range(2):
        for k in range(0, 8, 2): a(f"v_max3_f32 v{MX+t}, v{MX+t}, v{SS+8*t+k}, v{SS+8*t+k+1}")
    a("s_branch L_exnext")
    a.label("L_exp2")
    for k in range(16): a(f"v_sub_f32 v{SS+k}, v{SS+k}, v{MX+(k>>3)}")
    for k in range(16): a(f"v_exp_f32 v{SS+k}, v{SS+k}")
    for k in range(8): a(f"v_cvt_pk_bf16_f32 v{PP+k}, v{SS+2*k}, v{SS+2*k+1}")
    a.all(pv_mf(0, 0) + pv_mf(0, 1))
    a.label("L_exnext")
    a(f"v_add_u32 v{D}, 32, v{D}"); a(f"s_add_u32 s{sI}, s{sI}, 1"); a(f"s_min_u32 s{s}, s{sN}, 8"); a(f"s_cmp_le_u32 s{sI}, s{s}"); a("s_cbranch_scc1 L_exstep")
    for w in (32, 16):
        for t in range(2): a(f"v_mov_b32 v{T_}, v{MX+t}"); a(f"v_permlane{w}_swap_b32 v{MX+t}, v{T_}"); a(f"v_max_f32 v{MX+t}, v{MX+t}, v{T_}")
    a(f"s_add_u32 s{sP}, s{sP}, 1"); a(f"s_cmp_lt_u32 s{sP}, 2"); a("s_cbranch_scc1 L_expass")

def tail_A(a):
    s = sT[1]; FA, FD, WA, QA = 245, 246, 253, 254
    st = lambda r, t, k: f"buffer_store_dwordx4 {vr(r,4)}, v{vL16}, {sr(sWS)}, s{s + 3 + t} offen offset:{k*1024} sc1"
    a("s_waitcnt lgkmcnt(8)")
    for t in (1, 0):
        now = a
        a.all(epi_qk(1, 2*t+1, CK)); now(st(acc(2, 2*t+1), t, 1)); a.all(epi_v(2*t+1))
        a.all(epi_qk(1, 2*t, CK)); now(st(acc(2, 2*t), t, 0)); v = epi_v(2*t)
        a.all(v[:6]); now(st(vout(0, 2*t), t, 2)); a.all(v[6:]); now(st(vout(1, 2*t), t, 3))
        if t: a("s_waitcnt lgkmcnt(0)")
    a.stamp("epi")
    a(f"s_lshl_b32 s{s}, s{sT32}, 13"); a(f"s_and_b32 s{s+1}, s{sLO}, 4096"); a(f"s_add_u32 s{s}, s{s}, s{s+1}"); a(f"s_add_u32 s{s}, s{s}, {OWN - 8192}"); a(f"v_add_u32 v{WA}, s{s}, v{vL16}")
    wr = lambda t: [f"ds_write_b128 v{WA}, {vr(r,4)} offset:{t*8192 + k*1024}" for k, r in enumerate((acc(2, 2*t), acc(2, 2*t+1), vout(0, 2*t), vout(1, 2*t)))]
    p0, p1 = post_l(FA, FD)
    qa = [f"s_xor_b32 s{s+1}, s{sWID}, 2", f"s_lshl_b32 s{s+1}, s{s+1}, 11", f"s_add_u32 s{s+1}, s{s+1}, {QX}", f"v_add_u32 v{QA}, s{s+1}, v{vL16}"]
    a(f"s_cmp_ge_u32 s{sWID}, 2"); a("s_cbranch_scc1 L_tailA3")
    for T in (1, 3):
        if T == 3: a.label("L_tailA3")
        W = wr(0) + (wr(1) if T == 1 else [])
        X = q_scale() + qa + [f"s_lshl_b32 s{s}, s{sL}, 3", f"s_add_u32 s{s}, s{s}, s{sWID}", f"s_lshl_b32 s{s}, s{s}, 3", f"s_add_u32 s{s}, s{s}, {KF}", f"s_add_u32 s{s}, s{s}, s{sNB[0]}", f"v_mov_b32 v{FA}, s{s}"] + p0
        f = {}; spread(f, W, range(0, 16, 2))
        free = [g for g in range(16) if g not in f]; per = -(-len(X) // len(free))
        spread(f, [X[k:k+per] for k in range(0, len(X), per)], free)
        weave(a, g1m(0, QORD) + g1m(1, QORD), f)
        a.stamp("qmm")
        for i in range(2): a.all(epi_qk(0, i, CQ)); a(f"ds_write_b128 v{QA}, {vr(acc(0,i),4)} offset:{i*1024}")
        a.all(epi_qk(0, 2, CQ))
        if T == 3: a(f"v_subrev_u32 v{AD}, {2*8192}, v{WA}")
        a.all(epi_qk(0, 3, CQ))
        a("s_waitcnt lgkmcnt(0)"); a("s_barrier")
        a.stamp("Y")
        local_steps(a, T, 2, True, {min(T, F1AT): ["s_waitcnt vmcnt(0)"] + p1})
        a.stamp("loc")
        a.all(before_Z())
        a("s_barrier")
        a.stamp("Z")
        remote_steps(a, T)
def att_A_loader(a):
    s = sT[1]; F = 180
    for r in range(OO, LL + 8): a(f"v_mov_b32 v{r}, 0")
    a(f"s_lshl_b32 s{s}, s{sU}, 11"); a(f"s_add_u32 s{s}, s{s}, {QX}"); a(f"v_add_u32 v{MI}, s{s}, v{vL16}")
    a(f"s_lshl_b32 s{s}, s{sT32}, 1"); a(f"s_and_b32 s{s+1}, s{sU}, 1"); a(f"s_add_u32 s{s}, s{s}, s{s+1}"); a(f"s_lshl_b32 s{s}, s{s}, 12"); a(f"s_add_u32 s{s}, s{s}, {OWN - 3*8192}"); a(f"v_add_u32 v{AD}, s{s}, v{vL16}")
    qrd = [f"ds_read_b128 {vr(Qr(t),4)}, v{MI} offset:{t*1024}" for t in range(2)]
    a(f"s_cmp_eq_u32 s{sT32}, 0"); a("s_cbranch_scc1 L_attA0")
    a("s_barrier")
    a.stamp("Y")
    a.all(qrd + kv_rd(0, 3*8192, "K") + kv_rd(0, 3*8192, "V")); a("s_waitcnt lgkmcnt(2)")
    woy = [x for st in WOY for x in wo_one(st)]
    local_steps(a, 2, 1, False, {1: woy})
    a.stamp("loc")
    a.all(before_Z()); a("s_barrier")
    a.stamp("Z")
    remote_steps(a, 2)
    a.label("L_attA0")
    if ZPRIO: a(f"s_setprio {ZPRIO}")
    kv_flag_addr(a, vKF, F)
    KP = "atomic" if APOLL else 0; ex4 = (lambda on: a(f"s_mov_b64 exec, {15 if on else -1}")) if APOLL else (lambda on: None)
    if PREP: ex4(1); a.flagload(F + 6, vKF, KP); ex4(0)
    a("s_barrier")
    a.stamp("Y")
    a.all(qrd + kv_rd(0, 3*8192, "K") + kv_rd(0, 3*8192, "V"))
    a("s_waitcnt lgkmcnt(2)")
    local_steps(a, 0, 1, False)
    a.stamp("loc")
    ex4(1); a.flagload(F, vKF, KP); ex4(0); a.all(woy + before_Z())
    e = a.skip_unless("lg", sRB, 0)
    ex4(1); a(f"s_waitcnt vmcnt({len(WOY)})"); a.flagtest(F, e)
    a.poll(vKF, F, KP); a.label(e); ex4(0)
    a.stamp("epi")
    for x in fetch(F + 4, [0, 1, 2, 3]): a.all(x)
    a(f"s_waitcnt vmcnt({8 if ZH else 0})"); a("s_barrier")
    a.stamp("Z")
    remote_steps(a, 0)

def lane_mask(f): return sum(1 << l for l in range(64) if f(l & 15, l >> 4))
def tail_B(a):
    s = sT[1]; HK, HV, HA, MK, B0, HO = 244, 240, 253, 232, 236, TM
    KK = lambda i: acc(2, i) if i >= 0 else HK
    R = lambda i: 120 + 16 * i
    def scores(i, th): return [M(R(i), KK(i), acc(0, i), "0"), M(R(i) + 4, KK(i - 1), acc(0, i), B0 if i == th == 0 else "0")]
    def pick(i):
        r = R(i)
        return [f"v_cndmask_b32 v{r+2*k}, v{r+2*k}, v{r+2*k+1}, {sr(mB0,2)}" for k in range(4)] + [f"v_cndmask_b32 v{r+8}, v{r}, v{r+4}, {sr(mP0,2)}", f"v_cndmask_b32 v{r+9}, v{r+2}, v{r+6}, {sr(mP1,2)}", f"v_max_f32 v{r+10}, v{r+8}, v{r+9}"]
    def rowmax(i, k=None):
        m, t = R(i) + 10, R(i) + 11
        if k is None: return [x for w in (32, 16) for x in (f"v_mov_b32 v{t}, v{m}", f"v_permlane{w}_swap_b32 v{m}, v{t}", f"v_max_f32 v{m}, v{m}, v{t}")]
        t = R(k) + 10
        return [f"v_permlane32_swap_b32 v{m}, v{t}", f"v_max_f32 v{m}, v{m}, v{t}", f"v_mov_b32 v{t}, v{m}", f"v_permlane16_swap_b32 v{m}, v{t}", f"v_max_f32 v{m}, v{m}, v{t}", f"v_mov_b32 v{t}, v{m}", f"v_permlane32_swap_b32 v{m}, v{t}"]
    def probs(i):
        r = R(i); x, y, m, f = r + 8, r + 9, r + 10, AB + 2 * i
        return [f"v_sub_f32 v{x}, v{x}, v{m}", f"v_sub_f32 v{y}, v{y}, v{m}", f"v_mul_f32 v{x}, v{x}, v{f}", f"v_mul_f32 v{y}, v{y}, v{f}", f"v_exp_f32 v{x}, v{x}", f"v_exp_f32 v{y}, v{y}",
                f"v_cvt_pk_bf16_f32 v{x}, v{x}, v{x}", f"v_cvt_pk_bf16_f32 v{y}, v{y}, v{y}"] + [f"v_and_b32 v{r+k}, v{MK+k}, v{(x, y)[k & 1]}" for k in range(4)]
    def prods(i): r = R(i); return [M(r + 4, ONE, r, "0")] + [M(r + 8 + 4 * b, vout(b, i - 1), r, "0") for b in range(2)]
    def fin(i, pk=False):
        r = R(i)
        mul = [f"v_pk_mul_f32 {vr(r+8+k,2)}, {vr(r+8+k,2)}, {vr(r+4,2)} op_sel_hi:[1,0]" for k in range(0, 8, 2)] if pk else [f"v_mul_f32 v{r+8+k}, v{r+8+k}, v{r+4}" for k in range(8)]
        return [f"v_rcp_f32 v{r+4}, v{r+4}"] + mul + pack(r, r + 8, 1)
    ost = lambda i: f"buffer_store_dwordx4 {vr(R(i),4)}, v{vL16}, {sr(sWS)}, s{sOA if i >> 1 else s+1} offen offset:{(i & 1)*1024}"
    hv = [f"v_mov_b32 v{vout(k >> 1, -1) + (k & 1)}, v{HV+k}" for k in range(4)]
    a.label("L_tailB")
    a(f"s_and_b32 s{s}, s{sL}, 2"); a(f"s_and_b32 s{s+1}, s{sWID}, 1"); a(f"s_add_u32 s{s}, s{s}, s{s+1}"); a(f"s_lshl_b32 s{s}, s{s}, 11"); a(f"s_add_u32 s{s}, s{s}, {HB}")
    a("s_waitcnt lgkmcnt(8)")
    a.all(epi_qk(1, 3, CK) + [clean(KK(3))] + epi_v(3))
    a(clean(HO, vout(0, 3))); a(f"v_mov_b32 v{HO+1}, v{vout(0,3)+1}"); a(f"v_mov_b32 v{HO+2}, v{vout(1,3)}"); a(f"v_mov_b32 v{HO+3}, v{vout(1,3)+1}")
    a(f"s_cmp_lt_u32 s{sWID}, 2"); a("s_cbranch_scc1 L_tailB0")
    for th in (1, 0):
        ha = [f"s_lshl_b32 s{s+1}, s{s+1}, 11", f"s_add_u32 s{s+1}, s{s+1}, {HX}", f"v_add_u32 v{HA}, s{s+1}, v{vL16}"]
        X = q_scale() + [f"v_mov_b32 v{MK+2}, 0xffff", f"v_mov_b32 v{MK+3}, 0xffff0000", f"v_cndmask_b32 v{MK+3}, v{MK+2}, v{MK+3}, {sr(mB0,2)}", f"v_cndmask_b32 v{MK}, 0, v{MK+3}, {sr(mP0,2)}",
             f"v_cndmask_b32 v{MK+1}, 0, v{MK+3}, {sr(mP1,2)}", f"v_xor_b32 v{MK+2}, v{MK}, v{MK+3}", f"v_xor_b32 v{MK+3}, v{MK+1}, v{MK+3}"]
        if th:
            a(f"s_add_u32 s{s}, s{s}, s{sNB[0]}")
            for k, r in enumerate((KK(3), HO)): a(f"buffer_store_dwordx4 {vr(r,4)}, v{vL16}, {sr(sWS)}, s{s} offen offset:{k*1024} sc1")
            X += ha; hl = [f"ds_read_b128 {vr(r,4)}, v{HA} offset:{k*1024}" for k, r in enumerate((HK, HV))]
        else:
            a.label("L_tailB0"); a.all(ha)
            for k, r in enumerate((KK(3), HO)): a(f"ds_write_b128 v{HA}, {vr(r,4)} offset:{k*1024}")
            X += [f"s_add_u32 s{sCNT}, s{s}, s{sNB[1]}", f"s_cmp_eq_u32 s{sRB}, 0", f"s_cselect_b32 s{s+2}, 0xff800000, 0"] + [f"v_mov_b32 v{B0+k}, s{s+2}" for k in range(4)]
            hl = [f"buffer_load_dwordx4 {vr(r,4)}, v{vL16}, {sr(sWS)}, s{sCNT} offen offset:{k*1024} sc1" for k, r in enumerate((HK, HV))]
        X += [f"s_sub_u32 s{s+1}, s{sOA}, 65536"]
        a.all(epi_qk(1, 2, CK) + epi_v(2)); a(f"s_waitcnt lgkmcnt({2 - 2*th})")
        for i in (1, 0): a.all(epi_qk(1, i, CK, "fm") + epi_v(i, "fm"))
        a.stamp("epi")
        X = [x for i in (1, 0) for x in epi_qk(1, i, CK, "c") + epi_v(i, "c")] + X
        f = {}; per = -(-len(X) // 15); spread(f, [X[k * len(X) // 15:(k + 1) * len(X) // 15] for k in range(15)], range(15))
        f[15] = ["s_waitcnt lgkmcnt(0)", "s_barrier"] + hl
        weave(a, g1m(0, QORD) + g1m(1, QORD), f)
        a.stamp("qmm")
        for i in (3, 2, 1, 0): a.all(epi_qk(0, i, CQ, "f"))
        qc = lambda i: epi_qk(0, i, CQ, "c")
        up = qc(3) + qc(2) + scores(3, th) + scores(2, th) + pick(3) + pick(2) + rowmax(3, 2) + probs(3) + prods(3) + probs(2) + prods(2)
        if th:
            L = up + [("s_waitcnt lgkmcnt(0)", range(HV, HK + 4))] + hv + qc(1) + qc(0) + scores(1, th) + scores(0, th) + pick(1) + pick(0) + rowmax(1, 0) + probs(1) + prods(1) + probs(0) + prods(0) + fin(3) + fin(2)
            a.all(sched(L)); a.stamp("loc")
            a.bymode([ost(3), ost(2)])
        else:
            a.all(sched(up + qc(1) + qc(0) + scores(1, th) + scores(0, th)[:1] + pick(1) + rowmax(1) + probs(1) + prods(1) + (fin(3) if BCUT else [])))
            a.stamp("loc")
            ck, ok, rt = a.newlabel("Lhck"), a.newlabel("Lhok"), a.newlabel("Lhrt")
            a("s_waitcnt vmcnt(0)"); T = poison_test(TM, [HK, HV]); a.all(T); a(f"s_cbranch_vccnz {rt}"); a.label(ok)
            a.tail += [rt + ":", f"s_mov_b32 s{sT[0]}, 0", ck + ":"] + hl + ["s_waitcnt vmcnt(0)"] + T + [f"s_cbranch_vccz {ok}", f"s_add_u32 s{sT[0]}, s{sT[0]}, 1", f"s_cmp_lt_u32 s{sT[0]}, {SPIN}", f"s_cbranch_scc1 {ck}", f"s_branch {ok}"]
            a.stamp("Z")
            a.all(sched(scores(0, th)[1:] + hv + pick(0) + rowmax(0) + probs(0) + prods(0) + ([] if BCUT else fin(3)) + fin(2)))
            a.bymode([ost(3), ost(2)])
        a.all(sched(fin(1, True) + fin(0, True)))
        a.bymode([ost(0), ost(1)])
        if th: a.stamp("P"); a("s_branch L_g2")

A0, WF2, OFR, GA, vOB, vCK, vXW, vTG = 24, 56, 104, 206, 214, 216, 240, 241
def gemm2(a):
    s = sT[1]; assert OFR + 16 * NG <= 200
    ofr = lambda g, k: OFR + 16 * (g % NG) + 4 * k
    ld = lambda g, k, so=sGO: f"buffer_load_dwordx4 {vr(ofr(g,k),4)}, v{vOB}, {sr(sWS)}, s{so} offen offset:{k*1024} sc1"
    adv = [f"s_add_u32 s{sGO}, s{sGO}, 4096", f"s_and_b32 s{sGO}, s{sGO}, 0xffff"]
    rd = lambda i: [f"ds_read_b64_tr_b16 {vr(WF2+16*(i%3)+4*cb+2*e,2)}, v{GA + 4*(i >> 4) + cb} offset:{(i & 15)*4096 + e*2048}" for cb in range(4) for e in range(2)]
    def check(g):
        ck, ok = a.newlabel("Lock"), a.newlabel("Look")
        T = tag_test(vCK, [ofr(g, k) for k in range(4)], f"s{sL}")
        a.tail += [ck + ":", f"s_mov_b32 s{sT[0]}, 0", f"s_add_u32 s{s}, s{sJ}, {g}", f"s_and_b32 s{s}, s{s}, 15", f"s_lshl_b32 s{s}, s{s}, 12", ck + "a:"] + [ld(g, k, s) for k in range(4)]
        if DIAG: a.tail += [f"v_add_u32 v7, {1 << (16 * (g > 3))}, v7"]
        a.tail += ["s_waitcnt vmcnt(0)"] + T + [f"s_cbranch_vccz {ok}", f"s_add_u32 s{sT[0]}, s{sT[0]}, 1", f"s_cmp_lt_u32 s{sT[0]}, {SPIN}", f"s_cbranch_scc1 {ck}a", f"s_branch {ok}"]
        return T, [f"s_cbranch_vccnz {ck}", ok + ":"]
    a(f"s_and_b32 s{s}, s{sTILE}, 0xffff0000"); a(f"s_add_u32 s{s}, s{s}, {OB}")
    a(f"v_add_u32 v{vOB}, s{s}, v{vL16}"); a(f"s_and_b32 s{sGO}, s{sTILE}, 0xffff")
    for g in range(G2PRE):
        if g: a.all(adv)
        for k in range(4): a(ld(g, k))
        if g == 0:
            a(f"v_lshrrev_b32 v{GA+1}, 5, v{vLANE}"); a(f"v_lshl_add_u32 v{GA}, v{GA+1}, 10, v{vTR}")
            for cb in range(1, 4): a(f"v_xor_b32 v{GA+cb}, {32*cb}, v{GA}")
            a.all(rd(0))
        if g == 1: a.all(rd(1))
    for p in range(16): a(f"v_lshlrev_b32 v{A0+2*p}, 16, v{XRES+p}"); a(f"v_and_b32 v{A0+2*p+1}, 0xffff0000, v{XRES+p}")
    for cb in range(4): a(f"v_add_u32 v{GA+4+cb}, 65536, v{GA+cb}")
    c_setup(a, False)
    a(f"s_lshl_b32 s{s}, s{sWID}, 12"); a(f"s_add_u32 s{s}, s{s}, {XB[0]}"); a(f"v_add_u32 v{vXW}, s{s}, v{vL16}")
    a(f"s_waitcnt vmcnt({4*(G2PRE-1)})"); T, B = check(0); a.all(T + ["s_waitcnt lgkmcnt(8)"] + B)
    a.stamp("R")
    nxt = G2PRE; assert 2 <= G2PRE < NG
    for g in range(16):
        mf = []; f = {}
        for h in range(2):
            i = 2 * g + h
            mf += [M(A0 + 16 * t + 4 * cb, WF2 + 16 * (i % 3) + 4 * cb, ofr(g, 2 * h + t), A0 + 16 * t + 4 * cb) for cb in range(4) for t in ((0, 1) if cb % 2 == 0 else (1, 0))]
            if i + 2 < 32: spread(f, rd(i + 2), range(8 * h, 8 * h + 8))
            if i + 1 < 32: f.setdefault(8 * h + 7, []).append(f"s_waitcnt lgkmcnt({8 if i + 2 < 32 else 0})")
            if i in (S0AT, S2AT): f.setdefault(14 if h else 5, []).append("s_barrier")
        if nxt < 16 and nxt + 1 < min(16, g + NG) and g % G2RAMP == 0:
            spread(f, [adv + [ld(nxt, 0)], ld(nxt, 1), ld(nxt, 2), ld(nxt, 3), adv, ld(nxt + 1, 0), ld(nxt + 1, 1), ld(nxt + 1, 2), ld(nxt + 1, 3)], range(9)); nxt += 2
        elif nxt < 16: spread(f, adv + [ld(nxt, k) for k in range(4)], (0, 1, 2, 4, 6, 8)); nxt += 1
        if g < 15:
            T, B = check(g + 1)
            spread(f, [f"s_waitcnt vmcnt({4 * (nxt - g - 2)})"] + T + [B], (9, 10, 11, 12, 13, 15))
        if a.stamps and TRACE == 2:
            f.setdefault(3, []).extend(([f"s_lshl_b32 m0, s{sL}, 4", f"s_add_u32 m0, m0, {g-1}", "v_writelane_b32 v5, s100, m0"] if g else []) + ["s_memrealtime s[100:101]" if RT else "s_memtime s[100:101]"])
        if g == 15 and G2E: last = mf[4:8] + mf[12:]; mf = mf[:4] + mf[8:12]; f = {3: f[7], 5: [f"s_bitcmp1_b32 s{sL}, 0"]}
        weave(a, mf, f)
    assert 6 <= S0AT <= 9 and 20 <= S2AT <= 25
    a.stamp("g2end")
    assert LAST % 2
    if not G2E: a(f"s_bitcmp1_b32 s{sL}, 0"); last = []
    a("s_cbranch_scc1 L_xodd")
    for ph in range(2):
        if ph: a.label("L_xodd"); a(f"s_cmp_eq_u32 s{sL}, {LAST}"); a("s_cbranch_scc1 L_final")
        L = []
        for fr in (0, 2, 1, 3):
            L += pack(XRES + 4 * fr, A0 + 8 * fr, ph, None if ph else vTG + fr)
            L += [f"buffer_store_dwordx4 {vr(XRES+4*fr,4)}, v{vL16}, {sr(sIO)}, s{sTILE} offen offset:{fr*1024}", f"ds_write_b128 v{vXW}, {vr(XRES+4*fr,4)} offset:{fr*1024}"]
        L += [f"v_cvt_pk_bf16_f32 v{XRES+4*fr}, v{A0+8*fr}, v{A0+8*fr+1}" for fr in (0, 2, 1, 3)]
        if G2E == 2: L = [x for x in L if not x.startswith("ds_")] + [x for x in L if x.startswith("ds_")]
        L = last + L + stat_mfma()
        a.bymode(sched(L, mf[-4:] + ["s_nop 2"]) if G2E else L)
        a(f"s_add_u32 s{sL}, s{sL}, 1"); a("s_waitcnt lgkmcnt(0)"); a("s_branch L_cgo")
    return last, mf[-4:]

def gen(stamps=False):
    a = G(stamps)
    s = sT[1]
    a("s_cmp_ge_u32 s2, 256"); a("s_cbranch_scc1 L_end")
    if stamps: a(f"s_memtime s[{sT0}:{sT0+1}]"); a("s_memrealtime s[80:81]"); a("s_mov_b32 s70, 63"); a("s_mov_b32 s82, 0")
    a("s_load_dwordx16 s[48:63], s[0:1], 0"); a("s_load_dwordx2 s[64:65], s[0:1], 64")
    a("v_lshrrev_b32 v1, 6, v0"); a(f"v_readfirstlane_b32 s{sWID}, v1")
    a(f"v_and_b32 v{vLANE}, 63, v0"); a(f"v_lshlrev_b32 v{vL16}, 4, v{vLANE}")
    if CODEPF:
        l1 = a.skip_unless("eq", sWID, 3)
        a("s_getpc_b64 s[40:41]")
        a.label("L_pc")
        a(f"s_lshr_b32 s{s}, s2, 3"); a(f"s_mul_i32 s{s}, s{s}, {CODEPF * 128}"); a(f"v_lshlrev_b32 v28, 7, v{vLANE}"); a(f"v_add_u32 v28, s{s}, v28")
        a(f"s_mov_b32 s{s}, L_end - L_pc"); a(f"v_min_u32 v28, s{s}, v28")
        a("v_mov_b32 v29, s41"); a("v_add_co_u32 v28, vcc, s40, v28"); a("v_addc_co_u32 v29, vcc, 0, v29, vcc")
        a(f"s_mov_b64 exec, {(1 << CODEPF) - 1}"); a(f"global_load_dword v{vDUM}, v[28:29], off"); a("s_mov_b64 exec, -1")
        a.label(l1)
    a(f"s_and_b32 s{s}, s2, 7"); a(f"s_lshr_b32 s{s+1}, s2, 3"); a(f"s_lshl_b32 s{sRB}, s{s}, 1"); a(f"s_and_b32 s{s}, s{s+1}, 1"); a(f"s_add_u32 s{sRB}, s{sRB}, s{s}")
    a(f"s_lshr_b32 s{sJ}, s{s+1}, 1"); a(f"s_and_b32 s{sU}, s{sWID}, 3")
    a(f"v_lshrrev_b32 v16, 4, v{vLANE}"); a("v_lshlrev_b32 v16, 1, v16"); a(f"v_and_b32 v17, 7, v{vLANE}"); a("v_xor_b32 v16, v16, v17"); a(f"v_lshlrev_b32 v{vCH}, 4, v16")
    def common():
        srd(a, sWS, pWS, WS_SIZE); a(f"v_mov_b32 v28, {NONCE}")
        a(f"buffer_load_dwordx2 v[26:27], v28, {sr(sWS)}, 0 offen sc1")
        srd(a, sWO, pWOA, 2097152)
        a(f"s_mov_b32 s{sL}, 0"); a(f"s_mov_b32 s{sFAST}, 0"); a(f"v_mov_b32 v{vSTAMP}, 0"); (a.stamps and a("v_mov_b32 v7, 0"))
        a(f"v_bfe_u32 v28, v{vLANE}, 2, 3"); a(f"v_bfe_u32 v29, v{vLANE}, 3, 2"); a(f"v_and_b32 v30, 3, v{vLANE}")
        a("v_lshlrev_b32 v28, 7, v28"); a("v_lshlrev_b32 v29, 5, v29"); a("v_lshlrev_b32 v30, 3, v30"); a(f"v_add3_u32 v{vTR}, v28, v29, v30")
        a(f"v_and_b32 v28, 15, v{vLANE}"); a(f"v_lshrrev_b32 v29, 4, v{vLANE}"); a("v_lshlrev_b32 v29, 2, v29"); a(f"v_sub_u32 v{vD0}, v28, v29")
        a(f"s_lshl_b32 s{sWP}, s{sU}, 10"); a(f"s_lshl_b32 s{sWR}, s{sJ}, 17"); a(f"s_lshl_b32 s{s}, s{sU}, 14"); a(f"s_lshl_b32 s{s+1}, s{sJ}, 7"); (FJ == 15 or a(f"s_and_b32 s{s+1}, s{s+1}, {FJ << 7}")); a(f"s_add_u32 s{s}, s{s}, s{s+1}")
        a(f"v_lshrrev_b32 v{vWO}, 3, v{vLANE}"); a(f"v_lshlrev_b32 v{vWO}, 11, v{vWO}"); a(f"v_add3_u32 v{vWO}, v{vWO}, v{vCH}, s{s}")
        a(f"s_lshl_b32 s{s}, s{sRB}, 18"); a(f"s_lshl_b32 s{s+1}, s{sJ}, 12"); a(f"s_add_u32 s{s}, s{s}, s{s+1}"); a(f"s_lshl_b32 s{s+1}, s{sU}, 16"); a(f"s_add_u32 s{sTILE}, s{s}, s{s+1}")
        a(f"s_lshl_b32 s{s+1}, s{sT32}, 16"); a(f"s_add_u32 s{s}, s{s}, s{s+1}"); a(f"s_and_b32 s{s+1}, s{sU}, 1"); a(f"s_lshl_b32 s{s+2}, s{s+1}, 11"); a(f"s_add_u32 s{s}, s{s}, s{s+2}"); a(f"s_add_u32 s{sOA}, s{s}, {OB}")
        a(f"s_lshl_b32 s{sLO}, s{s+1}, 12"); a(f"s_sub_u32 s{s+2}, 0, s{pWS}"); a(f"s_and_b32 s{s+2}, s{s+2}, 0x3ff00"); a(f"s_add_u32 s{s+2}, s{s+2}, {KV}")
        for b in range(3):
            d = sNB[b]
            a(f"s_sub_u32 s{s}, s{sRB}, {b}"); a(f"s_lshl_b32 s{d}, s{s}, 4"); a(f"s_add_u32 s{d}, s{d}, s{sJ}"); a(f"s_lshl_b32 s{d}, s{d}, 18"); a(f"s_add_u32 s{d}, s{d}, s{s+2}")
            if POL < 2:
                a(f"s_lshr_b32 s{s}, s{s}, 1"); a(f"s_getreg_b32 s{s+1}, hwreg(HW_REG_XCC_ID, 0, 4)"); a(f"s_add_u32 s{s}, s{s}, s{s+1}"); a(f"s_sub_u32 s{s}, s{s}, s2"); a(f"s_lshr_b32 s{s}, s{s}, 2")
                a(f"s_add_u32 s{s+1}, s{d}, s{pWS}"); a(f"s_lshr_b32 s{s+1}, s{s+1}, 21"); a(f"s_xor_b32 s{s}, s{s}, s{s+1}"); a(f"s_xor_b32 s{s}, s{s}, {POL}")
            elif POL == 2: a(f"s_mov_b32 s{s}, s{sJ}")
            if POL < 3: a(f"s_and_b32 s{s}, s{s}, 1"); a(f"s_lshl_b32 s{s}, s{s}, 13"); a(f"s_add_u32 s{d}, s{d}, s{s}")
            if b: a(f"s_cmp_lt_u32 s{sRB}, {b}"); a(f"s_cselect_b32 s{d}, {OOB}, s{d}")
        for r in range(4): a(f"v_mov_b32 v{vPO+r}, -1")
        a.all(masks_A() + ones())
    def nonce():
        a(f"v_readfirstlane_b32 s{sN0}, v26"); a(f"v_readfirstlane_b32 s{sN1}, v27")
        a(f"s_add_u32 s{sN0}, s{sN0}, 1"); a(f"s_add_u32 s{sN1}, s{sN1}, 32"); a(f"s_and_b32 s{sN1}, s{sN1}, 0xffffffe0")
        a(f"s_getreg_b32 s{s}, hwreg(HW_REG_XCC_ID, 0, 4)"); a(f"s_or_b32 s{sN1}, s{sN1}, s{s}")
    a(f"s_cmp_lt_u32 s{sWID}, 4"); a("s_cbranch_scc1 L_cstart")
    a(f"s_lshl_b32 s{sMX}, s{sU}, 12"); a(f"s_mul_i32 s{sMW}, s{sU}, 6144")
    setup_w(a, True); setup_x(a, 0)
    a("s_waitcnt lgkmcnt(0)"); xsrd(a, sXS, 0); srd(a, sW, pWA, 6291456); a(f"s_andn2_b32 s{sGO}, s{sRB}, {RG}"); a(f"s_and_b32 s{sH}, s{sRB}, {RG}")
    vm = VM(a)
    if HOT: hot_setup(a, 0, 28); hot_issue(a, 0, HOT0[0], HOT0[1], 28)
    kstage(a, 0, 0); dma_w(a, WB[0]); dma_x(a, 0, 0)
    a(f"s_andn2_b32 s{sT32}, 2, s{sU}")
    common(); vm.add(("n",)); xsrd(a, sIO, 1)
    a(f"s_lshr_b32 s{s}, s{sTILE}, 16"); a(f"s_lshl_b32 s{s}, s{s}, 7"); a(f"s_add_u32 s{s}, s{s}, {SFL}"); a(f"v_and_b32 v28, 15, v{vLANE}"); a(f"v_lshl_add_u32 v{vSF}, v28, 3, s{s}")
    a(f"s_add_u32 s{s}, s{sMX}, {XB[0]}"); a(f"v_add_u32 v{vXV}, s{s}, v{vL16}")
    a(f"s_lshl_b32 s{s}, s{sU}, 7"); a(f"s_add_u32 s{s}, s{s}, {TAB}"); a(f"v_lshrrev_b32 v29, 5, v{vLANE}"); a("v_lshl_add_u32 v29, v29, 4, v28"); a(f"v_lshl_add_u32 v{vTW}, v29, 2, s{s}")
    a(f"s_min_u32 s{s}, s{sU}, 2"); a(f"s_lshl_b32 s{s}, s{s}, 8"); a(f"s_add_u32 s{s}, s{s}, {TAB+1024}"); a(f"v_lshrrev_b32 v29, 4, v{vLANE}"); a("v_lshl_add_u32 v29, v28, 2, v29"); a(f"v_lshl_add_u32 v{vCW}, v29, 2, s{s}")
    first = [lambda: (kstage(a, 0, 1), dma_x(a, 0, 1), vm.add(("x", 1), 4)), lambda: (dma_w(a, WB[1]), vm.add(("w", 1), 6)), lambda: (kstage(a, 0, 2), dma_w(a, WB[2]), vm.add(("w", 2), 6))]
    if ST0 & 4: first[0], first[1] = lambda: (kstage(a, 0, 1), dma_w(a, WB[1]), vm.add(("w", 1), 6)), lambda: (dma_x(a, 0, 1), vm.add(("x", 1), 4))
    for f in first[:ST0 & 3]: f()
    a.stamp("l_a"); vm.wait(("n",)); nonce(); a.stamp("l_b")
    a("s_barrier")
    for f in first[ST0 & 3:]: f()
    for l in range(LAST + 1):
        loader(a, l, vm)
        if l % 2 == 0:
            if WREG:
                prep_next(a, l)
                for st in range(WREG): kstage(a, l + 1, st, x=False); a(f"s_mov_b32 s{44+st}, s{sWOF}")
                if HOT: t = G_(a); hot_issue(t, l + 1, int(l + 1 in ROTL), HOTD + 1, S_); a.all(t.lines[:-3]); a(f"v_mov_b32 v{vCS+3}, v{S_}")
            a("s_branch L_attL"); a.label(f"L_between{l}"); vm.q = [("r", st) for st in range(WREG) for k in range(6)] + [("o",)] * 2
        else:
            vm.wait(("wo", 11)); vm.wait(("p",)); a("s_barrier")
            vm.wo(WOB[3]); assert sorted(x for L in WOB for x in L) == list(range(32 - TRICKLE))
        between(a, l, vm)
    assert LAST >= 1; a(f"s_or_b32 s{s}, s2, s{sU}"); a(f"s_cmp_lg_u32 s{s}, 0"); a("s_cbranch_scc1 L_out")
    a(f"v_mov_b32 v22, {NONCE}"); p0, p1 = post_l(22, 24); a.all(p0 + p1)
    a("s_branch L_out")
    a.label("L_attL")
    att_A_loader(a)
    a.label("L_cstart")
    io_addr(a, 24)
    if POL == 3:
        a(f"s_lshl_b32 s47, s{sRB}, 4"); a(f"s_add_u32 s47, s47, s{sJ}"); a("s_lshl_b32 s47, s47, 11"); a(f"s_add_u32 s47, s47, s{sWID}"); a("s_lshl_b32 s47, s47, 7"); a(f"s_add_u32 s47, s47, {KV + KF + 1024}")
        a(f"v_lshrrev_b32 v32, 3, v{vLANE}"); a("v_mul_u32_u24 v32, 8064, v32"); a(f"v_add_u32 v32, v32, v{vL16}")
        for r in range(28, 32): a(f"v_mov_b32 v{r}, 0")
    a("s_waitcnt lgkmcnt(0)")
    if POL == 3:
        srd(a, sWS, pWS, WS_SIZE); a(f"s_sub_u32 s{s}, 0, s{pWS}"); a(f"s_and_b32 s{s}, s{s}, 0x3ff00"); a(f"s_add_u32 s47, s47, s{s}")
        a("s_mov_b64 exec, 0xffff"); a(f"buffer_store_dwordx4 v[28:31], v32, {sr(sWS)}, s47 offen sc1"); a("s_mov_b64 exec, -1")
    srd(a, sIO, pX, 4194304)
    for f in range(4): a(f"buffer_load_dwordx4 {vr(XRES+4*f,4)}, v{24 + (f >> 1)}, {sr(sIO)}, 0 offen offset:{(f & 1)*64}")
    a(f"s_or_b32 s{sT32}, s{sU}, 1")
    common(); srd(a, sW, pWA, 6291456)
    for d, val in ((mB0, lane_mask(lambda i, g: i & 1)), (mB1, lane_mask(lambda i, g: i & 2)), (mP0, lane_mask(lambda i, g: 4*g + (i & 1) > i)), (mP1, lane_mask(lambda i, g: 4*g + 2 + (i & 1) > i))):
        a(f"s_mov_b32 s{d}, {val & 0xffffffff}"); a(f"s_mov_b32 s{d+1}, {val >> 32}")
    c_setup(a, True)
    if POL == 3:
        a(f"s_add_u32 s0, s{pWS}, s47"); a(f"s_addc_u32 s1, s{pWS+1}, 0"); a(f"s_and_b32 s35, s{sWID}, {PORD}"); a("s_lshl_b32 s36, s35, 13")
        a(f"s_lshl_b32 s37, s{sWID}, 2"); a("s_lshl_b32 s35, s35, 4"); a("s_add_u32 s37, s37, s35"); a(f"s_add_u32 s37, s37, {TAB + 1824}"); a("v_mov_b32 v29, s37"); a("v_xor_b32 v31, 16, v29")
        a(f"s_waitcnt vmcnt({PVM})"); a("s_memtime s[28:29]"); a("s_waitcnt lgkmcnt(0)")
        for k in range(2 * PN):
            a(f"s_load_dword s26, s[0:1], s36 offset:{64 * (k >> 1)}"); a("s_waitcnt lgkmcnt(0)"); a("s_memtime s[30:31]"); a("s_xor_b32 s36, s36, 8192"); a("s_waitcnt lgkmcnt(0)")
            a("s_sub_u32 s29, s30, s28"); a("s_mov_b32 s28, s30"); a(f"s_min_u32 s{38 + (k & 1)}, s29, s{38 + (k & 1) if k > 1 else 29}")
        a("v_mov_b32 v28, s38"); a("v_mov_b32 v30, s39"); a("ds_write_b32 v29, v28"); a("ds_write_b32 v31, v30")
    a.stamp("l_c"); a("s_waitcnt vmcnt(0) lgkmcnt(0)"); a.stamp("l_b")
    nonce(); a.all(stat_mfma()); xsrd(a, sIO, 1)
    for f in range(4): a.all(col_swaps(f, (16, 32)))
    a.label("L_cgo")
    consumer(a)
    tail_A(a)
    a.label("L_afin")
    a.stamp("fin")
    finish_A(a)
    if ZPRIO: a("s_setprio 0")
    a(f"s_add_u32 s{sLO}, s{sLO}, 65536")
    if WREG: e = a.skip_unless("lt", sWID, 4); a("s_waitcnt vmcnt(2)"); a.label(e)
    a("s_barrier")
    a.stamp("P")
    a(f"s_cmp_lt_u32 s{sWID}, 4"); a("s_cbranch_scc1 L_g2")
    a(f"s_cmp_eq_u32 s{sL}, 0"); a("s_cbranch_scc1 L_between0"); a(f"s_branch L_between{2 if LAST >= 2 else 0}")
    tail_B(a)
    a.stamp("P")
    a.label("L_g2")
    last, ctx = gemm2(a)
    a.label("L_final")
    t = G_(a); io_addr(t, 230); L = [x.strip() for x in t.lines] + last
    for f in (0, 2, 1, 3):
        L += [f"v_cvt_pk_bf16_f32 v{XRES+p}, v{A0+2*p}, v{A0+2*p+1}" for p in range(4 * f, 4 * f + 4)] + col_swaps(f, (32, 16))
        L += [f"buffer_store_dwordx4 {vr(XRES+4*f,4)}, v{230 + (f >> 1)}, {sr(sIO)}, 0 offen offset:{(f & 1)*64}{FST}"]
    a.all(sched(L, ctx + ["s_nop 2"]))
    a.label("L_out")
    a.stamp("end")
    if stamps:
        a("s_waitcnt lgkmcnt(0)"); a("s_mov_b32 m0, s70"); a(f"v_writelane_b32 v{vSTAMP}, s82, m0")
        a("s_memrealtime s[82:83]"); a("s_waitcnt lgkmcnt(0)"); a("v_writelane_b32 v7, s80, 0"); a("v_writelane_b32 v7, s82, 1"); a(f"v_writelane_b32 v7, s{80 if RT else sT0}, 2"); a(f"v_writelane_b32 v7, s{sNB[0]}, 3"); a(f"v_writelane_b32 v7, s{sN1}, 4")
        a(f"s_lshl_b32 s{s}, s2, 11"); a(f"s_lshl_b32 s{s+1}, s{sWID}, 8"); a(f"s_add_u32 s{s}, s{s}, s{s+1}"); a(f"s_add_u32 s{s}, s{s}, {STAMP}")
        a(f"v_lshlrev_b32 v16, 2, v{vLANE}"); a(f"buffer_store_dword v{vSTAMP}, v16, {sr(sWS)}, s{s} offen")
        a(f"s_add_u32 s{s}, s{s}, {1 << 20}"); a(f"buffer_store_dword v7, v16, {sr(sWS)}, s{s} offen")
        if TRACE: a(f"s_add_u32 s{s}, s{s}, {1 << 19}"); a(f"buffer_store_dword v5, v16, {sr(sWS)}, s{s} offen")
    a("s_endpgm")
    a.all(x.strip() for x in a.tail)
    a.label("L_end")
    a("s_endpgm")
    body, n = hazard.fix(a.text())
    hdr = open(HERE + "/header3.txt").read().rstrip("\n").split("\n")
    hdr.append("; @launch grid=(256,1,1) block=(512,1,1) lds=163840")
    return kernel_file(hdr, [(KNAME, body, 256, 102 if stamps else 100, 256)]), n

if __name__ == "__main__":
    for x in sys.argv[2:]:
        if "=" in x: k, v = x.split("=", 1); assert k in globals(), k; globals()[k] = eval(v)
    txt, n = gen("stamps" in sys.argv)
    open(sys.argv[1], "w").write(txt)
    print("lines", txt.count("\n"), "nops inserted", n, "sched", sched.log)
```
